```python
import torch

def _softmax(x, axis=-1):
    return torch.softmax(x, dim=axis)
def _gelu(x):
    return torch.nn.functional.gelu(x, approximate="tanh")
def _silu(x):
    return torch.nn.functional.silu(x)
def _sigmoid(x):
    return torch.sigmoid(x)
def _layernorm(x, axis=-1, eps=1e-5):
    m = x.mean(dim=axis, keepdim=True)
    v = x.var(dim=axis, keepdim=True, unbiased=False)
    return (x - m) / torch.sqrt(v + eps)
def _scatter_add(tgt, idx, src, axis=0):
    return tgt.clone().index_add_(axis, idx, src)
def _segment_sum(src, seg, n):
    out = torch.zeros((n,) + src.shape[1:], dtype=src.dtype)
    return out.index_add_(0, seg, src)
def _pad(x, pw):
    flat = tuple(v for pair in reversed(pw) for v in pair)
    return torch.nn.functional.pad(x, flat)

kernel_name = 'parallel_sum__linear_kernel_hedgehog__dense_activation_squared_relu__prompt'

def setup_inputs():

    _w = (lambda a: (lambda t: t.to(torch.bfloat16) if t.is_floating_point() else t)(torch.as_tensor(a)))
    def _A_setup():
        B, S, D, H = 1, 2048, 640, 32
        Dh = D // H
        return {
            "x": _w((lambda *s: torch.randn(*s, dtype=torch.bfloat16) * 0.05)(B, S, D)),
            "wqkv": _w((lambda *s: torch.randn(*s, dtype=torch.bfloat16) * 0.8)(D, 3 * D)),
            "w_phi": _w((lambda *s: torch.randn(*s, dtype=torch.bfloat16) * 0.8)(H, Dh, Dh) * (Dh ** -0.5)),
            "wo": _w((lambda *s: torch.randn(*s, dtype=torch.bfloat16) * 0.2)(D, D)),
        }
    _A_in = _A_setup()

    def _B_setup():
        B, S, D, F = 1, 2048, 640, 1536
        return {
            "x": _w((lambda *s: torch.randn(*s, dtype=torch.bfloat16) * 0.05)(B, S, D)),
            "w1": _w((lambda *s: torch.randn(*s, dtype=torch.bfloat16) * 0.05)(D, F)),
            "b1": _w((lambda *s: torch.randn(*s, dtype=torch.bfloat16) * 0.8)(F)),
            "w2": _w((lambda *s: torch.randn(*s, dtype=torch.bfloat16) * 0.05)(F, D)),
            "b2": _w((lambda *s: torch.randn(*s, dtype=torch.bfloat16) * 3.2)(D)),
        }
    _B_in = _B_setup()

    return {
        "A_x": _A_in["x"],
        "A_wqkv": _A_in["wqkv"],
        "A_w_phi": _A_in["w_phi"],
        "A_wo": _A_in["wo"],
        "B_x": _B_in["x"],
        "B_w1": _B_in["w1"],
        "B_b1": _B_in["b1"],
        "B_w2": _B_in["w2"],
        "B_b2": _B_in["b2"],
    }

def reference(A_x, A_wqkv, A_w_phi, A_wo, B_x, B_w1, B_b1, B_w2, B_b2):
    def _A_ref(x, wqkv, w_phi, wo):
        B, S, D = x.shape
        H = 32; Dh = D // H
        qkv = (lambda x, *d: x.permute(*d))((x @ wqkv).reshape(B, S, 3, H, Dh), 2, 0, 3, 1, 4)
        q, k, v = qkv[0], qkv[1], qkv[2]
        pq = torch.einsum("bhsd,hdf->bhsf", q, w_phi)
        pk = torch.einsum("bhsd,hdf->bhsf", k, w_phi)
        phi_q = torch.concatenate([_softmax(pq, axis=-1), _softmax(-pq, axis=-1)], axis=-1)
        phi_k = torch.concatenate([_softmax(pk, axis=-1), _softmax(-pk, axis=-1)], axis=-1)
        kv = torch.einsum("bhsf,bhsd->bhfd", phi_k, v)
        z  = torch.einsum("bhsf->bhf", phi_k)
        num = torch.einsum("bhqf,bhfd->bhqd", phi_q, kv)
        den = torch.einsum("bhqf,bhf->bhq", phi_q, z)[..., None] + 1e-6
        o = num / den
        return (lambda x, *d: x.permute(*d))(o, 0, 2, 1, 3).reshape(B, S, D) @ wo

    def _B_ref(x, w1, b1, w2, b2):
        h = torch.einsum("bsd,df->bsf", x, w1) + b1
        zero = torch.zeros_like(h)
        r = torch.where(h > zero, h, zero)
        h = r * r
        out = torch.einsum("bsf,fd->bsd", h, w2) + b2
        return out

    x = A_x
    xn = _layernorm(x, axis=-1)
    return x + _A_ref(xn, A_wqkv, A_w_phi, A_wo) + _B_ref(xn, B_w1, B_b1, B_w2, B_b2)
```

```python
NAME = "parallel_sum__linear_kernel_hedgehog__dense_activation_squared_relu__prompt"
class Asm:
    def __init__(self):
        self.lines = []
        self.nlabel = 0
    def __call__(self, s):
        for l in s.split("\n"):
            l = l.strip()
            if l: self.lines.append(("" if l.endswith(":") else "    ") + l)
    def label(self, base="L"):
        self.nlabel += 1
        return f"{base}_{self.nlabel}"
    def text(self):
        return "\n".join(self.lines) + "\n"
STAMPS = False
WS_DBG = 0x1800000
def stamp(a, i):
    if STAMPS: a(f"s_memrealtime s[{60+2*i}:{61+2*i}]")
def stamp_flush(a, n, kidx, wave="s31", srd="s[16:19]"):
    if not STAMPS: return
    a(f"s_mov_b64 exec, -1\ns_waitcnt vmcnt(0) lgkmcnt(0)\ns_memrealtime s[{60+2*n}:{61+2*n}]\ns_lshl_b32 s58, s2, 3\ns_add_u32 s58, s58, {wave}\ns_lshl_b32 s58, s58, 6\ns_add_u32 s58, s58, {WS_DBG + kidx*0x20000}\ns_waitcnt lgkmcnt(0)\nv_mov_b32 v0, 0")
    for i in range(n + 1): a(f"v_mov_b32 v1, s{60+2*i}\nbuffer_store_dword v1, v0, {srd}, s58 offen offset:{4*i}")
def vr(a, n=1, p="v"):
    return f"{p}{a}" if n == 1 else f"{p}[{a}:{a+n-1}]"
def sr(a, n=1):
    return vr(a, n, "s")
def kernel_begin(name):
    return f""".text
.globl {name}
.p2align 8
.type {name},@function
{name}:
"""
def kernel_desc(name, vgpr, sgpr, accum=None):
    if accum is None: accum = (vgpr + 3) // 4 * 4
    return f""".p2align 6
.amdhsa_kernel {name}
  .amdhsa_next_free_vgpr {vgpr}
  .amdhsa_next_free_sgpr {sgpr}
  .amdhsa_accum_offset {accum}
  .amdhsa_group_segment_fixed_size 0
  .amdhsa_kernarg_size 96
  .amdhsa_user_sgpr_count 2
  .amdhsa_user_sgpr_kernarg_segment_ptr 1
  .amdhsa_system_sgpr_workgroup_id_x 1
  .amdhsa_float_denorm_mode_32 3
  .amdhsa_float_denorm_mode_16_64 3
.end_amdhsa_kernel
"""
def file_text(launch_lines, kernels):
    s = "".join(l + "\n" for l in launch_lines)
    s += '.amdgcn_target "amdgcn-amd-amdhsa--gfx950"\n'
    for k in kernels:
        s += kernel_begin(k[0]) + k[1]
    s += '.section .rodata,"a"\n'
    for k in kernels:
        s += kernel_desc(k[0], k[2], k[3], k[4])
    return s

import re
def _regs(op):
    op = op.strip()
    m = re.fullmatch(r"([vsa])\[(\d+):(\d+)\]", op)
    if m: return {(m.group(1), i) for i in range(int(m.group(2)), int(m.group(3)) + 1)}
    m = re.fullmatch(r"-?\|?([vsa])(\d+)\|?", op)
    if m: return {(m.group(1), int(m.group(2)))}
    if op in ("vcc", "m0", "exec"): return {(op, 0)}
    return set()
TRANS = ("v_exp_f32", "v_log_f32", "v_rcp_f32", "v_rsq_f32", "v_sqrt_f32")
def check_hazards(text):
    ins = []
    for ln, l in enumerate(text.split("\n")):
        l = l.split(";")[0].strip()
        if not l or l.endswith(":") or l.startswith("."): continue
        parts = l.split(None, 1)
        op = parts[0]
        rest = parts[1] if len(parts) > 1 else ""
        ops = [o.strip() for o in rest.split(",")]
        ops = [o.split()[0] if o else o for o in ops]
        dst, src = set(), set()
        if op.startswith("v_") or op.startswith("s_"):
            if op.startswith(("s_cmp", "s_waitcnt", "s_nop", "s_barrier", "s_cbranch", "s_branch", "s_endpgm", "s_setprio", "s_sleep")): src = set().union(*[_regs(o) for o in ops]) if ops else set()
            else:
                dst = _regs(ops[0]); src = set().union(set(), *[_regs(o) for o in ops[1:]])
                if "fmac" in op or "permlane" in op or "dot2c" in op: src |= dst
                if "permlane" in op and "swap" in op: dst |= _regs(ops[1])
        elif op.startswith(("ds_write", "buffer_store", "global_store", "buffer_atomic", "global_atomic")) or " lds" in l:
            src = set().union(*[_regs(o) for o in ops])
            if " lds" in l: src |= {("m0", 0)}
        else:
            dst = _regs(ops[0]); src = set().union(set(), *[_regs(o) for o in ops[1:]])
        ws = int(ops[0]) + 1 if op == "s_nop" else 1
        ins.append((ln + 1, l, op, dst, src, ws, ops))
    errs = []
    for i, (ln, l, op, dst, src, ws, ops) in enumerate(ins):
        valu = op.startswith("v_") and not op.startswith("v_mfma")
        mfma = op.startswith("v_mfma")
        mem = op.startswith(("buffer_", "global_", "ds_"))
        vmem = op.startswith(("buffer_", "global_"))
        dist = 0
        for j in range(i - 1, max(-1, i - 24), -1):
            _, pl, pop, pdst, psrc, pws, pops = ins[j]
            if pop in ("s_endpgm", "s_branch"): break
            pvalu = pop.startswith("v_") and not pop.startswith("v_mfma")
            need = 0
            hit = pdst & src
            if pvalu and hit:
                sg = {r for r in hit if r[0] in ("s", "vcc")}
                vg = {r for r in hit if r[0] == "v"}
                if sg and valu: need = max(need, 2)
                if sg and vmem: need = max(need, 5)
                if vg and ("dpp" in op or "permlane" in op): need = max(need, 2)
                if vg and op.startswith(("v_readfirstlane", "v_readlane")): need = max(need, 1)
                if vg and mfma: need = max(need, 2)
                if vg and pop in TRANS and (valu and op not in TRANS or mfma or mem): need = max(need, 1)
            if pop.startswith("v_mfma"):
                big = "32x32" in pop
                if (pdst & (src | dst)) and (valu or mem): need = max(need, 12 if big else 8)
                if mfma and (pdst & (_regs(ops[1]) | _regs(ops[2]))): need = max(need, 12 if big else 8)
                if valu and (_regs(pops[3]) & dst): need = max(need, 7 if big else 3)
            if pop.startswith(("buffer_store_dwordx4", "buffer_store_dwordx3", "global_store_dwordx4")) and valu and (_regs(pops[0]) & dst): need = max(need, 2)
            if pop.startswith("s_") and ("m0", 0) in pdst and ("m0", 0) in src and mem: need = max(need, 1)
            if need > dist: errs.append(f"line {ln}: '{l}' needs {need} states after '{pl}' (has {dist})")
            dist += pws * (8 if pop.startswith("v_mfma") and False else 1)
    return errs
```

```python
from asmlib import *
from layout import *
def srd(a, r, off, nbytes):
    a(f"s_load_dwordx2 {sr(r,2)}, s[0:1], {off}\ns_mov_b32 s{r+2}, {nbytes}\ns_mov_b32 s{r+3}, 0x20000")
def dpp_add(a, d, s, ror):
    a(f"s_nop 1\nv_add_f32_dpp v{d}, v{s}, v{s} row_ror:{ror} row_mask:0xf bank_mask:0xf")
def gen_k0():
    a = Asm()
    srd(a, 4, 0, NB_X); srd(a, 8, 8, NB_WQKV); srd(a, 12, 40, NB_W1); srd(a, 16, 88, WS_END)
    a("""
    s_cmp_ge_u32 s2, 256
    s_cbranch_scc1 K0_end
    v_lshrrev_b32 v1, 6, v0
    v_and_b32 v2, 63, v0
    s_nop 0
    v_readfirstlane_b32 s3, v1
    s_mov_b32 s31, 0xffff0000
    s_cmp_ge_u32 s3, 2
    s_cbranch_scc1 K0_cols
    s_lshl_b32 s20, s2, 3
    s_lshl_b32 s21, s3, 2
    s_add_u32 s20, s20, s21
    v_lshrrev_b32 v3, 4, v2
    v_add_u32 v3, s20, v3
    v_and_b32 v4, 15, v2
    v_mul_u32_u24 v5, 1280, v3
    v_lshl_add_u32 v5, v4, 4, v5
    s_waitcnt lgkmcnt(0)
    """)
    for i in range(5): a(f"buffer_load_dwordx4 {vr(10+4*i,4)}, v5, s[4:7], 0 offen offset:{256*i}")
    for i in range(5):
        a(f"s_waitcnt vmcnt({4-i})")
        for q in range(4):
            r = 10 + 4*i + q
            a(f"v_lshlrev_b32 v{40+2*(4*i+q)}, 16, v{r}\nv_and_b32 v{41+2*(4*i+q)}, s31, v{r}")
    a("v_pk_add_f32 v[6:7], v[40:41], v[42:43]\nv_pk_add_f32 v[8:9], v[44:45], v[46:47]")
    for i in range(4, 20, 2):
        a(f"v_pk_add_f32 v[6:7], v[6:7], {vr(40+2*i,2)}\nv_pk_add_f32 v[8:9], v[8:9], {vr(42+2*i,2)}")
    a("v_pk_add_f32 v[6:7], v[6:7], v[8:9]\nv_add_f32 v6, v6, v7")
    for ror in (8, 4, 2, 1): dpp_add(a, 6, 6, ror)
    a(f"v_mul_f32 v6, {1.0/640!r}, v6".replace(repr(1.0/640), "0x3acccccd"))
    a("v_sub_f32 v30, 0, v6\nv_mov_b32 v31, v30")
    for i in range(20): a(f"v_pk_add_f32 {vr(40+2*i,2)}, {vr(40+2*i,2)}, v[30:31]")
    a("v_pk_mul_f32 v[8:9], v[40:41], v[40:41]\nv_pk_mul_f32 v[32:33], v[42:43], v[42:43]")
    for i in range(2, 20, 2):
        a(f"v_pk_fma_f32 v[8:9], {vr(40+2*i,2)}, {vr(40+2*i,2)}, v[8:9]\nv_pk_fma_f32 v[32:33], {vr(42+2*i,2)}, {vr(42+2*i,2)}, v[32:33]")
    a("v_pk_add_f32 v[8:9], v[8:9], v[32:33]\nv_add_f32 v7, v8, v9")
    for ror in (8, 4, 2, 1): dpp_add(a, 7, 7, ror)
    a("""
    v_mov_b32 v8, 0x3727c5ac
    v_fmac_f32 v8, 0x3acccccd, v7
    v_rsq_f32 v7, v8
    v_lshlrev_b32 v3, 3, v3
    v_cmp_eq_u32 vcc, 0, v4
    s_and_saveexec_b64 s[22:23], vcc
    s_nop 1
    buffer_store_dwordx2 v[6:7], v3, s[16:19], 0 offen
    s_endpgm
    K0_cols:
    s_cmp_ge_u32 s2, 216
    s_cbranch_scc1 K0_end
    s_lshr_b32 s20, s2, 2            ; line
    s_and_b32 s21, s2, 3             ; quarter
    s_lshl_b32 s21, s21, 1
    s_add_u32 s21, s21, s3
    s_sub_u32 s21, s21, 2            ; part 0..7
    s_mul_i32 s22, s21, 80           ; row0
    v_lshrrev_b32 v3, 3, v2
    v_add_u32 v3, s22, v3
    v_and_b32 v4, 7, v2
    v_lshlrev_b32 v4, 4, v4
    v_and_b32 v6, 15, v2
    v_and_b32 v7, 1, v2
    v_lshlrev_b32 v7, 4, v7
    v_mov_b32 v8, 0x3f80
    v_lshlrev_b32 v7, v7, v8
    v_lshrrev_b32 v6, 1, v6
    """)
    for q in range(4):
        a(f"v_cmp_eq_u32 vcc, {q}, v6\ns_nop 1\nv_cndmask_b32 v{60+q}, 0, v7, vcc")
    a("""
    s_cmp_ge_u32 s20, 30
    s_cbranch_scc1 K0_w1
    s_lshl_b32 s23, s20, 7
    v_mul_u32_u24 v5, 3840, v3
    v_add_u32 v5, v5, v4
    s_waitcnt lgkmcnt(0)
    """)
    for i in range(10): a(f"buffer_load_dwordx4 {vr(10+4*i,4)}, v5, s[8:11], s23 offen\ns_add_u32 s23, s23, {8*3840}")
    a("""
    s_branch K0_sum
    K0_w1:
    s_sub_u32 s23, s20, 30
    s_lshl_b32 s23, s23, 7
    v_mul_u32_u24 v5, 3072, v3
    v_add_u32 v5, v5, v4
    s_waitcnt lgkmcnt(0)
    """)
    for i in range(10): a(f"buffer_load_dwordx4 {vr(10+4*i,4)}, v5, s[12:15], s23 offen\ns_add_u32 s23, s23, {8*3072}")
    a("K0_sum:")
    for i in range(10):
        a(f"s_waitcnt vmcnt({9-i})")
        a(f"v_mfma_f32_16x16x32_bf16 v[64:67], v[60:63], {vr(10+4*i,4)}, {'0' if i == 0 else 'v[64:67]'}")
    a(f"""
    s_mul_i32 s24, s21, {3456*4}
    s_lshl_b32 s25, s20, 8
    s_add_u32 s24, s24, s25
    s_add_u32 s24, s24, {WS_COLS}
    v_and_b32 v6, 7, v2
    v_lshlrev_b32 v6, 5, v6
    v_and_b32 v7, 16, v2
    v_add_u32 v6, v6, v7
    v_and_b32 v7, 40, v2
    s_nop 7
    """)
    for q in range(4): dpp_add(a, 68+q, 64+q, 8)
    a("""
    v_cmp_eq_u32 vcc, 0, v7
    s_and_saveexec_b64 s[22:23], vcc
    s_nop 1
    buffer_store_dwordx4 v[68:71], v6, s[16:19], s24 offen
    K0_end:
    s_endpgm
    """)
    return a.text()
```

```python
from asmlib import *
import asmlib
from layout import *
from k0 import srd
ACC = 144
SET = (80, 112)
XA = 1
QA = 5
HA = 6
RSTD = 10
BDA = 11
LOG2E = "0x3fb8aa3b"

def tile_reads(typ, s, dst):
    r = [f"ds_read_b128 {vr(dst,4)}, v{XA+s}"]
    nq = 5 if typ == 0 else 3
    for t in range(7):
        for u in range(2):
            d = vr(dst + 4 + 4*t + 2*u, 2)
            if t < nq: r.append(f"ds_read_b64_tr_b16 {d}, v{QA} offset:{t*32 + (4*u + 16*s)*QP[typ]}")
            else:      r.append(f"ds_read_b64_tr_b16 {d}, v{HA+t-nq} offset:{(4*u + 16*s)*HP[typ]}")
    return r

def mfma_step(a, cur, fill, per=3):
    k = 0
    for t in range(7):
        acc = vr(ACC + 16*t, 16)
        a(f"v_mfma_f32_32x32x16_bf16 {acc}, {vr(cur+4+4*t,4)}, {vr(cur,4)}, {acc}")
        n = 0
        while k < len(fill) and (n < per or t == 6):
            a(fill[k]);
            if fill[k].startswith("ds_"): n += 1
            k += 1

def softmax(a, P, T, dplus, dminus):
    a(f"v_max3_f32 v132, v{P}, v{P+1}, v{P+2}\nv_min3_f32 v133, v{P}, v{P+1}, v{P+2}")
    a(f"v_max3_f32 v134, v{P+3}, v{P+4}, v{P+5}\nv_min3_f32 v135, v{P+3}, v{P+4}, v{P+5}")
    for i in range(6, 20, 4):
        a(f"v_max3_f32 v132, v132, v{P+i}, v{P+i+1}\nv_min3_f32 v133, v133, v{P+i}, v{P+i+1}")
        if i + 3 < 20: a(f"v_max3_f32 v134, v134, v{P+i+2}, v{P+i+3}\nv_min3_f32 v135, v135, v{P+i+2}, v{P+i+3}")
    a("v_max_f32 v132, v132, v134\nv_min_f32 v133, v133, v135")
    a("v_mul_f32 v134, v12, v132\nv_mul_f32 v136, v12, v133")
    for i in range(0, 20, 2):
        a(f"v_pk_fma_f32 {vr(T+i,2)}, {vr(P+i,2)}, v[12:13], v[136:137] op_sel_hi:[1,0,0] neg_lo:[1,0,0] neg_hi:[1,0,0]")
        a(f"v_pk_fma_f32 {vr(P+i,2)}, {vr(P+i,2)}, v[12:13], v[134:135] op_sel_hi:[1,0,0] neg_lo:[0,0,1] neg_hi:[0,0,1]")
    for i in range(20):
        a(f"v_exp_f32 v{P+i}, v{P+i}\nv_exp_f32 v{T+i}, v{T+i}")
    a(f"v_pk_add_f32 v[138:139], {vr(P,2)}, {vr(P+2,2)}\nv_pk_add_f32 v[140:141], {vr(T,2)}, {vr(T+2,2)}")
    for i in range(4, 20, 2):
        a(f"v_pk_add_f32 v[138:139], v[138:139], {vr(P+i,2)}\nv_pk_add_f32 v[140:141], v[140:141], {vr(T+i,2)}")
    a("v_add_f32 v138, v138, v139\nv_add_f32 v140, v140, v141\nv_rcp_f32 v138, v138\nv_rcp_f32 v140, v140\ns_nop 0")
    for i in range(0, 20, 2):
        a(f"v_pk_mul_f32 {vr(P+i,2)}, {vr(P+i,2)}, v[138:139] op_sel_hi:[1,0]")
        a(f"v_pk_mul_f32 {vr(T+i,2)}, {vr(T+i,2)}, v[140:141] op_sel_hi:[1,0]")
    for i in range(10):
        a(f"v_cvt_pk_bf16_f32 v{dplus[i]}, v{P+2*i}, v{P+2*i+1}\nv_cvt_pk_bf16_f32 v{dminus[i]}, v{T+2*i}, v{T+2*i+1}")

def compute(a, typ):
    L = f"K1_c{typ}"
    nh = 2 if typ == 0 else 4
    a(f"""
    {L}:
    v_mul_u32_u24 v{QA}, {QP[typ]}, v61
    v_mul_u32_u24 v14, {QP[typ]//2}, v62
    v_lshlrev_b32 v15, 3, v63
    v_add3_u32 v{QA}, v{QA}, v14, v15
    v_add_u32 v{QA}, {QB + SLOT}, v{QA}
    v_lshlrev_b32 v{HA}, {7 if typ == 0 else 8}, v61
    v_and_b32 v14, 16, v60
    v_lshlrev_b32 v14, 1, v14
    v_lshl_add_u32 v14, v62, 4, v14
    v_and_b32 v15, 2, v60
    v_lshl_add_u32 v14, v15, 2, v14
    v_add_u32 v{HA}, v{HA}, v14
    v_add_u32 v{HA}, {HB[typ] + SLOT}, v{HA}
    """)
    if typ == 0: a(f"v_and_b32 v14, 8, v60\nv_lshl_add_u32 v{HA}, v14, 3, v{HA}")
    else:        a(f"v_and_b32 v14, 12, v60\nv_lshl_add_u32 v{HA}, v14, 4, v{HA}")
    for i in range(1, nh): a(f"v_xor_b32 v{HA+i}, {64*i}, v{HA}")
    a(f"s_mov_b32 s40, 0\ns_mov_b32 s42, 1\ns_mov_b32 s45, {SLOT}\ns_barrier")
    stamp(a, 1)
    for r in tile_reads(typ, 0, SET[0]): a(r)
    a(f"{L}_loop:")
    for s in range(4):
        a("s_waitcnt lgkmcnt(0)")
        if s < 3:
            fill = tile_reads(typ, s + 1, SET[(s + 1) % 2])
            if s == 2:
                fill += [f"s_cmp_eq_u32 s42, 2", f"s_cselect_b32 s41, {-2*SLOT}, s45", "s_add_u32 s42, s42, 1", "s_cmp_eq_u32 s42, 3", "s_cselect_b32 s42, 0, s42"]
        else:
            a("s_barrier")
            rd = tile_reads(typ, 0, SET[0])
            up = lambda r: f"v_add_u32 v{r}, s41, v{r}"
            fill = [up(XA), up(QA)] + rd[:3] + [up(HA + i) for i in range(nh)] + rd[3:6] + [up(XA + 1), up(XA + 2), up(XA + 3)] + rd[6:]
            fill += ["s_add_u32 s40, s40, 1", "s_cmp_lt_u32 s40, 10"]
        mfma_step(a, SET[s % 2], fill)
    a(f"s_cbranch_scc1 {L}_loop")
    stamp(a, 2)
    fill = [f"ds_read_b32 v{RSTD}, v{RSTD}"]
    BD = 16
    bdr = {}
    order = [(0,0),(1,0),(0,1),(1,1),(2,2),(0,2),(1,2),(2,3),(1,3),(2,4),(1,4)]
    for n, (T, u) in enumerate(order):
        bdr[(T, u)] = BD + 4*n
        for uu in range(2): fill.append(f"ds_read_b64_tr_b16 {vr(BD+4*n+2*uu,2)}, v{BDA} offset:{(8*u+4*uu)*96 + T*32}")
    a("s_waitcnt lgkmcnt(0)")
    mfma_step(a, SET[0], fill, per=4)
    BF = 112; P = 64
    for i in range(20): a(f"v_cvt_pk_bf16_f32 v{BF+i}, v{ACC+2*i}, v{ACC+2*i+1}")
    a("s_waitcnt lgkmcnt(0)")
    hb = ACC + (80 if typ == 0 else 48)
    npair = 4 if typ == 0 else 8
    va = [f"v_mul_f32 v12, {LOG2E}, v{RSTD}", f"v_mul_f32 v14, v{RSTD}, v{RSTD}"]
    if typ == 0:
        vb = ACC + 40
        for i in range(20):
            va += [f"v_mul_f32 v{vb+2*i}, v{RSTD}, v{vb+2*i}", f"v_mul_f32 v{vb+2*i+1}, v{RSTD}, v{vb+2*i+1}", f"v_cvt_pk_bf16_f32 v{vb+i}, v{vb+2*i}, v{vb+2*i+1}"]
        for i in range(5): va.append(f"ds_write_b128 v2, {vr(vb+4*i,4)} offset:{320+16*i}")
    for m in range(npair):
        b = hb + 8*m
        for i in range(8): va.append(f"v_max_f32 v{b+i}, 0, v{b+i}")
        for i in range(8): va.append(f"v_mul_f32 v{136+i}, v14, v{b+i}")
        for i in range(8): va.append(f"v_mul_f32 v{b+i}, v{136+i}, v{b+i}")
        for i in range(4): va.append(f"v_cvt_pk_bf16_f32 v{b+i}, v{b+2*i}, v{b+2*i+1}")
        va.append(f"buffer_store_dwordx4 {vr(b,4)}, v15, s[16:19], s43 offen offset:{(m>>1)*1024 + (m&1)*512}")
    a(f"""
    s_lshl_b32 s43, s28, 3
    s_lshl_b32 s44, s31, 1
    s_add_u32 s43, s43, s44
    s_mul_i32 s43, s43, {68*1024}
    s_lshl_b32 s44, s29, {11 if typ == 0 else 12}
    s_add_u32 s43, s43, s44
    s_add_u32 s43, s43, {WS_A2 + (32*1024 if typ == 0 else 0)}
    v_and_b32 v15, 16, v60
    v_mul_u32_u24 v15, {68*64}, v15
    v_and_b32 v13, 15, v60
    v_lshl_add_u32 v15, v13, 4, v15
    v_and_b32 v13, 32, v60
    v_lshl_add_u32 v15, v13, 3, v15
    """)
    if typ == 0:
        a(f"""
        v_and_b32 v1, 31, v60
        s_lshl_b32 s44, s31, 5
        v_lshrrev_b32 v13, 5, v60
        v_add_u32 v1, s44, v1
        v_mul_u32_u24 v1, {PV_PITCH}, v1
        v_mul_u32_u24 v13, 80, v13
        v_add_u32 v2, v1, v13
        v_add_u32 v3, v2, v13
        """)
    k = 0
    seen = set()
    for n, (T, u) in enumerate(order):
        d = vr(P + 16*T, 16)
        a(f"v_mfma_f32_32x32x16_bf16 {d}, {vr(bdr[(T,u)],4)}, {vr(BF+4*u,4)}, {d if T in seen else '0'}")
        seen.add(T)
        if n >= 2:
            for _ in range(6):
                if k < len(va): a(va[k]); k += 1
    while k < len(va): a(va[k]); k += 1
    stamp(a, 3)
    if typ == 0:
        softmax(a, P, ACC, list(range(16, 26)), list(range(26, 36)))
        softmax(a, P + 20, ACC + 20, list(range(36, 46)), list(range(46, 56)))
        stamp(a, 4)
        for i in range(10): a(f"ds_write_b128 v3, {vr(16+4*i,4)} offset:{16*i}")
        a("v_mov_b32 v58, 0x3f80\nv_mov_b32 v59, 0\nds_write_b64 v1, v[58:59] offset:480\ns_waitcnt lgkmcnt(0)\ns_branch K1_kv")
    else:
        for hh in range(2):
            o = 16 + 20*hh
            softmax(a, P + 20*hh, ACC + 20*hh, [o+i for i in range(8)] + [o+16, o+17], [o+8+i for i in range(8)] + [o+18, o+19])
        stamp(a, 4)
        a(f"""
        s_lshl_b32 s43, s29, 8
        s_lshl_b32 s44, s28, 2
        s_add_u32 s43, s43, s44
        s_add_u32 s43, s43, s31
        s_mul_i32 s43, s43, 2560
        s_add_u32 s43, s43, {WS_PHIQ}
        s_add_u32 s44, s43, {64*2560}
        v_and_b32 v13, 31, v60
        v_lshrrev_b32 v14, 5, v60
        v_mul_u32_u24 v14, {2*64*2560}, v14
        v_lshl_add_u32 v13, v13, 4, v14
        """)
        for hh in range(2):
            for p in range(5):
                a(f"buffer_store_dwordx4 {vr(16+20*hh+4*p,4)}, v13, s[16:19], s{43+hh} offen offset:{512*p}")
        stamp(a, 5)
        stamp_flush(a, 6, 1)
        a("s_endpgm")

def helper(a, typ):
    L = f"K1_h{typ}"
    nq = 5 if typ == 0 else 3
    nh = 2 if typ == 0 else 4
    a(f"{L}:")
    for j in range(nq):
        a(f"s_mul_i32 s37, s31, {nq*64}\ns_add_u32 s37, s37, {j*64}\nv_add_u32 v2, s37, v60")
        if typ == 0:
            a(f"""
            v_mul_u32_u24 v3, 3277, v2
            v_lshrrev_b32 v3, 16, v3            ; row
            v_mul_u32_u24 v4, 20, v3
            v_sub_u32 v4, v2, v4                ; pos
            v_mul_u32_u24 v5, 52, v4
            v_lshrrev_b32 v5, 8, v5             ; seg
            v_mul_u32_u24 v6, 5, v5
            v_sub_u32 v6, v4, v6                ; w
            v_mul_u32_u24 v3, 3840, v3
            v_lshl_add_u32 v3, v6, 4, v3
            v_and_b32 v6, 1, v5
            v_mul_u32_u24 v6, 1280, v6
            v_lshrrev_b32 v5, 1, v5
            v_mul_u32_u24 v5, 80, v5
            v_add3_u32 v3, v3, v5, v6
            v_add_u32 v{14+j}, s38, v3
            """)
        else:
            a(f"""
            v_mul_u32_u24 v3, 5462, v2
            v_lshrrev_b32 v3, 16, v3            ; row
            v_mul_u32_u24 v4, 12, v3
            v_sub_u32 v4, v2, v4                ; pos
            v_mul_u32_u24 v5, 43, v4
            v_lshrrev_b32 v5, 8, v5             ; seg
            v_sub_u32 v6, v4, v5
            v_mul_u32_u24 v3, 3840, v3
            v_lshl_add_u32 v3, v6, 4, v3
            v_add_u32 v{14+j}, s38, v3
            """)
    for j in range(nh):
        if typ == 0:
            a(f"""
            s_lshl_b32 s37, s31, 4
            s_add_u32 s37, s37, {8*j}
            v_lshrrev_b32 v3, 3, v60
            v_add_u32 v3, s37, v3               ; row
            v_lshrrev_b32 v4, 2, v60
            v_and_b32 v4, 4, v4                 ; ((row>>1)&1)*4
            v_and_b32 v5, 7, v60
            v_xor_b32 v4, v4, v5
            v_mul_u32_u24 v3, 3072, v3
            v_lshl_add_u32 v3, v4, 4, v3
            v_add_u32 v{19+j}, s39, v3
            """)
        else:
            a(f"""
            s_lshl_b32 s37, s31, 4
            s_add_u32 s37, s37, {4*j}
            v_lshrrev_b32 v3, 4, v60
            v_lshlrev_b32 v4, 2, v3             ; (row&3)*4
            v_add_u32 v3, s37, v3               ; row
            v_and_b32 v5, 15, v60
            v_xor_b32 v4, v4, v5
            v_mul_u32_u24 v3, 3072, v3
            v_lshl_add_u32 v3, v4, 4, v3
            v_add_u32 v{19+j}, s39, v3
            """)
    a(f"""
    s_lshl_b32 s45, s31, 12
    s_mul_i32 s46, s31, {nq*1024}
    s_add_u32 s46, s46, {QB}
    s_mul_i32 s47, s31, {nh*1024}
    s_add_u32 s47, s47, {HB[typ]}
    s_mov_b32 s33, {SLOT}
    s_mov_b32 s40, 0
    s_waitcnt lgkmcnt(0)
    """)
    stamp(a, 1)
    a(f"""
    {L}_loop:
    s_lshl_b32 s34, s32, 7
    s_mul_i32 s35, s32, 245760
    s_mul_i32 s36, s32, 196608
    s_add_u32 s37, s33, s45
    s_add_u32 s38, s33, s46
    s_add_u32 s39, s33, s47
    """)
    for j in range(4): a(f"s_add_u32 m0, s37, {1024*j}\ns_nop 0\nbuffer_load_dwordx4 v{10+j}, s[4:7], s34 offen lds")
    for j in range(nq): a(f"s_add_u32 m0, s38, {1024*j}\ns_nop 0\nbuffer_load_dwordx4 v{14+j}, s[8:11], s35 offen lds")
    for j in range(nh): a(f"s_add_u32 m0, s39, {1024*j}\ns_nop 0\nbuffer_load_dwordx4 v{19+j}, s[12:15], s36 offen lds")
    a(f"""
    s_add_u32 s32, s32, 1
    s_cmp_eq_u32 s32, 10
    s_cselect_b32 s32, 0, s32
    s_add_u32 s33, s33, {SLOT}
    s_cmp_eq_u32 s33, {3*SLOT}
    s_cselect_b32 s33, 0, s33
    s_add_u32 s40, s40, 1
    s_cmp_lt_u32 s40, 3
    s_cbranch_scc1 {L}_loop
    s_cmp_eq_u32 s40, 3
    s_cbranch_scc0 {L}_n3
    s_lshl_b32 s37, s29, 2
    s_add_u32 s37, s37, s31
    s_mul_i32 s37, s37, 800
    v_lshlrev_b32 v2, 3, v60
    buffer_load_dwordx2 v[24:25], v2, s[20:23], s37 offen
    buffer_load_dwordx2 v[26:27], v2, s[20:23], s37 offen offset:512
    v_mov_b32 v28, 0
    v_mov_b32 v29, 0
    v_mov_b32 v30, 0
    v_mov_b32 v31, 0
    s_mul_i32 s37, s31, 2880
    s_add_u32 s37, s37, {L_BD}
    v_lshl_add_u32 v2, v60, 4, s37
    ds_write_b128 v2, v[28:31]
    ds_write_b128 v2, v[28:31] offset:1024
    ds_write_b128 v2, v[28:31] offset:1856
    s_waitcnt vmcnt(24) lgkmcnt(0)
    s_barrier
    {L}_n3:
    s_cmp_eq_u32 s40, 10
    s_cbranch_scc1 {L}_tail
    s_waitcnt vmcnt(11)
    s_barrier
    s_branch {L}_loop
    {L}_tail:
    s_and_b32 s37, s31, 1
    s_mul_i32 s37, s37, {20*96 + 40}
    s_lshr_b32 s38, s31, 1
    s_mul_i32 s38, s38, 3840
    s_add_u32 s37, s37, s38
    s_add_u32 s37, s37, {L_BD}
    v_mul_u32_u24 v2, 205, v60
    v_lshrrev_b32 v2, 10, v2
    v_mul_u32_u24 v2, 56, v2                ; d*(96-40)
    v_lshl_add_u32 v2, v60, 3, v2
    v_add_u32 v2, s37, v2
    ds_write_b64 v2, v[24:25]
    v_add_u32 v3, 64, v60
    v_mul_u32_u24 v2, 205, v3
    v_lshrrev_b32 v2, 10, v2
    v_mul_u32_u24 v2, 56, v2
    v_lshl_add_u32 v2, v3, 3, v2
    v_add_u32 v2, s37, v2
    v_cmp_gt_u32 vcc, 36, v60
    s_and_saveexec_b64 s[48:49], vcc
    ds_write_b64 v2, v[26:27]
    s_mov_b64 exec, s[48:49]
    s_cmp_eq_u32 s31, 0
    s_cbranch_scc1 {L}_cols
    s_cmp_eq_u32 s31, 3
    s_cbranch_scc1 {L}_idle
    s_sub_u32 s37, s31, 1
    s_lshl_b32 s37, s37, 6
    v_add_u32 v2, s37, v60
    s_lshl_b32 s38, s28, 10
    v_lshlrev_b32 v3, 3, v2
    buffer_load_dwordx2 v[4:5], v3, s[16:19], s38 offen
    s_waitcnt vmcnt(12)
    s_barrier
    s_waitcnt vmcnt(1)
    s_barrier
    s_mov_b32 s39, 0xffff0000
    v_lshlrev_b32 v6, 7, v2
    v_and_b32 v7, 14, v2
    v_lshl_add_u32 v6, v7, 3, v6
    v_add_u32 v6, {2*SLOT}, v6
    v_xor_b32 v7, 16, v6
    v_lshlrev_b32 v8, 2, v2
    v_add_u32 v8, {L_RSTD}, v8
    s_waitcnt vmcnt(0)
    v_rcp_f32 v9, v5
    v_sub_f32 v4, 0, v4
    v_cvt_pk_bf16_f32 v24, v4, v4
    v_and_b32 v3, s39, v24
    v_sub_f32 v4, v4, v3
    v_cvt_pk_bf16_f32 v25, v4, v9
    v_and_b32 v3, s39, v25
    v_sub_f32 v9, v9, v3
    v_cvt_pk_bf16_f32 v26, v9, v28
    v_mov_b32 v27, 0
    ds_write_b128 v6, v[24:27]
    ds_write_b128 v7, v[28:31]
    ds_write_b32 v8, v5
    s_branch {L}_fin
    {L}_idle:
    s_waitcnt vmcnt(11)
    s_barrier
    s_waitcnt vmcnt(0)
    s_barrier
    s_branch {L}_fin
    {L}_cols:
    """)
    nql = 40 if typ == 0 else 24
    if typ == 0:
        a(f"""
        v_mul_u32_u24 v2, 26, v60
        v_lshrrev_b32 v2, 8, v2             ; seg
        v_mul_u32_u24 v3, 10, v2
        v_sub_u32 v3, v60, v3               ; w
        v_and_b32 v4, 1, v2
        v_mul_u32_u24 v4, 640, v4
        v_lshrrev_b32 v2, 1, v2
        v_mul_u32_u24 v2, 40, v2
        v_lshl_add_u32 v2, v3, 2, v2
        s_mul_i32 s37, s29, 80
        s_add_u32 s37, s37, 640
        v_add3_u32 v2, v2, v4, s37          ; colQ
        s_lshl_b32 s37, s29, 6
        s_add_u32 s37, s37, {1024 - 4*nql}
        """)
    else:
        a(f"""
        v_mul_u32_u24 v2, 22, v60
        v_lshrrev_b32 v2, 8, v2             ; seg
        v_lshlrev_b32 v2, 1, v2
        v_sub_u32 v2, v60, v2               ; 10 seg + w
        s_mul_i32 s37, s29, 80
        v_lshl_add_u32 v2, v2, 2, s37       ; colQ
        s_lshl_b32 s37, s29, 7
        s_sub_u32 s37, s37, {4*nql}
        """)
    a(f"""
    v_lshl_add_u32 v3, v60, 2, s37          ; w1 column
    v_add_u32 v4, 1920, v3
    v_lshlrev_b32 v3, 1, v3
    v_mov_b32 v5, 0x40000000
    v_cmp_gt_u32 vcc, {nql}, v60
    v_mov_b32 v6, {2*SLOT + HB[typ] - 8*nql}
    v_mov_b32 v7, {2*SLOT + QB}
    v_cndmask_b32 v2, v4, v2, vcc
    v_cndmask_b32 v3, v3, v5, vcc
    v_cndmask_b32 v6, v6, v7, vcc
    v_lshl_add_u32 v6, v60, 3, v6           ; A0
    v_mov_b32 v7, {HP[typ]}
    v_mov_b32 v8, {QP[typ]}
    v_cndmask_b32 v7, v7, v8, vcc           ; pitch
    v_mov_b32 v8, 64
    v_cndmask_b32 v8, v8, v28, vcc          ; X
    v_lshlrev_b32 v2, 2, v2
    s_mov_b32 s37, {WS_COLS}
    """)
    for i in range(8): a(f"buffer_load_dwordx4 {vr(64+4*i,4)}, v2, s[16:19], s37 offen\ns_add_u32 s37, s37, {3456*4}")
    a("""
    buffer_load_dwordx2 v[24:25], v3, s[24:27], 0 offen
    s_waitcnt vmcnt(20)
    s_barrier
    s_waitcnt vmcnt(9)
    s_barrier
    s_mov_b32 s39, 0xffff0000
    """)
    for k in range(5):
        xm = ((k >> 1) & 1) if typ == 0 else (k & 3)
        a(f"v_mul_u32_u24 v{40+k}, {xm}, v8\nv_xor_b32 v{40+k}, v{40+k}, v6\nv_mad_u32_u24 v{40+k}, v7, {k}, v{40+k}")
    a("s_waitcnt vmcnt(0)")
    for i in range(1, 8):
        for q in range(4): a(f"v_add_f32 v{64+q}, v{64+q}, v{64+4*i+q}")
    a("""
    v_cvt_pk_bf16_f32 v70, v64, v65
    v_cvt_pk_bf16_f32 v71, v66, v67
    v_lshlrev_b32 v72, 16, v70
    v_and_b32 v73, s39, v70
    v_lshlrev_b32 v74, 16, v71
    v_and_b32 v75, s39, v71
    v_sub_f32 v64, v64, v72
    v_sub_f32 v65, v65, v73
    v_sub_f32 v66, v66, v74
    v_sub_f32 v67, v67, v75
    v_cvt_pk_bf16_f32 v72, v64, v65
    v_cvt_pk_bf16_f32 v73, v66, v67
    v_cmp_gt_u32 vcc, 56, v60
    s_and_saveexec_b64 s[48:49], vcc
    ds_write_b64 v40, v[70:71]
    ds_write_b64 v41, v[72:73]
    ds_write_b64 v42, v[70:71]
    ds_write_b64 v43, v[24:25]
    ds_write_b64 v44, v[24:25]
    s_mov_b64 exec, s[48:49]
    """)
    a(f"{L}_fin:\ns_waitcnt lgkmcnt(0)\ns_barrier")
    if typ == 0: a("s_add_u32 s31, s31, 4\ns_branch K1_kv")
    else: a("s_endpgm")

def gen_k1():
    a = Asm()
    stamp(a, 0)
    srd(a, 4, 0, NB_X); srd(a, 8, 8, NB_WQKV); srd(a, 12, 40, NB_W1); srd(a, 16, 88, WS_END); srd(a, 20, 16, NB_WPHI); srd(a, 24, 48, NB_B1)
    a(f"""
    s_cmp_ge_u32 s2, 256
    s_cbranch_scc1 K1_end
    v_lshrrev_b32 v1, 6, v0
    v_and_b32 v60, 63, v0
    s_and_b32 s33, s2, 7                ; xcd
    v_readfirstlane_b32 s31, v1
    s_lshr_b32 s34, s2, 3               ; idx
    s_and_b32 s28, s33, 1
    s_lshl_b32 s28, s28, 3
    s_and_b32 s35, s34, 7
    s_add_u32 s28, s28, s35             ; rb
    s_lshr_b32 s35, s34, 3              ; jj
    s_lshr_b32 s30, s35, 1              ; type
    s_and_b32 s35, s35, 1
    s_and_b32 s29, s33, 6
    s_add_u32 s29, s29, s35             ; g
    s_mov_b32 s32, s33
    v_lshrrev_b32 v61, 5, v60
    v_bfe_u32 v62, v60, 2, 2
    v_lshl_add_u32 v61, v61, 3, v62     ; 8hf + j
    v_and_b32 v62, 1, v60               ; c&1
    v_bfe_u32 v63, v60, 4, 1
    v_bfe_u32 v2, v60, 1, 1
    v_lshl_add_u32 v63, v63, 1, v2      ; 2gg + (c>>1)
    s_cmp_ge_u32 s31, 4
    s_cbranch_scc1 K1_helper
    v_and_b32 v2, 31, v60
    s_lshl_b32 s33, s31, 5
    v_add_u32 v2, s33, v2
    v_lshrrev_b32 v3, 5, v60
    v_bfe_u32 v4, v2, 1, 3
    v_xor_b32 v3, v3, v4
    v_lshlrev_b32 v3, 4, v3
    v_lshl_add_u32 v{XA}, v2, 7, v3
    v_lshlrev_b32 v{RSTD}, 2, v2
    v_add_u32 v{RSTD}, {L_RSTD}, v{RSTD}
    v_add_u32 v{XA}, {SLOT}, v{XA}
    v_xor_b32 v{XA+1}, 32, v{XA}
    v_xor_b32 v{XA+2}, 64, v{XA}
    v_xor_b32 v{XA+3}, 96, v{XA}
    v_lshrrev_b32 v12, 5, v60
    v_cmp_eq_u32 vcc, v12, v62
    v_bfe_u32 v13, v60, 2, 2
    v_mul_u32_u24 v13, 96, v13
    v_cndmask_b32 v12, 2, v12, vcc
    v_mul_u32_u24 v12, 3840, v12
    v_lshl_add_u32 v13, v63, 3, v13
    v_add_u32 v{BDA}, v12, v13
    v_add_u32 v{BDA}, {L_BD}, v{BDA}
    """)
    for i in range(112): a(f"v_mov_b32 v{ACC+i}, 0")
    a("s_waitcnt lgkmcnt(0)\ns_cmp_eq_u32 s30, 1\ns_cbranch_scc1 K1_c1")
    compute(a, 0)
    compute(a, 1)
    a(f"""
    K1_helper:
    s_sub_u32 s31, s31, 4
    s_lshl_b32 s37, s28, 7
    s_lshl_b32 s38, s31, 5
    s_add_u32 s37, s37, s38
    v_lshrrev_b32 v2, 3, v60
    v_add_u32 v2, s37, v2
    v_mul_u32_u24 v2, 1280, v2
    v_lshrrev_b32 v3, 4, v60
    v_and_b32 v4, 7, v60
    v_xor_b32 v3, v3, v4
    v_lshl_add_u32 v10, v3, 4, v2
    v_xor_b32 v3, 4, v3
    v_lshl_add_u32 v11, v3, 4, v2
    v_add_u32 v11, {8*1280}, v11
    v_add_u32 v12, {16*1280}, v10
    v_add_u32 v13, {16*1280}, v11
    s_mul_i32 s38, s29, 160
    s_cmp_eq_u32 s30, 1
    s_cbranch_scc1 K1_hb
    s_add_u32 s38, s38, 1280
    s_lshl_b32 s39, s29, 7
    s_add_u32 s39, s39, 2048
    """)
    helper(a, 0)
    a("K1_hb:\ns_lshl_b32 s39, s29, 8")
    helper(a, 1)
    a(f"""
    K1_kv:
    s_lshr_b32 s33, s31, 1              ; head4
    s_and_b32 s34, s31, 1               ; sign
    v_mul_u32_u24 v2, {PV_PITCH}, v61
    v_bfe_u32 v3, v60, 1, 1
    v_lshl_add_u32 v3, v62, 1, v3
    v_and_b32 v4, 16, v60
    v_cmp_eq_u32 vcc, 0, v4
    s_mul_i32 s35, s33, 80
    s_mul_i32 s36, s34, 40
    v_cndmask_b32 v3, 4, v3, vcc
    s_add_u32 s35, s35, s36
    v_lshl_add_u32 v5, v3, 3, v2
    v_add_u32 v5, s35, v5               ; A address
    s_and_b32 s36, s33, 1
    v_add_u32 v3, s36, v3
    v_cmp_eq_u32 vcc, 5, v3
    s_mul_i32 s35, s33, 40
    s_add_u32 s35, s35, 320
    v_cndmask_b32 v3, v3, 0, vcc
    v_lshl_add_u32 v3, v3, 3, s35
    v_and_b32 v4, 19, v60
    v_cmp_lt_u32 vcc, 16, v4
    v_mov_b32 v6, 480
    s_nop 0
    v_cndmask_b32 v3, v3, v6, vcc
    v_add_u32 v6, v3, v2                ; B address
    s_barrier
    """)
    stamp(a, 5)
    for st in range(8):
        for u in range(2):
            off = u*4*PV_PITCH + st*16*PV_PITCH
            a(f"ds_read_b64_tr_b16 {vr(64+8*st+2*u,2)}, v5 offset:{off}\nds_read_b64_tr_b16 {vr(68+8*st+2*u,2)}, v6 offset:{off}")
    a(f"""
    s_lshl_b32 s35, s29, 3
    s_add_u32 s35, s35, s31             ; head*2+sign
    s_lshl_b32 s35, s35, 4
    s_add_u32 s35, s35, s28
    s_mul_i32 s35, s35, 1680
    s_add_u32 s35, s35, {WS_KVP}
    v_and_b32 v2, 31, v60
    v_lshrrev_b32 v3, 5, v60
    v_mul_u32_u24 v3, 336, v3
    v_lshl_add_u32 v3, v2, 4, v3
    """)
    for st in range(8):
        a(f"s_waitcnt lgkmcnt({min(15, 28-4*st)})")
        a(f"v_mfma_f32_32x32x16_bf16 v[128:143], {vr(64+8*st,4)}, {vr(68+8*st,4)}, {'0' if st == 0 else 'v[128:143]'}")
    a("""
    v_cmp_gt_u32 vcc, 21, v2
    s_and_saveexec_b64 s[48:49], vcc
    s_nop 7
    s_nop 7
    buffer_store_dwordx4 v[128:131], v3, s[16:19], s35 offen
    buffer_store_dwordx4 v[132:135], v3, s[16:19], s35 offen offset:672
    v_cmp_gt_u32 vcc, 21, v60
    s_and_b64 exec, exec, vcc
    s_nop 1
    buffer_store_dwordx4 v[136:139], v3, s[16:19], s35 offen offset:1344
    """)
    stamp_flush(a, 6, 1)
    a("K1_end:\ns_endpgm")
    return a.text()
```

```python
from asmlib import *
from layout import *
from k0 import srd

def gen_ko():
    a = Asm()
    stamp(a, 0)
    srd(a, 16, 88, WS_END)
    a(f"""
    s_cmp_ge_u32 s2, 256
    s_cbranch_scc1 KO_end
    v_lshrrev_b32 v1, 6, v0
    v_and_b32 v60, 63, v0
    s_lshr_b32 s28, s2, 3               ; head
    v_readfirstlane_b32 s31, v1
    s_and_b32 s29, s2, 7
    v_cmp_le_u32 vcc, 105, v0
    v_mov_b32 v2, {16*1680 - 105*16}
    v_lshlrev_b32 v3, 4, v0
    v_cndmask_b32 v2, 0, v2, vcc
    v_add_u32 v2, v2, v3
    s_mul_i32 s33, s28, {32*1680}
    s_add_u32 s33, s33, {WS_KVP}
    s_lshl_b32 s34, s28, 6
    s_lshl_b32 s35, s29, 3
    s_add_u32 s34, s34, s35
    s_lshl_b32 s35, s31, 1
    s_add_u32 s34, s34, s35
    s_mul_i32 s34, s34, 2560
    s_add_u32 s34, s34, {WS_PHIQ}
    s_add_u32 s35, s34, 2560
    v_lshlrev_b32 v4, 4, v60
    v_and_b32 v5, 31, v60
    v_lshlrev_b32 v5, 4, v5
    s_waitcnt lgkmcnt(0)
    """)
    for i in range(16): a(f"buffer_load_dwordx4 {vr(64+4*i,4)}, v2, s[16:19], s33 offen\ns_add_u32 s33, s33, 1680")
    for t in range(2):
        a(f"buffer_load_dwordx4 {vr(128+12*t,4)}, v4, s[16:19], s{34+t} offen")
        a(f"buffer_load_dwordx4 {vr(132+12*t,4)}, v4, s[16:19], s{34+t} offen offset:1024")
        a(f"buffer_load_dwordx4 {vr(136+12*t,4)}, v5, s[16:19], s{34+t} offen offset:2048")
    a(f"""
    v_and_b32 v6, 31, v60
    v_min_u32 v6, 20, v6
    v_lshrrev_b32 v7, 5, v60
    v_mul_u32_u24 v8, {21*8}, v7
    v_lshlrev_b32 v6, 3, v6
    v_add_u32 v8, v8, v6
    v_lshlrev_b32 v9, 3, v0
    s_mul_i32 s36, s28, 20
    s_add_u32 s36, s36, 1536
    s_and_b32 s37, s28, 1
    s_lshl_b32 s38, s37, 2
    s_add_u32 s38, s38, s36
    s_xor_b32 s37, s37, 1
    s_lshl_b32 s37, s37, 4
    s_add_u32 s37, s37, s36
    v_lshl_add_u32 v10, v7, 3, s38      ; k0
    v_lshrrev_b32 v11, 5, v10
    v_lshlrev_b32 v11, 10, v11
    v_bfe_u32 v10, v10, 3, 2
    v_lshl_add_u32 v11, v10, 8, v11
    v_and_b32 v10, 15, v60
    v_lshlrev_b32 v10, 4, v10
    v_and_b32 v12, 16, v60
    v_mul_u32_u24 v12, {68*64}, v12
    v_add_u32 v10, v10, v12
    v_add_u32 v11, v11, v10
    s_lshr_b32 s39, s37, 5
    s_lshl_b32 s39, s39, 10
    s_bfe_u32 s40, s37, 0x20003
    s_lshl_b32 s40, s40, 8
    s_add_u32 s39, s39, s40
    s_and_b32 s40, s37, 7
    s_lshl_b32 s40, s40, 1
    s_add_u32 s39, s39, s40
    v_add_u32 v10, s39, v10
    s_lshl_b32 s41, s29, 4
    s_lshl_b32 s42, s31, 2
    s_add_u32 s41, s41, s42
    s_mul_i32 s41, s41, {68*1024}
    s_add_u32 s41, s41, {WS_A2}
    s_add_u32 s42, s41, {2*68*1024}
    """)
    for i in range(1, 16):
        a(f"s_waitcnt vmcnt({21-i})")
        a(f"v_pk_add_f32 v[64:65], v[64:65], {vr(64+4*i,2)}\nv_pk_add_f32 v[66:67], v[66:67], {vr(66+4*i,2)}")
    a(f"""
    v_cvt_pk_bf16_f32 v64, v64, v65
    v_cvt_pk_bf16_f32 v65, v66, v67
    ds_write_b64 v9, v[64:65]
    s_waitcnt lgkmcnt(0)
    s_barrier
    ds_read_b64 v[70:71], v8
    ds_read_b64 v[72:73], v8 offset:{2*168}
    ds_read_b64 v[74:75], v8 offset:{840}
    ds_read_b64 v[76:77], v8 offset:{840+2*168}
    ds_read_b64 v[78:79], v6 offset:{4*168}
    ds_read_b64 v[80:81], v6 offset:{840+4*168}
    v_cmp_gt_u32 vcc, 32, v60
    s_waitcnt vmcnt(0) lgkmcnt(0)
    s_nop 0
    v_cndmask_b32 v78, 0, v78, vcc
    v_cndmask_b32 v79, 0, v79, vcc
    v_cndmask_b32 v80, 0, v80, vcc
    v_cndmask_b32 v81, 0, v81, vcc
    s_nop 1
    """)
    for s in range(3):
        for t in range(2):
            d = vr(160 + 16*t, 16)
            a(f"v_mfma_f32_32x32x16_bf16 {d}, {vr(70+4*s,4)}, {vr(128+12*t+4*s,4)}, {'0' if s == 0 else d}")
    a("s_nop 7\ns_nop 4")
    for t in range(2):
        d = 160 + 16*t
        a(f"v_add_f32 v{d+12}, 0x358637bd, v{d+12}\nv_rcp_f32 v{d+12}, v{d+12}\ns_nop 0")
        for i in range(0, 12, 2): a(f"v_pk_mul_f32 {vr(d+i,2)}, {vr(d+i,2)}, {vr(d+12,2)} op_sel_hi:[1,0]")
        for i in range(6): a(f"v_cvt_pk_bf16_f32 v{d+i}, v{d+2*i}, v{d+2*i+1}")
        a(f"buffer_store_dwordx4 {vr(d,4)}, v11, s[16:19], s{41+t} offen")
    a("s_mov_b64 exec, vcc")
    for t in range(2): a(f"buffer_store_dwordx2 {vr(164+16*t,2)}, v10, s[16:19], s{41+t} offen")
    stamp_flush(a, 1, 2)
    a("KO_end:\ns_endpgm")
    return a.text()

K2_LDS = 8 * 16384
def gen_k2(PF=16):
    a = Asm()
    stamp(a, 0)
    srd(a, 4, 0, NB_X); srd(a, 8, 56, NB_W2); srd(a, 12, 24, NB_WO); srd(a, 16, 88, WS_END); srd(a, 20, 72, NB_X); srd(a, 24, 64, NB_B2)
    a(f"""
    s_and_b32 s33, s2, 7                ; xcd
    s_lshr_b32 s34, s2, 3               ; idx
    s_lshr_b32 s35, s33, 1
    s_lshl_b32 s35, s35, 5
    s_add_u32 s35, s35, s34             ; L
    s_cmp_ge_u32 s2, 256
    s_cbranch_scc1 K2_end
    s_cmp_ge_u32 s35, 125
    s_cbranch_scc1 K2_end
    v_lshrrev_b32 v1, 6, v0
    v_and_b32 v60, 63, v0
    s_mul_i32 s28, s35, 205
    v_readfirstlane_b32 s31, v1
    s_lshr_b32 s28, s28, 10             ; rg
    s_mul_i32 s29, s28, 5
    s_sub_u32 s29, s35, s29
    s_and_b32 s33, s33, 1
    s_mul_i32 s33, s33, 5
    s_add_u32 s29, s29, s33             ; cg
    s_cmp_ge_u32 s31, 6
    s_cbranch_scc1 K2_helper
    s_mul_i32 s30, s28, 5
    s_min_u32 s33, s28, 3
    s_add_u32 s30, s30, s33
    s_cmp_lt_u32 s28, 3
    s_cselect_b32 s33, 6, 5
    s_cmp_ge_u32 s31, s33
    s_cbranch_scc1 K2_idle
    s_add_u32 s30, s30, s31             ; tile
    s_mul_i32 s32, s30, {68*1024}
    s_add_u32 s32, s32, {WS_A2}
    v_lshlrev_b32 v2, 4, v60
    s_waitcnt lgkmcnt(0)
    """)
    AF = 64
    def ld(st):
        s = f"buffer_load_dwordx4 {vr(AF+4*(st%PF),4)}, v2, s[16:19], s32 offen offset:{(st%4)*1024}"
        if st % 4 == 3: s += "\ns_add_u32 s32, s32, 4096"
        return s
    for st in range(PF): a(ld(st))
    a(f"""
    v_and_b32 v3, 15, v60
    s_lshl_b32 s33, s30, 4
    v_add_u32 v3, s33, v3
    v_mul_u32_u24 v3, 1280, v3
    v_lshrrev_b32 v4, 4, v60
    v_lshlrev_b32 v4, 3, v4
    s_lshl_b32 s34, s29, 7
    v_add_u32 v3, v3, v4
    v_bfe_u32 v5, v60, 2, 2
    v_lshrrev_b32 v6, 4, v60
    v_lshl_add_u32 v5, v6, 3, v5        ; 8kb + j
    v_lshlrev_b32 v5, 7, v5
    v_and_b32 v6, 3, v60
    v_lshl_add_u32 v5, v6, 3, v5
    v_bfe_u32 v6, v60, 3, 2             ; (j>>1) | (kb&1)<<1
    v_lshl_add_u32 v8, v6, 5, v5
    v_xor_b32 v9, 32, v8
    v_xor_b32 v10, 64, v8
    v_xor_b32 v11, 96, v8
    v_add_u32 v12, 0x10000, v8
    v_add_u32 v13, 0x10000, v9
    v_add_u32 v14, 0x10000, v10
    v_add_u32 v15, 0x10000, v11
    """)
    WF = (16, 32)
    ACC = 48
    XE = AF + 4*PF
    def rd(st):
        c = st // 4; slot = c % 8
        r = []
        for nt in range(4):
            for u in range(2):
                r.append(f"ds_read_b64_tr_b16 {vr(WF[st%2]+4*nt+2*u,2)}, v{8+nt+4*(slot//4)} offset:{(slot%4)*16384 + (st%4)*4096 + u*512}")
        return r
    a("s_barrier")
    stamp(a, 1)
    for r in rd(0): a(r)
    for st in range(68):
        later = min(67, st + PF - 1) - st + (8 if st >= 68 - PF + 1 else 0)
        a(f"s_waitcnt vmcnt({later}) lgkmcnt(0)")
        if st % 4 == 3 and st < 67: a("s_barrier")
        if st in (1, 16, 32, 48): stamp(a, {1: 2, 16: 3, 32: 4, 48: 5}[st])
        fill = rd(st + 1) if st < 67 else []
        for nt in range(4):
            d = vr(ACC + 4*nt, 4)
            a(f"v_mfma_f32_16x16x32_bf16 {d}, {vr(WF[st%2]+4*nt,4)}, {vr(AF+4*(st%PF),4)}, {'0' if st == 0 else d}")
            for r in fill[2*nt:2*nt+2]: a(r)
        if st + PF < 68: a(ld(st + PF))
        if st + PF == 68:
            for nt in range(4): a(f"buffer_load_dwordx2 {vr(XE+2*nt,2)}, v3, s[4:7], s34 offen offset:{32*nt}")
            for nt in range(4): a(f"buffer_load_dwordx2 {vr(XE+8+2*nt,2)}, v4, s[24:27], s34 offen offset:{32*nt}")
    stamp(a, 6)
    a("s_mov_b32 s39, 0xffff0000\ns_waitcnt vmcnt(0)")
    for nt in range(4):
        for q in range(2):
            x = XE + 2*nt + q; b = x + 8; t = 16 + 4*q
            a(f"v_lshlrev_b32 v{t}, 16, v{x}\nv_and_b32 v{t+1}, s39, v{x}\nv_lshlrev_b32 v{t+2}, 16, v{b}\nv_and_b32 v{t+3}, s39, v{b}")
            a(f"v_pk_add_f32 {vr(t,2)}, {vr(t,2)}, {vr(t+2,2)}")
        for q in range(2):
            t = 16 + 4*q; d = ACC + 4*nt + 2*q
            a(f"v_pk_add_f32 {vr(t,2)}, {vr(t,2)}, {vr(d,2)}\nv_cvt_pk_bf16_f32 v{24+2*nt+q}, v{t}, v{t+1}")
        a(f"buffer_store_dwordx2 {vr(24+2*nt,2)}, v3, s[20:23], s34 offen offset:{32*nt}")
    stamp_flush(a, 7, 3)
    a("s_endpgm\nK2_idle:")
    for i in range(17): a("s_barrier")
    a(f"""
    s_endpgm
    K2_helper:
    s_sub_u32 s31, s31, 6
    v_lshrrev_b32 v2, 3, v60
    v_mul_u32_u24 v2, 1280, v2
    v_bfe_u32 v3, v60, 4, 1
    s_lshl_b32 s33, s31, 1
    v_add_u32 v3, s33, v3               ; sw
    v_lshlrev_b32 v3, 1, v3
    v_and_b32 v4, 7, v60
    v_xor_b32 v3, v3, v4
    v_lshl_add_u32 v2, v3, 4, v2
    s_lshl_b32 s34, s29, 7
    s_mul_i32 s35, s31, 10240
    s_add_u32 s36, s34, s35
    s_mov_b32 s34, s36
    s_lshl_b32 s35, s31, 10
    s_waitcnt lgkmcnt(0)
    """)
    def chunk(c):
        if c == 12: a("s_mov_b32 s34, s36")
        for i in range(8):
            a(f"s_add_u32 m0, s35, {(c%8)*16384 + i*2048}\ns_nop 0\nbuffer_load_dwordx4 v2, {'s[8:11]' if c < 12 else 's[12:15]'}, s34 offen lds\ns_add_u32 s34, s34, 20480")
    for c in range(7): chunk(c)
    a("s_waitcnt vmcnt(48)\ns_barrier")
    for c in range(16):
        a(f"s_waitcnt vmcnt({8*(min(16, c+6) - (c+1))})\ns_barrier")
        if c + 7 < 17: chunk(c + 7)
    a("K2_end:\ns_endpgm")
    return a.text()
```

```python
S, D, H, DH, F = 2048, 640, 32, 20, 1536
WS_ROWST = 0
WS_COLS  = 0x8000
WS_KVP   = 0x40000
WS_PHIQ  = 0x200000
WS_A2    = 0x800000
WS_END   = 0x2000000
NB_X, NB_WQKV, NB_WPHI, NB_WO, NB_W1, NB_B1, NB_W2, NB_B2 = 2621440, 2457600, 25600, 819200, 1966080, 3072, 1966080, 1280
SLOT = 45056
L_BD   = 3 * SLOT
L_RSTD = L_BD + 3 * 3840
K1_LDS = L_RSTD + 512
PV_PITCH = 560
QB = 16384
HB = {0: 36864, 1: 28672}
QP = {0: 320, 1: 192}
HP = {0: 128, 1: 256}
```

```python
import sys
sys.path.insert(0, "gen")
import asmlib
if "--stamps" in sys.argv: asmlib.STAMPS = True; sys.argv.remove("--stamps")
from asmlib import *
from layout import *
from k0 import gen_k0
from k1 import gen_k1
from k2 import gen_ko, gen_k2, K2_LDS
def build():
    ks = [("k0_kernel", gen_k0(), 80, 102, 80), ("k1_kernel", gen_k1(), 256, 102, 256), ("ko_kernel", gen_ko(), 192, 102, 192), (NAME + "_kernel", gen_k2(), 144, 102, 144)]
    for k in ks:
        for e in check_hazards(k[1]): print(k[0], e)
    ll = ["; @launch kernel=k0_kernel grid=(256,1,1) block=(256,1,1) lds=0",
          f"; @launch kernel=k1_kernel grid=(256,1,1) block=(512,1,1) lds={K1_LDS}",
          "; @launch kernel=ko_kernel grid=(256,1,1) block=(256,1,1) lds=2048",
          f"; @launch kernel={NAME}_kernel grid=(256,1,1) block=(512,1,1) lds={K2_LDS}"]
    return file_text(ll, ks)
if __name__ == "__main__":
    out = sys.argv[1] if len(sys.argv) > 1 else f"cdna_kernels/{NAME}.s"
    open(out, "w").write(build())
```

```python
import sys
sys.path.insert(0, "gen")
from asmlib import *
from layout import *
from k0 import gen_k0
from k1 import gen_k1
from k2 import gen_ko, gen_k2, K2_LDS
ks = {"k0": ("k0_kernel", gen_k0(), 80, 96, 80), "k1": ("k1_kernel", gen_k1(), 256, 96, 256), "ko": ("ko_kernel", gen_ko(), 192, 96, 192), "k2": (NAME + "_kernel", gen_k2(), 144, 96, 144)}
cfg = {"k0": (256, 0), "k1": (512, K1_LDS), "ko": (256, 2048), "k2": (512, K2_LDS)}
def mk(seq, fn):
    kl = {}; ll = []
    for s in seq:
        base = s.rstrip("'")
        k = ks[base]
        if s.endswith("'"):
            k = ("d" + base + "_kernel", k[1].replace("K0_", "D0_").replace("K1_", "D1_").replace("K2_", "D2_").replace("KO_", "DO_")) + k[2:]
        kl[k[0]] = k
        ll.append(f"; @launch kernel={k[0]} grid=(256,1,1) block=({cfg[base][0]},1,1) lds={cfg[base][1]}")
    open(fn, "w").write(file_text(ll, list(kl.values())))
mk(["k0", "k1'", "k1", "ko", "k2"], "d_k1.s")
mk(["k0", "k1", "ko", "k2'", "k2"], "d_k2.s")
mk(["k0'", "k0", "k1", "ko", "k2"], "d_k0.s")
mk(["k0", "k1", "ko'", "ko", "k2"], "d_ko.s")
mk(["k0", "k1", "ko", "ko", "k2"], "d_ko2.s")
mk(["k0'", "k1'", "ko'", "k2'", "k0", "k1", "ko", "k2"], "d_all.s")
```

```python
NAME = "parallel_sum__linear_kernel_hedgehog__dense_activation_squared_relu__prompt"
class Asm:
    def __init__(self):
        self.lines = []
        self.nlabel = 0
    def __call__(self, s):
        for l in s.split("\n"):
            l = l.strip()
            if l: self.lines.append(("" if l.endswith(":") else "    ") + l)
    def label(self, base="L"):
        self.nlabel += 1
        return f"{base}_{self.nlabel}"
    def text(self):
        return "\n".join(self.lines) + "\n"
STAMPS = False
SB = 80
WS_DBG = 0x1800000
def stamp(a, i):
    if STAMPS: a(f"s_memrealtime s[{SB+2*i}:{SB+1+2*i}]")
def stamp_flush(a, n, kidx, wave="s31", srd="s[16:19]"):
    if not STAMPS: return
    a(f"s_mov_b64 exec, -1\ns_waitcnt vmcnt(0) lgkmcnt(0)\ns_memrealtime s[{SB+2*n}:{SB+1+2*n}]\ns_lshl_b32 s59, s2, 3\ns_add_u32 s59, s59, {wave}\ns_lshl_b32 s59, s59, 6\ns_add_u32 s59, s59, {WS_DBG + kidx*0x20000}\ns_waitcnt lgkmcnt(0)\nv_mov_b32 v0, 0")
    for i in range(n + 1): a(f"v_mov_b32 v1, s{SB+2*i}\nbuffer_store_dword v1, v0, {srd}, s59 offen offset:{4*i}")
def vr(a, n=1, p="v"):
    return f"{p}{a}" if n == 1 else f"{p}[{a}:{a+n-1}]"
def sr(a, n=1):
    return vr(a, n, "s")
def kernel_begin(name):
    return f""".text
.globl {name}
.p2align 8
.type {name},@function
{name}:
"""
def kernel_desc(name, vgpr, sgpr, accum=None):
    if accum is None: accum = (vgpr + 3) // 4 * 4
    return f""".p2align 6
.amdhsa_kernel {name}
  .amdhsa_next_free_vgpr {vgpr}
  .amdhsa_next_free_sgpr {sgpr}
  .amdhsa_accum_offset {accum}
  .amdhsa_group_segment_fixed_size 0
  .amdhsa_kernarg_size 96
  .amdhsa_user_sgpr_count 2
  .amdhsa_user_sgpr_kernarg_segment_ptr 1
  .amdhsa_system_sgpr_workgroup_id_x 1
  .amdhsa_float_denorm_mode_32 3
  .amdhsa_float_denorm_mode_16_64 3
.end_amdhsa_kernel
"""
def file_text(launch_lines, kernels):
    s = "".join(l + "\n" for l in launch_lines)
    s += '.amdgcn_target "amdgcn-amd-amdhsa--gfx950"\n'
    for k in kernels:
        s += kernel_begin(k[0]) + k[1]
    s += '.section .rodata,"a"\n'
    for k in kernels:
        s += kernel_desc(k[0], k[2], k[3], k[4])
    return s

import re
def _regs(op):
    op = op.strip()
    m = re.fullmatch(r"([vsa])\[(\d+):(\d+)\]", op)
    if m: return {(m.group(1), i) for i in range(int(m.group(2)), int(m.group(3)) + 1)}
    m = re.fullmatch(r"-?\|?([vsa])(\d+)\|?", op)
    if m: return {(m.group(1), int(m.group(2)))}
    if op in ("vcc", "m0", "exec"): return {(op, 0)}
    return set()
TRANS = ("v_exp_f32", "v_log_f32", "v_rcp_f32", "v_rsq_f32", "v_sqrt_f32")
def check_hazards(text):
    ins = []
    for ln, l in enumerate(text.split("\n")):
        l = l.split(";")[0].strip()
        if not l or l.endswith(":") or l.startswith("."): continue
        parts = l.split(None, 1)
        op = parts[0]
        rest = parts[1] if len(parts) > 1 else ""
        ops = [o.strip() for o in rest.split(",")]
        ops = [o.split()[0] if o else o for o in ops]
        dst, src = set(), set()
        if op.startswith("v_") or op.startswith("s_"):
            if op.startswith(("s_cmp", "s_waitcnt", "s_nop", "s_barrier", "s_cbranch", "s_branch", "s_endpgm", "s_setprio", "s_sleep")): src = set().union(*[_regs(o) for o in ops]) if ops else set()
            else:
                dst = _regs(ops[0]); src = set().union(set(), *[_regs(o) for o in ops[1:]])
                if "fmac" in op or "permlane" in op or "dot2c" in op: src |= dst
                if "permlane" in op and "swap" in op: dst |= _regs(ops[1])
        elif op.startswith(("ds_write", "buffer_store", "global_store", "buffer_atomic", "global_atomic")) or " lds" in l:
            src = set().union(*[_regs(o) for o in ops])
            if " lds" in l: src |= {("m0", 0)}
        else:
            dst = _regs(ops[0]); src = set().union(set(), *[_regs(o) for o in ops[1:]])
        ws = int(ops[0]) + 1 if op == "s_nop" else 1
        ins.append((ln + 1, l, op, dst, src, ws, ops))
    errs = []
    for i, (ln, l, op, dst, src, ws, ops) in enumerate(ins):
        valu = op.startswith("v_") and not op.startswith("v_mfma")
        mfma = op.startswith("v_mfma")
        mem = op.startswith(("buffer_", "global_", "ds_"))
        vmem = op.startswith(("buffer_", "global_"))
        dist = 0
        for j in range(i - 1, max(-1, i - 24), -1):
            _, pl, pop, pdst, psrc, pws, pops = ins[j]
            if pop in ("s_endpgm", "s_branch"): break
            pvalu = pop.startswith("v_") and not pop.startswith("v_mfma")
            need = 0
            hit = pdst & src
            if pvalu and hit:
                sg = {r for r in hit if r[0] in ("s", "vcc")}
                vg = {r for r in hit if r[0] == "v"}
                if sg and valu: need = max(need, 2)
                if sg and vmem: need = max(need, 5)
                if vg and ("dpp" in op or "permlane" in op): need = max(need, 2)
                if vg and op.startswith(("v_readfirstlane", "v_readlane")): need = max(need, 1)
                if vg and mfma: need = max(need, 2)
                if vg and pop in TRANS and (valu and op not in TRANS or mfma or mem): need = max(need, 1)
            if pop.startswith("v_mfma"):
                big = "32x32" in pop
                if (pdst & (src | dst)) and (valu or mem): need = max(need, 12 if big else 8)
                if mfma and (pdst & (_regs(ops[1]) | _regs(ops[2]))): need = max(need, 12 if big else 8)
                if valu and (_regs(pops[3]) & dst): need = max(need, 7 if big else 3)
            if pop.startswith(("buffer_store_dwordx4", "buffer_store_dwordx3", "global_store_dwordx4")) and valu and (_regs(pops[0]) & dst): need = max(need, 2)
            if pop.startswith("s_") and ("m0", 0) in pdst and ("m0", 0) in src and mem: need = max(need, 1)
            if need > dist: errs.append(f"line {ln}: '{l}' needs {need} states after '{pl}' (has {dist})")
            dist += pws * (8 if pop.startswith("v_mfma") and False else 1)
    return errs
```

```python
from asmlib import *
from layout import *
def srd(a, r, off, nbytes):
    a(f"s_load_dwordx2 {sr(r,2)}, s[0:1], {off}\ns_mov_b32 s{r+2}, {nbytes}\ns_mov_b32 s{r+3}, 0x20000")
def dpp_add(a, d, s, ror):
    a(f"s_nop 1\nv_add_f32_dpp v{d}, v{s}, v{s} row_ror:{ror} row_mask:0xf bank_mask:0xf")
def gen_k0():
    a = Asm()
    stamp(a, 0)
    srd(a, 4, 0, NB_X); srd(a, 8, 8, NB_WQKV); srd(a, 12, 40, NB_W1); srd(a, 16, 88, WS_END)
    a("""
    s_cmp_ge_u32 s2, 256
    s_cbranch_scc1 K0_end
    v_lshrrev_b32 v1, 6, v0
    v_and_b32 v2, 63, v0
    s_nop 0
    v_readfirstlane_b32 s3, v1
    s_mov_b32 s31, 0xffff0000
    s_cmp_ge_u32 s3, 2
    s_cbranch_scc1 K0_cols
    s_lshl_b32 s20, s2, 3
    s_lshl_b32 s21, s3, 2
    s_add_u32 s20, s20, s21
    v_lshrrev_b32 v3, 4, v2
    v_add_u32 v3, s20, v3
    v_and_b32 v4, 15, v2
    v_mul_u32_u24 v5, 1280, v3
    v_lshl_add_u32 v5, v4, 4, v5
    s_waitcnt lgkmcnt(0)
    """)
    for i in range(5): a(f"buffer_load_dwordx4 {vr(10+4*i,4)}, v5, s[4:7], 0 offen offset:{256*i}")
    for i in range(5):
        a(f"s_waitcnt vmcnt({4-i})")
        for q in range(4):
            r = 10 + 4*i + q
            a(f"v_lshlrev_b32 v{40+2*(4*i+q)}, 16, v{r}\nv_and_b32 v{41+2*(4*i+q)}, s31, v{r}")
    a("v_pk_add_f32 v[6:7], v[40:41], v[42:43]\nv_pk_add_f32 v[8:9], v[44:45], v[46:47]")
    for i in range(4, 20, 2):
        a(f"v_pk_add_f32 v[6:7], v[6:7], {vr(40+2*i,2)}\nv_pk_add_f32 v[8:9], v[8:9], {vr(42+2*i,2)}")
    a("v_pk_add_f32 v[6:7], v[6:7], v[8:9]\nv_add_f32 v6, v6, v7")
    for ror in (8, 4, 2, 1): dpp_add(a, 6, 6, ror)
    a(f"v_mul_f32 v6, {1.0/640!r}, v6".replace(repr(1.0/640), "0x3acccccd"))
    a("v_sub_f32 v30, 0, v6\nv_mov_b32 v31, v30")
    for i in range(20): a(f"v_pk_add_f32 {vr(40+2*i,2)}, {vr(40+2*i,2)}, v[30:31]")
    a("v_pk_mul_f32 v[8:9], v[40:41], v[40:41]\nv_pk_mul_f32 v[32:33], v[42:43], v[42:43]")
    for i in range(2, 20, 2):
        a(f"v_pk_fma_f32 v[8:9], {vr(40+2*i,2)}, {vr(40+2*i,2)}, v[8:9]\nv_pk_fma_f32 v[32:33], {vr(42+2*i,2)}, {vr(42+2*i,2)}, v[32:33]")
    a("v_pk_add_f32 v[8:9], v[8:9], v[32:33]\nv_add_f32 v7, v8, v9")
    for ror in (8, 4, 2, 1): dpp_add(a, 7, 7, ror)
    a("""
    v_mov_b32 v8, 0x3727c5ac
    v_fmac_f32 v8, 0x3acccccd, v7
    v_rsq_f32 v7, v8
    v_lshlrev_b32 v3, 3, v3
    v_cmp_eq_u32 vcc, 0, v4
    s_and_saveexec_b64 s[22:23], vcc
    s_nop 1
    buffer_store_dwordx2 v[6:7], v3, s[16:19], 0 offen
    """)
    stamp_flush(a, 1, 0, wave="s3")
    a("""
    s_endpgm
    K0_cols:
    s_cmp_ge_u32 s2, 216
    s_cbranch_scc1 K0_end
    s_lshr_b32 s20, s2, 2            ; line
    s_and_b32 s21, s2, 3             ; quarter
    s_lshl_b32 s21, s21, 1
    s_add_u32 s21, s21, s3
    s_sub_u32 s21, s21, 2            ; part 0..7
    s_mul_i32 s22, s21, 80           ; row0
    v_lshrrev_b32 v3, 3, v2
    v_add_u32 v3, s22, v3
    v_and_b32 v4, 7, v2
    v_lshlrev_b32 v4, 4, v4
    v_and_b32 v6, 15, v2
    v_and_b32 v7, 1, v2
    v_lshlrev_b32 v7, 4, v7
    v_mov_b32 v8, 0x3f80
    v_lshlrev_b32 v7, v7, v8
    v_lshrrev_b32 v6, 1, v6
    """)
    for q in range(4):
        a(f"v_cmp_eq_u32 vcc, {q}, v6\ns_nop 1\nv_cndmask_b32 v{60+q}, 0, v7, vcc")
    a("""
    s_cmp_ge_u32 s20, 30
    s_cbranch_scc1 K0_w1
    s_lshl_b32 s23, s20, 7
    v_mul_u32_u24 v5, 3840, v3
    v_add_u32 v5, v5, v4
    s_waitcnt lgkmcnt(0)
    """)
    for i in range(10): a(f"buffer_load_dwordx4 {vr(10+4*i,4)}, v5, s[8:11], s23 offen\ns_add_u32 s23, s23, {8*3840}")
    a("""
    s_branch K0_sum
    K0_w1:
    s_sub_u32 s23, s20, 30
    s_lshl_b32 s23, s23, 7
    v_mul_u32_u24 v5, 3072, v3
    v_add_u32 v5, v5, v4
    s_waitcnt lgkmcnt(0)
    """)
    for i in range(10): a(f"buffer_load_dwordx4 {vr(10+4*i,4)}, v5, s[12:15], s23 offen\ns_add_u32 s23, s23, {8*3072}")
    a("K0_sum:")
    for i in range(10):
        a(f"s_waitcnt vmcnt({9-i})")
        a(f"v_mfma_f32_16x16x32_bf16 v[64:67], v[60:63], {vr(10+4*i,4)}, {'0' if i == 0 else 'v[64:67]'}")
    a(f"""
    s_mul_i32 s24, s21, {3456*4}
    s_lshl_b32 s25, s20, 8
    s_add_u32 s24, s24, s25
    s_add_u32 s24, s24, {WS_COLS}
    v_and_b32 v6, 7, v2
    v_lshlrev_b32 v6, 5, v6
    v_and_b32 v7, 16, v2
    v_add_u32 v6, v6, v7
    v_and_b32 v7, 40, v2
    s_nop 7
    """)
    for q in range(4): dpp_add(a, 68+q, 64+q, 8)
    a("""
    v_cmp_eq_u32 vcc, 0, v7
    s_and_saveexec_b64 s[22:23], vcc
    s_nop 1
    buffer_store_dwordx4 v[68:71], v6, s[16:19], s24 offen
    K0_end:
    s_endpgm
    """)
    return a.text()
```

```python
from asmlib import *
from layout import *
from k0 import srd

def wt_task(a, task_s, half_s, lds_s, lane, SW2, SWO, SWS, L, sc=""):
    a(f"""
    s_lshr_b32 s50, {task_s}, 2            ; step
    s_and_b32 s51, {task_s}, 3
    s_lshl_b32 s51, s51, 1
    s_add_u32 s51, s51, {half_s}           ; cg
    s_mul_i32 s52, s51, 160
    """)
    for j in range(5):
        a(f"""
        v_add_u32 v20, {64*j}, v{lane}
        v_mul_u32_u24 v21, 6554, v20
        v_lshrrev_b32 v21, 16, v21          ; row = P/10
        v_mul_u32_u24 v21, {1280-160}, v21
        v_lshl_add_u32 v{22+j}, v20, 4, v21
        """)
    a(f"""
    s_cmp_ge_u32 s50, 48
    s_cbranch_scc1 {L}_wo
    s_mul_i32 s53, s50, {32*1280}
    s_add_u32 s53, s53, s52
    """)
    for j in range(5): a(f"s_add_u32 m0, {lds_s}, {1024*j}\ns_nop 0\nbuffer_load_dwordx4 v{22+j}, {SW2}, s53 offen lds")
    a(f"""
    s_branch {L}_go
    {L}_wo:
    s_sub_u32 s53, s50, 48
    s_mul_i32 s53, s53, {32*1280}
    s_add_u32 s53, s53, s52
    """)
    for j in range(5): a(f"s_add_u32 m0, {lds_s}, {1024*j}\ns_nop 0\nbuffer_load_dwordx4 v{22+j}, {SWO}, s53 offen lds")
    a(f"""
    {L}_go:
    v_bfe_u32 v20, v{lane}, 2, 2
    v_lshrrev_b32 v21, 4, v{lane}
    v_lshl_add_u32 v20, v21, 3, v20         ; 8kb + j
    v_mul_u32_u24 v20, 160, v20
    v_and_b32 v21, 3, v{lane}
    v_mul_u32_u24 v21, 40, v21
    v_add3_u32 v20, v20, v21, {lds_s}
    s_mul_i32 s54, s51, 68
    s_add_u32 s54, s54, s50
    s_mul_i32 s54, s54, 5120
    s_add_u32 s54, s54, {WS_WT}
    s_add_u32 s55, s54, 4096
    v_lshlrev_b32 v21, 4, v{lane}
    """)
def wt_finish(a, SWS, sc=""):
    for nt in range(5):
        for u in range(2): a(f"ds_read_b64_tr_b16 {vr(30+4*nt+2*u,2)}, v20 offset:{u*640 + 8*nt}")
    a("s_waitcnt lgkmcnt(0)")
    for nt in range(5):
        a(f"buffer_store_dwordx4 {vr(30+4*nt,4)}, v21, {SWS}, s{54 if nt < 4 else 55} offen offset:{(nt%4)*1024}{sc}")

def gen_kw():
    a = Asm()
    srd(a, 8, 56, NB_W2); srd(a, 12, 24, NB_WO); srd(a, 16, 88, WS_END)
    a("""
    s_cmp_ge_u32 s2, 272
    s_cbranch_scc1 KW_end
    v_lshrrev_b32 v1, 6, v0
    v_and_b32 v60, 63, v0
    s_nop 0
    v_readfirstlane_b32 s31, v1
    s_mul_i32 s33, s31, 5120
    s_waitcnt lgkmcnt(0)
    """)
    wt_task(a, "s2", "s31", "s33", 60, "s[8:11]", "s[12:15]", "s[16:19]", "KW")
    a("s_waitcnt vmcnt(0)")
    wt_finish(a, "s[16:19]")
    a("KW_end:\ns_endpgm")
    return a.text()

AR, WR, AC2 = 16, 96, 176
def p2_setup(a, wave, lane):
    a(f"""
    v_lshlrev_b32 v6, 4, v{lane}
    v_add_u32 v7, 4096, v6
    s_lshl_b32 s32, s28, 2
    s_mul_i32 s32, s32, {68*1024}
    s_lshl_b32 s34, {wave}, 10
    s_add_u32 s32, s32, s34
    s_add_u32 s32, s32, {WS_A2}
    s_mul_i32 s33, s29, 68
    s_add_u32 s33, s33, {wave}
    s_mul_i32 s33, s33, 5120
    s_add_u32 s33, s33, {WS_WT}
    """)
    for m in range(4):
        a(f"s_add_u32 s34, {wave}, {m}\ns_and_b32 s34, s34, 3\ns_mul_i32 s34, s34, {68*1024}\nv_add_u32 v{2+m}, s34, v6")
def ldA(i, m, sc=""):
    s = f"buffer_load_dwordx4 {vr(AR+16*(i%5)+4*m,4)}, v{2+m}, s[16:19], s32 offen{sc}"
    if m == 3: s += "\ns_add_u32 s32, s32, 4096"
    return s
def ldW(i, nt, sc=""):
    s = f"buffer_load_dwordx4 {vr(WR+20*(i%4)+4*nt,4)}, v{6 if nt < 4 else 7}, s[16:19], s33 offen offset:{(nt%4)*1024}{sc}"
    if nt == 4: s += "\ns_add_u32 s33, s33, 20480"
    return s
def p2_epi_addr(a, wave, lane):
    a(f"""
    s_lshl_b32 s34, s28, 2
    s_add_u32 s34, s34, {wave}
    s_mul_i32 s34, s34, {16*1280}
    s_mul_i32 s35, s29, 160
    s_add_u32 s34, s34, s35
    v_and_b32 v8, 15, v{lane}
    v_mul_u32_u24 v8, 1280, v8
    v_lshrrev_b32 v9, 4, v{lane}
    v_mul_u32_u24 v9, 40, v9
    v_add_u32 v8, v8, v9
    """)
XE = WR
def p2_final(a, wave, lane, xe, red_base, SO="s[20:23]"):
    for m in range(1, 4):
        a(f"s_add_u32 s36, {wave}, {m}\ns_and_b32 s36, s36, 3\ns_mul_i32 s36, s36, {3*5120}\ns_add_u32 s36, s36, {red_base + (m-1)*5120}\nv_add_u32 v{9+m}, s36, v6")
    a(f"s_mul_i32 s36, {wave}, {3*5120}\ns_add_u32 s36, s36, {red_base}\nv_add_u32 v13, s36, v6")
    for m in range(1, 4):
        for nt in range(5): a(f"ds_write_b128 v{9+m}, {vr(AC2+20*m+4*nt,4)} offset:{nt*1024}")
    a("s_mov_b32 s39, 0xffff0000\ns_waitcnt vmcnt(0)")
    for q in range(10):
        x = xe + q; b = xe + 10 + q
        a(f"v_lshlrev_b32 v16, 16, v{x}\nv_and_b32 v17, s39, v{x}\nv_lshlrev_b32 v18, 16, v{b}\nv_and_b32 v19, s39, v{b}")
        a(f"v_pk_add_f32 v[16:17], v[16:17], v[18:19]\nv_pk_add_f32 {vr(AC2+2*q,2)}, {vr(AC2+2*q,2)}, v[16:17]")
    a("s_waitcnt lgkmcnt(0)\ns_barrier")
    for m in range(3):
        for nt in range(5): a(f"ds_read_b128 {vr(20+20*m+4*nt,4)}, v13 offset:{m*5120 + nt*1024}")
    for m in range(3):
        a(f"s_waitcnt lgkmcnt({10-5*m})")
        for q in range(10): a(f"v_pk_add_f32 {vr(AC2+2*q,2)}, {vr(AC2+2*q,2)}, {vr(20+20*m+2*q,2)}")
    for q in range(10): a(f"v_cvt_pk_bf16_f32 v{AC2+q}, v{AC2+2*q}, v{AC2+2*q+1}")
    a(f"buffer_store_dwordx4 {vr(AC2,4)}, v8, {SO}, s34 offen\nbuffer_store_dwordx4 {vr(AC2+4,4)}, v8, {SO}, s34 offen offset:16\nbuffer_store_dwordx2 {vr(AC2+8,2)}, v8, {SO}, s34 offen offset:32")

def gen_k2b():
    a = Asm()
    stamp(a, 0)
    srd(a, 4, 0, NB_X); srd(a, 16, 88, WS_END); srd(a, 20, 72, NB_X); srd(a, 24, 64, NB_B2)
    a(f"""
    s_cmp_ge_u32 s2, 256
    s_cbranch_scc1 K2_end
    v_lshrrev_b32 v1, 6, v0
    v_and_b32 v14, 63, v0
    s_and_b32 s33, s2, 7                ; xcd
    v_readfirstlane_b32 s31, v1
    s_lshr_b32 s34, s2, 3               ; idx
    s_lshr_b32 s28, s33, 1
    s_lshl_b32 s28, s28, 3
    s_and_b32 s35, s34, 7
    s_add_u32 s28, s28, s35             ; rg
    s_and_b32 s29, s33, 1
    s_lshl_b32 s29, s29, 2
    s_lshr_b32 s35, s34, 3
    s_add_u32 s29, s29, s35             ; cg
    """)
    p2_setup(a, "s31", 14)
    a("s_waitcnt lgkmcnt(0)")
    for i in range(4):
        for m in range(4): a(ldA(i, m))
        for nt in range(5): a(ldW(i, nt))
    p2_epi_addr(a, "s31", 14)
    xe = AR + 16*(17 % 5)
    for i in range(17):
        later = 9 * (min(16, i + 3) - i) + (6 if i >= 15 else 0)
        a(f"s_waitcnt vmcnt({later})")
        if i in (0, 4, 8, 12): stamp(a, 1 + i // 4)
        for nt in range(5):
            for m in range(4):
                d = vr(AC2 + 20*m + 4*nt, 4)
                a(f"v_mfma_f32_16x16x32_bf16 {d}, {vr(WR+20*(i%4)+4*nt,4)}, {vr(AR+16*(i%5)+4*m,4)}, {'0' if i == 0 else d}")
                if m == 1 and nt < 4 and i + 4 < 17: a(ldA(i + 4, nt))
            if i + 4 < 17: a(ldW(i + 4, nt))
        if i == 14:
            a(f"buffer_load_dwordx4 {vr(xe,4)}, v8, s[4:7], s34 offen\nbuffer_load_dwordx4 {vr(xe+4,4)}, v8, s[4:7], s34 offen offset:16\nbuffer_load_dwordx2 {vr(xe+8,2)}, v8, s[4:7], s34 offen offset:32")
            a(f"buffer_load_dwordx4 {vr(xe+10,4)}, v9, s[24:27], s35 offen\nbuffer_load_dwordx4 {vr(xe+14,4)}, v9, s[24:27], s35 offen offset:16\nbuffer_load_dwordx2 {vr(xe+18,2)}, v9, s[24:27], s35 offen offset:32")
    stamp(a, 5)
    p2_final(a, "s31", 14, xe, 0)
    stamp_flush(a, 6, 3)
    a("K2_end:\ns_endpgm")
    return a.text()
```

```python
S, D, H, DH, F = 2048, 640, 32, 20, 1536
WS_ROWST = 0
WS_COLS  = 0x8000
WS_KVP   = 0x40000
WS_PHIQ  = 0x200000
WS_A2    = 0x800000
WS_WT    = 0x1200000
WS_FLAG  = 0x30000
WS_END   = 0x2000000
NB_X, NB_WQKV, NB_WPHI, NB_WO, NB_W1, NB_B1, NB_W2, NB_B2 = 2621440, 2457600, 25600, 819200, 1966080, 3072, 1966080, 1280
SLOT = 45056
L_BD   = 3 * SLOT
L_RSTD = L_BD + 3 * 3840
K1_LDS = L_RSTD + 512
PV_PITCH = 560
QB = 16384
HB = {0: 36864, 1: 28672}
QP = {0: 320, 1: 192}
HP = {0: 128, 1: 256}
L_STG = K1_LDS
L_CNT = L_STG + 3 * 5120
F_LDS = L_CNT + 64
FL_H, FL_KV, FL_O = 0x200000, 0x208000, 0x210000
```

```python
import sys
sys.path.insert(0, "gen")
import asmlib
if "--stamps" in sys.argv: asmlib.STAMPS = True; sys.argv.remove("--stamps")
from asmlib import *
from layout import *
from k0 import srd, dpp_add
from k1 import ACC, SET, XA, QA, HA, RSTD, BDA, LOG2E, tile_reads, mfma_step, softmax
from k2b import wt_task, wt_finish, p2_setup, ldA, ldW, p2_epi_addr, p2_final, AR, WR, AC2
SC = " sc1"
SW2, SWO, SOUT, SB2, SDBG = "s[60:63]", "s[64:67]", "s[68:71]", "s[72:75]", "s[76:79]"
C_H, C_PV, C_KV, W_KV, C_OB, C_O, W_H, W_O, W_N = [L_CNT + 4*i for i in range(9)]
FL_S = WS_FLAG + 0x2000
WS_NONCE = WS_FLAG + 0x4000
NC = "s53"
TMO = 1 << 18

def arrive(a, off, va=1):
    a(f"""
    v_mov_b32 v{va}, 1
    v_mov_b32 v{va+1}, {off}
    s_mov_b64 exec, 1
    ds_add_rtn_u32 v{va+2}, v{va+1}, v{va}
    s_waitcnt lgkmcnt(0)
    s_mov_b64 exec, -1
    v_readfirstlane_b32 s47, v{va+2}
    """)
def spin(a, off, val, va=1):
    L = a.label("spin")
    a(f"""
    v_mov_b32 v{va+1}, {off}
    s_mov_b32 s48, 0
    {L}:
    ds_read_b32 v{va+2}, v{va+1}
    s_add_u32 s48, s48, 1
    s_waitcnt lgkmcnt(0)
    v_readfirstlane_b32 s47, v{va+2}
    s_cmp_ge_u32 s48, {TMO}
    s_cbranch_scc1 {L}_x
    s_cmp_lt_u32 s47, {val}
    s_cbranch_scc1 {L}
    {L}_x:
    """)
def setword(a, off, va=1):
    a(f"v_mov_b32 v{va}, 1\nv_mov_b32 v{va+1}, {off}\nds_write_b32 v{va+1}, v{va}\ns_waitcnt lgkmcnt(0)")
def flag_store(a, soff, va=1):
    a(f"v_mov_b32 v{va}, {NC}\nv_mov_b32 v{va+1}, 0\ns_mov_b64 exec, 1\nbuffer_store_dword v{va}, v{va+1}, s[16:19], {soff} offen sc1\ns_mov_b64 exec, -1")
def poll(a, soff, mask, lane, va=1):
    L = a.label("poll")
    a(f"""
    v_lshlrev_b32 v{va}, 7, v{lane}
    s_mov_b32 s48, 0
    s_mov_b64 exec, {mask}
    {L}:
    buffer_load_dword v{va+1}, v{va}, s[16:19], {soff} offen sc1
    s_add_u32 s48, s48, 1
    s_waitcnt vmcnt(0)
    v_cmp_eq_u32 vcc, {NC}, v{va+1}
    s_cmp_ge_u32 s48, {TMO}
    s_cbranch_scc1 {L}_x
    s_cmp_eq_u64 vcc, {mask}
    s_cbranch_scc0 {L}
    {L}_x:
    s_mov_b64 exec, -1
    """)

def p2_ids(a, rg, cg):
    a(f"""
    s_and_b32 s36, s2, 7
    s_lshr_b32 s37, s2, 3
    s_lshr_b32 {rg}, s36, 1
    s_lshl_b32 {rg}, {rg}, 3
    s_and_b32 s38, s37, 7
    s_add_u32 {rg}, {rg}, s38
    s_and_b32 {cg}, s36, 1
    s_lshl_b32 {cg}, {cg}, 2
    s_lshr_b32 s38, s37, 3
    s_add_u32 {cg}, {cg}, s38
    """)

def phase0_issue(a):
    a(f"""
    s_cmp_ge_u32 s31, 2
    s_cbranch_scc1 P0_cols
    s_lshl_b32 s33, s2, 3
    s_lshl_b32 s34, s31, 2
    s_add_u32 s33, s33, s34
    v_lshrrev_b32 v65, 4, v60
    v_add_u32 v65, s33, v65
    v_and_b32 v66, 15, v60
    v_mul_u32_u24 v64, 1280, v65
    v_lshl_add_u32 v64, v66, 4, v64
    s_waitcnt lgkmcnt(0)
    """)
    for i in range(5): a(f"buffer_load_dwordx4 {vr(80+4*i,4)}, v64, s[4:7], 0 offen offset:{256*i}")
    a(f"""
    s_branch P0_issued
    P0_cols:
    s_cmp_ge_u32 s2, 216
    s_cbranch_scc1 P0_issued
    s_lshr_b32 s33, s2, 2            ; line
    s_and_b32 s34, s2, 3
    s_lshl_b32 s34, s34, 1
    s_add_u32 s34, s34, s31
    s_sub_u32 s34, s34, 2            ; part 0..7
    s_mul_i32 s35, s34, 80
    v_lshrrev_b32 v76, 3, v60
    v_add_u32 v76, s35, v76
    v_and_b32 v77, 7, v60
    v_lshlrev_b32 v77, 4, v77
    s_cmp_ge_u32 s33, 30
    s_cbranch_scc1 P0_w1
    s_lshl_b32 s36, s33, 7
    v_mul_u32_u24 v76, 3840, v76
    v_add_u32 v76, v76, v77
    s_waitcnt lgkmcnt(0)
    """)
    for i in range(10): a(f"buffer_load_dwordx4 {vr(80+4*i,4)}, v76, s[8:11], s36 offen\ns_add_u32 s36, s36, {8*3840}")
    a("""
    s_branch P0_issued
    P0_w1:
    s_sub_u32 s36, s33, 30
    s_lshl_b32 s36, s36, 7
    v_mul_u32_u24 v76, 3072, v76
    v_add_u32 v76, v76, v77
    s_waitcnt lgkmcnt(0)
    """)
    for i in range(10): a(f"buffer_load_dwordx4 {vr(80+4*i,4)}, v76, s[12:15], s36 offen\ns_add_u32 s36, s36, {8*3072}")
    a("P0_issued:")

def phase0_finish(a):
    a(f"""
    s_cmp_ge_u32 s31, 2
    s_cbranch_scc1 P0_fcols
    s_mov_b32 s37, 0xffff0000
    """)
    U = 100
    for i in range(5):
        a(f"s_waitcnt vmcnt({4-i})")
        for q in range(4):
            r = 80 + 4*i + q
            a(f"v_lshlrev_b32 v{U+2*(4*i+q)}, 16, v{r}\nv_and_b32 v{U+1+2*(4*i+q)}, s37, v{r}")
    a(f"v_pk_add_f32 v[68:69], {vr(U,2)}, {vr(U+2,2)}\nv_pk_add_f32 v[70:71], {vr(U+4,2)}, {vr(U+6,2)}")
    for i in range(4, 20, 2):
        a(f"v_pk_add_f32 v[68:69], v[68:69], {vr(U+2*i,2)}\nv_pk_add_f32 v[70:71], v[70:71], {vr(U+2+2*i,2)}")
    a("v_pk_add_f32 v[68:69], v[68:69], v[70:71]\nv_add_f32 v68, v68, v69")
    for ror in (8, 4, 2, 1): dpp_add(a, 68, 68, ror)
    a("v_mul_f32 v68, 0x3acccccd, v68")
    for i in range(20): a(f"v_pk_add_f32 {vr(U+2*i,2)}, {vr(U+2*i,2)}, v[68:69] op_sel_hi:[1,0] neg_lo:[0,1] neg_hi:[0,1]")
    a(f"v_pk_mul_f32 v[70:71], {vr(U,2)}, {vr(U,2)}\nv_pk_mul_f32 v[72:73], {vr(U+2,2)}, {vr(U+2,2)}")
    for i in range(2, 20, 2):
        a(f"v_pk_fma_f32 v[70:71], {vr(U+2*i,2)}, {vr(U+2*i,2)}, v[70:71]\nv_pk_fma_f32 v[72:73], {vr(U+2+2*i,2)}, {vr(U+2+2*i,2)}, v[72:73]")
    a("v_pk_add_f32 v[70:71], v[70:71], v[72:73]\nv_add_f32 v69, v70, v71")
    for ror in (8, 4, 2, 1): dpp_add(a, 69, 69, ror)
    a(f"""
    v_mov_b32 v70, 0x3727c5ac
    v_fmac_f32 v70, 0x3acccccd, v69
    v_rsq_f32 v69, v70
    v_lshlrev_b32 v65, 3, v65
    v_cmp_eq_u32 vcc, 0, v66
    s_and_saveexec_b64 s[48:49], vcc
    s_nop 1
    buffer_store_dwordx2 v[68:69], v65, s[16:19], 0 offen sc1
    s_mov_b64 exec, -1
    s_branch P0_done
    P0_fcols:
    s_cmp_ge_u32 s2, 216
    s_cbranch_scc1 P0_done
    v_and_b32 v68, 15, v60
    v_and_b32 v69, 1, v60
    v_lshlrev_b32 v69, 4, v69
    v_mov_b32 v70, 0x3f80
    v_lshlrev_b32 v69, v69, v70
    v_lshrrev_b32 v68, 1, v68
    """)
    for q in range(4): a(f"v_cmp_eq_u32 vcc, {q}, v68\ns_nop 1\nv_cndmask_b32 v{64+q}, 0, v69, vcc")
    a("s_nop 1")
    for i in range(10):
        a(f"s_waitcnt vmcnt({9-i})")
        a(f"v_mfma_f32_16x16x32_bf16 v[68:71], v[64:67], {vr(80+4*i,4)}, {'0' if i == 0 else 'v[68:71]'}")
    a(f"""
    s_mul_i32 s36, s34, {3456*4}
    s_lshl_b32 s35, s33, 8
    s_add_u32 s36, s36, s35
    s_add_u32 s36, s36, {WS_COLS}
    v_and_b32 v76, 7, v60
    v_lshlrev_b32 v76, 5, v76
    v_and_b32 v77, 16, v60
    v_add_u32 v76, v76, v77
    v_and_b32 v77, 40, v60
    """)
    for q in range(4): dpp_add(a, 72+q, 68+q, 8)
    a(f"""
    v_cmp_eq_u32 vcc, 0, v77
    s_and_saveexec_b64 s[48:49], vcc
    s_nop 1
    buffer_store_dwordx4 v[72:75], v76, s[16:19], s36 offen sc1
    s_mov_b64 exec, -1
    P0_done:
    """)

def flag_addrs(a):
    a(f"""
    s_lshl_b32 s50, s28, 11
    s_lshl_b32 s55, s30, 3
    s_add_u32 s55, s55, s29
    s_lshl_b32 s55, s55, 7
    s_add_u32 s50, s50, s55
    s_add_u32 s50, s50, {FL_H}
    s_lshl_b32 s51, s29, 11
    s_lshl_b32 s55, s28, 7
    s_add_u32 s51, s51, s55
    s_add_u32 s51, s51, {FL_KV}
    s_lshl_b32 s52, s28, 10
    s_lshl_b32 s55, s29, 7
    s_add_u32 s52, s52, s55
    s_add_u32 s52, s52, {FL_O}
    s_cmp_eq_u32 s30, 1
    s_cselect_b32 s51, s52, s51
    s_lshr_b32 s54, s2, 4
    s_lshl_b32 s54, s54, 7
    s_and_b32 s55, s2, 15
    s_lshl_b32 s55, s55, 2
    s_add_u32 s54, s54, s55
    s_add_u32 s54, s54, {FL_S}
    """)

def compute(a, typ):
    L = f"F_c{typ}"
    nh = 2 if typ == 0 else 4
    a(f"{L}:\ns_barrier")
    stamp(a, 1)
    for r in tile_reads(typ, 0, SET[0]): a(r)
    a(f"{L}_loop:")
    for s in range(4):
        if s < 3:
            a("s_waitcnt lgkmcnt(0)")
            fill = tile_reads(typ, s + 1, SET[(s + 1) % 2])
            if s == 2:
                fill += [f"s_cmp_eq_u32 s42, 2", f"s_cselect_b32 s41, {-2*SLOT}, s45", "s_add_u32 s42, s42, 1", "s_cmp_eq_u32 s42, 3", "s_cselect_b32 s42, 0, s42", "s_cmp_eq_u32 s40, 3"]
        else:
            a(f"s_cbranch_scc1 {L}_it2\ns_waitcnt lgkmcnt(0)\ns_barrier\n{L}_it2r:")
            rd = tile_reads(typ, 0, SET[0])
            up = lambda r: f"v_add_u32 v{r}, s41, v{r}"
            fill = [up(XA), up(QA)] + rd[:3] + [up(HA + i) for i in range(nh)] + rd[3:6] + [up(XA + 1), up(XA + 2), up(XA + 3)] + rd[6:]
            fill += ["s_add_u32 s40, s40, 1", "s_cmp_lt_u32 s40, 10"]
        mfma_step(a, SET[s % 2], fill)
    a(f"s_cbranch_scc1 {L}_loop")
    stamp(a, 2)
    fill = [f"ds_read_b32 v{RSTD}, v{RSTD}"]
    BD = 16
    bdr = {}
    order = [(0,0),(1,0),(0,1),(1,1),(2,2),(0,2),(1,2),(2,3),(1,3),(2,4),(1,4)]
    for n, (T, u) in enumerate(order):
        bdr[(T, u)] = BD + 4*n
        for uu in range(2): fill.append(f"ds_read_b64_tr_b16 {vr(BD+4*n+2*uu,2)}, v{BDA} offset:{(8*u+4*uu)*96 + T*32}")
    a("s_waitcnt lgkmcnt(0)")
    mfma_step(a, SET[0], fill, per=4)
    BF = 112; P = 64
    for i in range(20): a(f"v_cvt_pk_bf16_f32 v{BF+i}, v{ACC+2*i}, v{ACC+2*i+1}")
    a("s_waitcnt lgkmcnt(0)")
    hb = ACC + (80 if typ == 0 else 48)
    npair = 4 if typ == 0 else 8
    va = [f"v_mul_f32 v12, {LOG2E}, v{RSTD}", f"v_mul_f32 v14, v{RSTD}, v{RSTD}"]
    for m in range(npair):
        b = hb + 8*m
        for i in range(8): va.append(f"v_max_f32 v{b+i}, 0, v{b+i}")
        for i in range(8): va.append(f"v_mul_f32 v{136+i}, v14, v{b+i}")
        for i in range(8): va.append(f"v_mul_f32 v{b+i}, v{136+i}, v{b+i}")
        for i in range(4): va.append(f"v_cvt_pk_bf16_f32 v{b+i}, v{b+2*i}, v{b+2*i+1}")
        va.append(f"buffer_store_dwordx4 {vr(b,4)}, v15, s[16:19], s43 offen offset:{(m>>1)*1024 + (m&1)*512} sc1")
    if typ == 0:
        vb = ACC + 40
        for i in range(20):
            va += [f"v_mul_f32 v{vb+2*i}, v{RSTD}, v{vb+2*i}", f"v_mul_f32 v{vb+2*i+1}, v{RSTD}, v{vb+2*i+1}", f"v_cvt_pk_bf16_f32 v{vb+i}, v{vb+2*i}, v{vb+2*i+1}"]
        for i in range(5): va.append(f"ds_write_b128 v5, {vr(vb+4*i,4)} offset:{320+16*i}")
    a(f"""
    s_lshl_b32 s43, s28, 3
    s_lshl_b32 s44, s31, 1
    s_add_u32 s43, s43, s44
    s_mul_i32 s43, s43, {68*1024}
    s_lshl_b32 s44, s29, {11 if typ == 0 else 12}
    s_add_u32 s43, s43, s44
    s_add_u32 s43, s43, {WS_A2 + (32*1024 if typ == 0 else 0)}
    v_and_b32 v15, 16, v60
    v_mul_u32_u24 v15, {68*64}, v15
    v_and_b32 v13, 15, v60
    v_lshl_add_u32 v15, v13, 4, v15
    v_and_b32 v13, 32, v60
    v_lshl_add_u32 v15, v13, 3, v15
    """)
    if typ == 0:
        a(f"""
        v_and_b32 v4, 31, v60
        s_lshl_b32 s44, s31, 5
        v_lshrrev_b32 v13, 5, v60
        v_add_u32 v4, s44, v4
        v_mul_u32_u24 v4, {PV_PITCH}, v4
        v_mul_u32_u24 v13, 80, v13
        v_add_u32 v5, v4, v13
        v_add_u32 v6, v5, v13
        """)
    k = 0
    seen = set()
    for n, (T, u) in enumerate(order):
        d = vr(P + 16*T, 16)
        a(f"v_mfma_f32_32x32x16_bf16 {d}, {vr(bdr[(T,u)],4)}, {vr(BF+4*u,4)}, {d if T in seen else '0'}")
        seen.add(T)
        if n >= 2:
            for _ in range(6):
                if k < len(va): a(va[k]); k += 1
    while k < len(va): a(va[k]); k += 1
    stamp(a, 3)
    def hflag():
        a("s_waitcnt vmcnt(0)")
        arrive(a, C_H)
        a(f"s_cmp_eq_u32 s47, 3\ns_cbranch_scc0 {L}_nohf")
        flag_store(a, "s50")
        a(f"{L}_nohf:")
    if typ == 0:
        softmax(a, P, ACC, list(range(16, 26)), list(range(26, 36)))
        hflag()
        softmax(a, P + 20, ACC + 20, list(range(36, 46)), list(range(46, 56)))
        stamp(a, 4)
        for i in range(10): a(f"ds_write_b128 v6, {vr(16+4*i,4)} offset:{16*i}")
        a("v_mov_b32 v58, 0x3f80\nv_mov_b32 v59, 0\nds_write_b64 v4, v[58:59] offset:480")
        a(f"""
        v_mul_u32_u24 v7, {PV_PITCH}, v61
        v_bfe_u32 v8, v60, 1, 1
        v_lshl_add_u32 v8, v62, 1, v8
        v_and_b32 v9, 16, v60
        v_cmp_eq_u32 vcc, 0, v9
        s_mul_i32 s35, s31, 80
        s_and_b32 s36, s31, 1
        v_cndmask_b32 v8, 4, v8, vcc
        v_lshl_add_u32 v10, v8, 3, v7
        v_add_u32 v10, s35, v10
        v_add_u32 v8, s36, v8
        v_cmp_eq_u32 vcc, 5, v8
        s_mul_i32 s35, s31, 40
        s_add_u32 s35, s35, 320
        v_cndmask_b32 v8, v8, 0, vcc
        v_lshl_add_u32 v8, v8, 3, s35
        v_and_b32 v9, 19, v60
        v_cmp_lt_u32 vcc, 16, v9
        v_mov_b32 v11, 480
        s_nop 0
        v_cndmask_b32 v8, v8, v11, vcc
        v_add_u32 v11, v8, v7               ; B address
        s_waitcnt lgkmcnt(0)
        """)
        arrive(a, C_PV)
        spin(a, C_PV, 4)
        for st in range(8):
            for u in range(2):
                off = u*4*PV_PITCH + st*16*PV_PITCH
                a(f"ds_read_b64_tr_b16 {vr(64+12*st+2*u,2)}, v10 offset:{off}\nds_read_b64_tr_b16 {vr(68+12*st+2*u,2)}, v10 offset:{off+40}\nds_read_b64_tr_b16 {vr(72+12*st+2*u,2)}, v11 offset:{off}")
        a(f"""
        s_lshl_b32 s35, s29, 2
        s_add_u32 s35, s35, s31             ; head
        s_lshl_b32 s35, s35, 4
        s_add_u32 s35, s35, s28
        s_mul_i32 s35, s35, 1792
        s_add_u32 s35, s35, {WS_KVP}
        v_and_b32 v7, 31, v60
        v_lshrrev_b32 v8, 5, v60
        v_mul_u32_u24 v8, 336, v8
        v_lshl_add_u32 v8, v7, 4, v8
        """)
        for st in range(8):
            a(f"s_waitcnt lgkmcnt({min(15, 42-6*st)})")
            for sg in range(2):
                d = vr(160 + 16*sg, 16)
                a(f"v_mfma_f32_32x32x16_bf16 {d}, {vr(64+12*st+4*sg,4)}, {vr(72+12*st,4)}, {'0' if st == 0 else d}")
        a("v_cmp_gt_u32 vcc, 21, v7\ns_and_saveexec_b64 s[48:49], vcc\ns_nop 7\ns_nop 2")
        for sg in range(2):
            for i in range(4): a(f"v_cvt_pk_bf16_f32 v{200+4*sg+i}, v{160+16*sg+2*i}, v{161+16*sg+2*i}")
            for i in range(2): a(f"v_cvt_pk_bf16_f32 v{208+2*sg+i}, v{168+16*sg+2*i}, v{169+16*sg+2*i}")
            a(f"buffer_store_dwordx4 {vr(200+4*sg,4)}, v8, s[16:19], s35 offen offset:{672*sg} sc1")
        a("v_cmp_gt_u32 vcc, 21, v60\ns_and_b64 exec, exec, vcc")
        a(f"buffer_store_dwordx4 v[208:211], v8, s[16:19], s35 offen offset:1344 sc1")
        a("s_mov_b64 exec, -1\ns_branch F_fin")
    else:
        for hh in range(2):
            o = 16 + 20*hh
            softmax(a, P + 20*hh, ACC + 20*hh, [o+i for i in range(8)] + [o+16, o+17], [o+8+i for i in range(8)] + [o+18, o+19])
            if hh == 0: hflag()
        stamp(a, 4)
        otask(a)
    a(f"""
    {L}_it2:
    v_mov_b32 v13, {W_N}
    ds_read_b32 v12, v13
    s_waitcnt vmcnt(0) lgkmcnt(0)
    s_barrier
    v_readfirstlane_b32 {NC}, v12
    s_cmp_eq_u32 s31, 0
    s_cbranch_scc0 {L}_it2r
    v_mov_b32 v13, 0
    s_mov_b64 exec, 1
    buffer_store_dword v12, v13, s[16:19], s54 offen sc1
    s_mov_b64 exec, -1
    s_branch {L}_it2r
    """)

def addr_setup(a, typ):
    nh = 2 if typ == 0 else 4
    a(f"""
    v_mul_u32_u24 v{QA}, {QP[typ]}, v61
    v_mul_u32_u24 v14, {QP[typ]//2}, v62
    v_lshlrev_b32 v15, 3, v63
    v_add3_u32 v{QA}, v{QA}, v14, v15
    v_add_u32 v{QA}, {QB + SLOT}, v{QA}
    v_lshlrev_b32 v{HA}, {7 if typ == 0 else 8}, v61
    v_and_b32 v14, 16, v60
    v_lshlrev_b32 v14, 1, v14
    v_lshl_add_u32 v14, v62, 4, v14
    v_and_b32 v15, 2, v60
    v_lshl_add_u32 v14, v15, 2, v14
    v_add_u32 v{HA}, v{HA}, v14
    v_add_u32 v{HA}, {HB[typ] + SLOT}, v{HA}
    """)
    if typ == 0: a(f"v_and_b32 v14, 8, v60\nv_lshl_add_u32 v{HA}, v14, 3, v{HA}")
    else:        a(f"v_and_b32 v14, 12, v60\nv_lshl_add_u32 v{HA}, v14, 4, v{HA}")
    for i in range(1, nh): a(f"v_xor_b32 v{HA+i}, {64*i}, v{HA}")

def otask(a):
    a(f"""
    s_cmp_eq_u32 s31, 0
    s_cbranch_scc0 F_ot_wait
    s_lshl_b32 s33, s29, 11
    s_add_u32 s33, s33, {FL_KV}
    s_mov_b64 s[34:35], 0xffff
    """)
    poll(a, "s33", "s[34:35]", 60)
    setword(a, W_KV)
    a("F_ot_wait:")
    for hh in range(2):
        for sg in range(2):
            for q in range(4): a(f"v_permlane32_swap_b32 v{16+20*hh+8*sg+q}, v{20+20*hh+8*sg+q}")
    a(f"""
    v_lshrrev_b32 v4, 4, v60
    v_mul_u32_u24 v4, 1792, v4
    v_and_b32 v5, 15, v60
    v_lshl_add_u32 v4, v5, 4, v4
    s_lshl_b32 s33, s29, 2
    s_add_u32 s33, s33, s31
    s_mul_i32 s33, s33, {16*1792}
    s_add_u32 s33, s33, {WS_KVP}
    v_and_b32 v6, 1, v60
    v_lshlrev_b32 v6, 4, v6
    v_mov_b32 v7, 0x3f80
    v_lshlrev_b32 v6, v6, v7
    v_lshrrev_b32 v7, 1, v5
    """)
    for q in range(4): a(f"v_cmp_eq_u32 vcc, {q}, v7\ns_nop 1\nv_cndmask_b32 v{56+q}, 0, v6, vcc")
    spin(a, W_KV, 1)
    stamp(a, 5)
    LD = 140
    for i in range(4):
        for g in range(7):
            a(f"buffer_load_dwordx4 {vr(LD+4*(7*i+g),4)}, v4, s[16:19], s33 offen offset:{256*g} sc1")
        if i < 3: a(f"s_add_u32 s33, s33, {4*1792}")
    a(f"""
    s_mul_i32 s34, s31, 1792
    s_add_u32 s34, s34, {L_STG}
    v_lshlrev_b32 v5, 4, v5
    v_bfe_u32 v6, v60, 4, 1
    v_lshl_add_u32 v5, v6, 3, v5
    v_add_u32 v5, s34, v5
    v_and_b32 v6, 31, v60
    v_min_u32 v6, 20, v6
    v_lshrrev_b32 v7, 5, v60
    v_mul_u32_u24 v8, 336, v7
    v_lshlrev_b32 v6, 4, v6
    v_add_u32 v6, {L_STG}, v6
    v_add_u32 v8, v8, v6
    v_add_u32 v6, 1344, v6
    v_mov_b32 v9, {L_BD + 2*3840}
    v_cmp_gt_u32 vcc, 32, v60
    v_add_u32 v10, {2*1792}, v6
    s_mul_i32 s36, s29, 2560
    v_cndmask_b32 v6, v9, v6, vcc
    v_cndmask_b32 v10, v10, v9, vcc
    s_lshl_b32 s43, s28, 3
    s_lshl_b32 s44, s31, 1
    s_add_u32 s43, s43, s44
    s_mul_i32 s43, s43, {68*1024}
    s_add_u32 s43, s43, s36
    s_add_u32 s43, s43, {WS_A2 + 192*256}
    """)
    for i in range(4):
        for g in range(7):
            a(f"s_waitcnt vmcnt({27 - 7*i - g})")
            d = vr(64 + 4*g, 4)
            a(f"v_mfma_f32_16x16x32_bf16 {d}, v[56:59], {vr(LD+4*(7*i+g),4)}, {'0' if i == 0 else d}")
    a("s_nop 1\ns_mov_b64 exec, vcc")
    for g in range(7):
        a(f"v_cvt_pk_bf16_f32 v{96+2*g}, v{64+4*g}, v{65+4*g}\nv_cvt_pk_bf16_f32 v{97+2*g}, v{66+4*g}, v{67+4*g}\nds_write_b64 v5, {vr(96+2*g,2)} offset:{256*g}")
    a("s_mov_b64 exec, -1\ns_waitcnt lgkmcnt(0)")
    arrive(a, C_OB)
    spin(a, C_OB, 4)
    AF = 64
    for hd in range(4):
        for st in range(2): a(f"ds_read_b128 {vr(AF+12*hd+4*st,4)}, v8 offset:{1792*hd + 672*st}")
        a(f"ds_read_b128 {vr(AF+12*hd+8,4)}, v{6 if hd < 2 else 10} offset:{1792*(hd&1)}")
    OD = 128
    for hd in range(4):
        a(f"s_waitcnt lgkmcnt({9-3*hd})")
        hh = hd & 1; up = hd >> 1
        for st in range(3):
            b = 16 + 20*hh + (8*st + 4*up if st < 2 else 16)
            d = vr(OD + 16*hd, 16)
            a(f"v_mfma_f32_32x32x16_bf16 {d}, {vr(AF+12*hd+4*st,4)}, {vr(b,4)}, {'0' if st == 0 else d}")
    a("s_nop 3")
    pp = [0, 3, 5, 8]
    for hd in range(4):
        d = OD + 16*hd
        a(f"v_add_f32 v{d+12}, 0x358637bd, v{d+12}\nv_rcp_f32 v{d+12}, v{d+12}\ns_nop 0")
        for i in range(12): a(f"v_mul_f32 v{d+i}, v{d+i}, v{d+12}")
        for i in range(4): a(f"v_cvt_pk_bf16_f32 v{d+i}, v{d+2*i}, v{d+2*i+1}")
        for i in range(2): a(f"v_cvt_pk_bf16_f32 v{112+2*hd+i}, v{d+8+2*i}, v{d+9+2*i}")
        a(f"buffer_store_dwordx4 {vr(d,4)}, v15, s[16:19], s43 offen offset:{256*pp[hd]} sc1")
    a("s_mov_b64 exec, vcc")
    a(f"buffer_store_dwordx4 v[112:115], v15, s[16:19], s43 offen offset:{256*2} sc1\nbuffer_store_dwordx4 v[116:119], v15, s[16:19], s43 offen offset:{256*7} sc1")
    a("s_mov_b64 exec, -1\ns_branch F_fin")

def fin(a):
    a("F_fin:")
    stamp(a, 6)
    a("s_waitcnt vmcnt(0)")
    stamp(a, 7)
    arrive(a, C_O)
    a("s_cmp_eq_u32 s47, 3\ns_cbranch_scc0 F_ot_end")
    flag_store(a, "s51")
    p2_ids(a, "s33", "s34")
    a(f"s_lshr_b32 s33, s33, 1\ns_lshl_b32 s33, s33, 10\ns_add_u32 s33, s33, {FL_O}\ns_mov_b64 s[34:35], 0xff")
    poll(a, "s33", "s[34:35]", 60)
    setword(a, W_O)
    a("F_ot_end:")
    stamp_flush(a, 8, 1)
    a("s_endpgm")

def dma(a, base, j, v, srd_, soff):
    a(f"s_add_u32 m0, {base}, {1024*j}\ns_nop 0\nbuffer_load_dwordx4 v{v}, {srd_}, {soff} offen lds")
def issue_head(a):
    a("""
    s_lshl_b32 s34, s32, 7
    s_mul_i32 s35, s32, 245760
    s_mul_i32 s36, s32, 196608
    s_add_u32 s41, s33, s45
    s_add_u32 s42, s33, s46
    s_add_u32 s43, s33, s47
    """)
def issue_tail(a):
    a(f"""
    s_add_u32 s32, s32, 1
    s_cmp_eq_u32 s32, 10
    s_cselect_b32 s32, 0, s32
    s_add_u32 s33, s33, {SLOT}
    s_cmp_eq_u32 s33, {3*SLOT}
    s_cselect_b32 s33, 0, s33
    """)
def first_chunk(a, typ):
    nq = 5 if typ == 0 else 3
    nh = 2 if typ == 0 else 4
    for j in range(nh):
        if j == 0:
            if typ == 0:
                a(f"""
                s_lshl_b32 s37, s31, 4
                v_lshrrev_b32 v3, 3, v60
                v_add_u32 v3, s37, v3               ; row
                v_lshrrev_b32 v4, 2, v60
                v_and_b32 v4, 4, v4
                v_and_b32 v5, 7, v60
                v_xor_b32 v4, v4, v5
                v_mul_u32_u24 v3, 3072, v3
                v_lshl_add_u32 v3, v4, 4, v3
                v_add_u32 v19, s39, v3
                """)
            else:
                a(f"""
                s_lshl_b32 s37, s31, 4
                v_lshrrev_b32 v3, 4, v60
                v_lshlrev_b32 v4, 2, v3
                v_add_u32 v3, s37, v3               ; row
                v_and_b32 v5, 15, v60
                v_xor_b32 v4, v4, v5
                v_mul_u32_u24 v3, 3072, v3
                v_lshl_add_u32 v3, v4, 4, v3
                v_add_u32 v19, s39, v3
                """)
        else:
            a(f"v_add_u32 v{19+j}, {(8 if typ == 0 else 4)*3072*j}, v19")
        dma(a, "s43", j, 19 + j, "s[12:15]", "s36")
    a(f"s_mul_i32 s37, s31, {16*3840}\ns_add_u32 s38, s38, s37")
    for j in range(nq):
        a(f"v_add_u32 v2, {64*j}, v60")
        if typ == 0:
            a(f"""
            v_mul_u32_u24 v3, 3277, v2
            v_lshrrev_b32 v3, 16, v3            ; row
            v_mul_u32_u24 v4, 20, v3
            v_sub_u32 v4, v2, v4                ; pos
            v_mul_u32_u24 v5, 52, v4
            v_lshrrev_b32 v5, 8, v5             ; seg
            v_mul_u32_u24 v3, 3840, v3
            v_lshl_add_u32 v3, v4, 4, v3
            v_and_b32 v6, 1, v5
            v_mul_u32_u24 v6, 1200, v6
            v_lshrrev_b32 v5, 1, v5
            v_mul_u32_u24 v5, 80, v5
            v_add3_u32 v3, v3, v6, s38
            v_sub_u32 v{14+j}, v3, v5
            """)
        else:
            a(f"""
            v_mul_u32_u24 v3, 5462, v2
            v_lshrrev_b32 v3, 16, v3            ; row
            v_mul_u32_u24 v4, 12, v3
            v_sub_u32 v4, v2, v4                ; pos
            v_mul_u32_u24 v5, 43, v4
            v_lshrrev_b32 v5, 8, v5             ; seg
            v_sub_u32 v6, v4, v5
            v_mul_u32_u24 v3, 3840, v3
            v_lshl_add_u32 v3, v6, 4, v3
            v_add_u32 v{14+j}, s38, v3
            """)
        dma(a, "s42", j, 14 + j, "s[8:11]", "s35")

def issue_sub(a):
    a("F_issue:")
    issue_head(a)
    for j in range(4): dma(a, "s41", j, 10 + j, "s[4:7]", "s34")
    for j in range(3): dma(a, "s42", j, 14 + j, "s[8:11]", "s35")
    for j in range(2): dma(a, "s43", j, 19 + j, "s[12:15]", "s36")
    a("s_cmp_eq_u32 s30, 1\ns_cbranch_scc1 F_issue_b")
    for j in range(3, 5): dma(a, "s42", j, 14 + j, "s[8:11]", "s35")
    a("s_branch F_issue_e\nF_issue_b:")
    for j in range(2, 4): dma(a, "s43", j, 19 + j, "s[12:15]", "s36")
    a("F_issue_e:")
    issue_tail(a)
    a("s_setpc_b64 s[56:57]")
CALL = "s_call_b64 s[56:57], F_issue"

def cols_addr(a, typ):
    nql = 40 if typ == 0 else 24
    if typ == 0:
        a(f"""
        v_mul_u32_u24 v2, 26, v60
        v_lshrrev_b32 v2, 8, v2             ; seg
        v_mul_u32_u24 v3, 10, v2
        v_sub_u32 v3, v60, v3               ; w
        v_and_b32 v4, 1, v2
        v_mul_u32_u24 v4, 640, v4
        v_lshrrev_b32 v2, 1, v2
        v_mul_u32_u24 v2, 40, v2
        v_lshl_add_u32 v2, v3, 2, v2
        s_mul_i32 s37, s29, 80
        s_add_u32 s37, s37, 640
        v_add3_u32 v2, v2, v4, s37          ; colQ
        s_lshl_b32 s37, s29, 6
        s_add_u32 s37, s37, {1024 - 4*nql}
        """)
    else:
        a(f"""
        v_mul_u32_u24 v2, 22, v60
        v_lshrrev_b32 v2, 8, v2             ; seg
        v_lshlrev_b32 v2, 1, v2
        v_sub_u32 v2, v60, v2
        s_mul_i32 s37, s29, 80
        v_lshl_add_u32 v2, v2, 2, s37       ; colQ
        s_lshl_b32 s37, s29, 7
        s_sub_u32 s37, s37, {4*nql}
        """)
    a(f"""
    v_lshl_add_u32 v3, v60, 2, s37          ; w1 column
    v_add_u32 v4, 1920, v3
    v_lshlrev_b32 v3, 1, v3
    v_mov_b32 v5, 0x40000000
    v_cmp_gt_u32 vcc, {nql}, v60
    v_mov_b32 v6, {2*SLOT + HB[typ] - 8*nql}
    v_mov_b32 v7, {2*SLOT + QB}
    v_cndmask_b32 v2, v4, v2, vcc
    v_cndmask_b32 v51, v3, v5, vcc
    v_cndmask_b32 v6, v6, v7, vcc
    v_lshl_add_u32 v6, v60, 3, v6           ; A0
    v_mov_b32 v7, {HP[typ]}
    v_mov_b32 v8, {QP[typ]}
    v_cndmask_b32 v7, v7, v8, vcc           ; pitch
    v_mov_b32 v8, 64
    v_cndmask_b32 v8, v8, v56, vcc          ; X
    v_lshlrev_b32 v50, 2, v2
    """)
    for k in range(5):
        xm = ((k >> 1) & 1) if typ == 0 else (k & 3)
        a(f"v_mul_u32_u24 v{40+k}, {xm}, v8\nv_xor_b32 v{40+k}, v{40+k}, v6\nv_mad_u32_u24 v{40+k}, v7, {k}, v{40+k}")

def helper(a):
    a(f"""
    F_helper:
    s_sub_u32 s31, s31, 4
    s_lshl_b32 s37, s28, 7
    s_lshl_b32 s38, s31, 5
    s_add_u32 s37, s37, s38             ; first token row
    v_lshrrev_b32 v2, 3, v60
    v_add_u32 v2, s37, v2
    v_mul_u32_u24 v2, 1280, v2
    v_lshrrev_b32 v3, 4, v60
    v_and_b32 v4, 7, v60
    v_xor_b32 v3, v3, v4
    v_lshl_add_u32 v10, v3, 4, v2
    v_xor_b32 v3, 4, v3
    v_lshl_add_u32 v11, v3, 4, v2
    v_add_u32 v11, {8*1280}, v11
    v_add_u32 v12, {16*1280}, v10
    v_add_u32 v13, {16*1280}, v11
    s_lshl_b32 s45, s31, 12
    s_cmp_eq_u32 s30, 1
    s_cselect_b32 s46, 3072, 5120
    s_cselect_b32 s47, 4096, 2048
    s_cselect_b32 s37, {HB[1]}, 0
    s_cselect_b32 s38, 0, {HB[0]}
    s_mul_i32 s46, s46, s31
    s_add_u32 s46, s46, {QB}
    s_mul_i32 s47, s47, s31
    s_add_u32 s47, s47, s37
    s_add_u32 s47, s47, s38
    s_mov_b32 s33, {SLOT}
    """.replace("s_cselect_b32 s46, 3072, 5120", "s_cselect_b32 s46, 3, 5\ns_lshl_b32 s46, s46, 10\ns_cmp_eq_u32 s30, 1").replace("s_cselect_b32 s47, 4096, 2048", "s_cselect_b32 s47, 4, 2\ns_lshl_b32 s47, s47, 10\ns_cmp_eq_u32 s30, 1"))
    issue_head(a)
    a("s_mul_i32 s38, s29, 160\ns_waitcnt lgkmcnt(0)")
    stamp(a, 1)
    for j in range(4): dma(a, "s41", j, 10 + j, "s[4:7]", "s34")
    a("""
    s_cmp_eq_u32 s30, 1
    s_cbranch_scc1 F_hb
    s_add_u32 s38, s38, 1280
    s_lshl_b32 s39, s29, 7
    s_add_u32 s39, s39, 2048
    """)
    first_chunk(a, 0)
    a("v_mov_b32 v21, v19\nv_mov_b32 v22, v19\ns_branch F_hc\nF_hb:\ns_lshl_b32 s39, s29, 8")
    first_chunk(a, 1)
    a("v_mov_b32 v17, v14\nv_mov_b32 v18, v14\nF_hc:")
    issue_tail(a)
    a(CALL)
    a(f"""
    v_mov_b32 v56, 0
    v_mov_b32 v57, 0
    v_mov_b32 v58, 0
    v_mov_b32 v59, 0
    s_mul_i32 s37, s31, 2880
    s_add_u32 s37, s37, {L_BD}
    v_lshl_add_u32 v2, v60, 4, s37
    ds_write_b128 v2, v[56:59]
    ds_write_b128 v2, v[56:59] offset:1024
    ds_write_b128 v2, v[56:59] offset:1856
    v_lshlrev_b32 v61, 2, v60
    v_min_u32 v2, 60, v61
    v_add_u32 v2, {L_CNT}, v2
    ds_write_b32 v2, v56
    s_waitcnt vmcnt(11) lgkmcnt(0)
    s_barrier
    s_lshl_b32 s37, s29, 2
    s_add_u32 s37, s37, s31
    s_mul_i32 s37, s37, 800
    v_lshlrev_b32 v2, 3, v60
    buffer_load_dwordx2 v[52:53], v2, s[20:23], s37 offen
    buffer_load_dwordx2 v[54:55], v2, s[20:23], s37 offen offset:512
    {CALL}
    s_mov_b32 s40, s2
    s_mov_b32 s44, s31
    s_cmp_lt_u32 s31, 2
    s_cselect_b32 s58, 1, 0
    s_cbranch_scc1 F_wt_sel
    s_and_b32 s44, s2, 1
    s_lshr_b32 s40, s2, 1
    s_add_u32 s40, s40, 256
    s_cmp_eq_u32 s31, 2
    s_cselect_b32 s58, 1, 0
    s_cmp_lt_u32 s2, 32
    s_cselect_b32 s58, s58, 0
    F_wt_sel:
    s_mul_i32 s49, s31, 5120
    s_add_u32 s49, s49, {L_STG}
    v_mov_b32 v62, 0
    v_mov_b32 v63, 0
    s_waitcnt vmcnt(13)
    s_barrier
    s_cmp_eq_u32 s58, 0
    s_cbranch_scc1 F_wt_skip1
    """)
    t = Asm(); t.nlabel = 900
    wt_task(t, "s40", "s44", "s49", 60, SW2, SWO, "s[16:19]", "FW")
    txt = t.text()
    import re
    remap = {20: 62, 21: 63, 22: 23, 23: 24, 24: 25, 25: 26, 26: 27}
    txt = re.sub(r"\bv(2[0-6])\b", lambda m: f"v{remap[int(m.group(1))]}", txt)
    a(txt)
    a(f"""
    F_wt_skip1:
    {CALL}
    s_waitcnt vmcnt(11)
    s_barrier
    s_cmp_eq_u32 s58, 0
    s_cbranch_scc1 F_wt_skip2
    """)
    t = Asm(); wt_finish(t, "s[16:19]", SC)
    a(re.sub(r"\bv(2[01])\b", lambda m: f"v{remap[int(m.group(1))]}", t.text()))
    a(f"""
    F_wt_skip2:
    {CALL}
    s_cmp_eq_u32 s31, 3
    s_cbranch_scc0 F_ng_x
    s_mov_b32 s48, 0
    s_buffer_load_dword {NC}, {SDBG}, 0
    s_waitcnt lgkmcnt(0)
    s_cmp_eq_u32 {NC}, 0
    s_cbranch_scc0 F_ng_y
    F_ng:
    s_buffer_load_dword {NC}, {SDBG}, 0 glc
    s_add_u32 s48, s48, 1
    s_waitcnt lgkmcnt(0)
    s_cmp_ge_u32 s48, {TMO}
    s_cbranch_scc1 F_ng_y
    s_cmp_eq_u32 {NC}, 0
    s_cbranch_scc1 F_ng
    F_ng_y:
    v_mov_b32 v2, {NC}
    v_mov_b32 v3, {W_N}
    ds_write_b32 v3, v2
    s_waitcnt lgkmcnt(0)
    F_ng_x:
    s_waitcnt vmcnt(16)
    s_cmp_eq_u32 s58, 1
    s_cbranch_scc1 F_wt_skip3
    s_waitcnt vmcnt(11)
    F_wt_skip3:
    s_barrier
    {CALL}
    s_and_b32 s37, s31, 1
    s_mul_i32 s37, s37, {20*96 + 40}
    s_lshr_b32 s38, s31, 1
    s_mul_i32 s38, s38, 3840
    s_add_u32 s37, s37, s38
    s_add_u32 s37, s37, {L_BD}
    v_mul_u32_u24 v2, 205, v60
    v_lshrrev_b32 v2, 10, v2
    v_mul_u32_u24 v2, 56, v2
    v_lshl_add_u32 v2, v60, 3, v2
    v_add_u32 v2, s37, v2
    ds_write_b64 v2, v[52:53]
    v_add_u32 v3, 64, v60
    v_mul_u32_u24 v2, 205, v3
    v_lshrrev_b32 v2, 10, v2
    v_mul_u32_u24 v2, 56, v2
    v_lshl_add_u32 v2, v3, 3, v2
    v_add_u32 v2, s37, v2
    v_cmp_gt_u32 vcc, 36, v60
    s_and_saveexec_b64 s[48:49], vcc
    ds_write_b64 v2, v[54:55]
    s_mov_b64 exec, -1
    s_waitcnt vmcnt(11)
    s_barrier
    {CALL}
    s_cmp_eq_u32 s30, 1
    s_cbranch_scc1 F_ca1
    """)
    cols_addr(a, 0)
    a("s_branch F_ca2\nF_ca1:")
    cols_addr(a, 1)
    a(f"""
    F_ca2:
    s_waitcnt vmcnt(11)
    s_barrier
    {CALL}
    s_sub_u32 s37, s31, 1
    s_lshl_b32 s37, s37, 6
    v_add_u32 v2, s37, v60
    v_and_b32 v2, 127, v2
    v_lshlrev_b32 v45, 3, v2
    v_lshlrev_b32 v46, 7, v2
    v_and_b32 v7, 14, v2
    v_lshl_add_u32 v46, v7, 3, v46
    v_add_u32 v46, {2*SLOT}, v46
    v_xor_b32 v47, 16, v46
    v_lshlrev_b32 v48, 2, v2
    v_add_u32 v48, {L_RSTD}, v48
    v_mov_b32 v3, {W_N}
    ds_read_b32 v36, v3
    v_lshrrev_b32 v61, 2, v60
    v_lshlrev_b32 v61, 7, v61
    v_and_b32 v3, 3, v60
    v_lshl_add_u32 v61, v3, 4, v61
    s_mov_b32 s40, {FL_S}
    s_waitcnt vmcnt(11) lgkmcnt(0)
    s_barrier
    v_readfirstlane_b32 {NC}, v36
    v_mov_b32 v37, v36
    v_mov_b32 v38, v36
    v_mov_b32 v39, v36
    s_cmp_eq_u32 s31, 3
    s_cbranch_scc0 F_np
    buffer_load_dwordx4 v[36:39], v61, s[16:19], s40 offen sc1
    F_np:
    {CALL}
    s_mov_b32 s48, 0
    s_waitcnt vmcnt(11)
    F_poll:
    v_min3_u32 v2, v36, v37, v38
    v_max3_u32 v3, v36, v37, v38
    v_min_u32 v2, v2, v39
    v_max_u32 v3, v3, v39
    v_cmp_eq_u32 s[38:39], {NC}, v2
    v_cmp_eq_u32 vcc, {NC}, v3
    s_and_b64 vcc, vcc, s[38:39]
    s_add_u32 s48, s48, 1
    s_cmp_ge_u32 s48, {TMO}
    s_cbranch_scc1 F_pollx
    s_cmp_eq_u64 vcc, -1
    s_cbranch_scc1 F_pollx
    buffer_load_dwordx4 v[36:39], v61, s[16:19], s40 offen sc1
    s_waitcnt vmcnt(0)
    s_branch F_poll
    F_pollx:
    s_barrier
    s_cmp_eq_u32 s31, 0
    s_cbranch_scc1 F_ldc
    s_lshl_b32 s38, s28, 10
    buffer_load_dwordx2 v[64:65], v45, s[16:19], s38 offen sc1
    s_branch F_ldx
    F_ldc:
    s_mov_b32 s37, {WS_COLS}
    """)
    for i in range(8): a(f"buffer_load_dwordx4 {vr(64+4*i,4)}, v50, s[16:19], s37 offen sc1\ns_add_u32 s37, s37, {3456*4}")
    a(f"""
    buffer_load_dwordx2 v[52:53], v51, s[24:27], 0 offen
    F_ldx:
    {CALL}
    s_mov_b32 s39, 0xffff0000
    """)
    p2_ids(a, "s28", "s29")
    a("v_mov_b32 v14, v60")
    p2_setup(a, "s31", 14)
    a("s_waitcnt vmcnt(11)\ns_barrier")
    for i in range(4):
        for nt in range(5): a(ldW(i, nt, SC))
    a(f"""
    s_cmp_eq_u32 s31, 0
    s_cbranch_scc1 F_prc
    s_cmp_eq_u32 s31, 3
    s_cbranch_scc1 F_prx
    v_rcp_f32 v66, v65
    v_sub_f32 v64, 0, v64
    v_cvt_pk_bf16_f32 v68, v64, v64
    v_and_b32 v67, s39, v68
    v_sub_f32 v64, v64, v67
    v_cvt_pk_bf16_f32 v69, v64, v66
    v_and_b32 v67, s39, v69
    v_sub_f32 v66, v66, v67
    v_cvt_pk_bf16_f32 v70, v66, v56
    v_mov_b32 v71, 0
    ds_write_b128 v46, v[68:71]
    ds_write_b128 v47, v[56:59]
    ds_write_b32 v48, v65
    s_branch F_prx
    F_prc:
    """)
    for i in range(1, 8):
        for q in range(4): a(f"v_add_f32 v{64+q}, v{64+q}, v{64+4*i+q}")
    a("""
    v_cvt_pk_bf16_f32 v70, v64, v65
    v_cvt_pk_bf16_f32 v71, v66, v67
    v_lshlrev_b32 v72, 16, v70
    v_and_b32 v73, s39, v70
    v_lshlrev_b32 v74, 16, v71
    v_and_b32 v75, s39, v71
    v_sub_f32 v64, v64, v72
    v_sub_f32 v65, v65, v73
    v_sub_f32 v66, v66, v74
    v_sub_f32 v67, v67, v75
    v_cvt_pk_bf16_f32 v72, v64, v65
    v_cvt_pk_bf16_f32 v73, v66, v67
    v_cmp_gt_u32 vcc, 56, v60
    s_and_saveexec_b64 s[48:49], vcc
    ds_write_b64 v40, v[70:71]
    ds_write_b64 v41, v[72:73]
    ds_write_b64 v42, v[70:71]
    ds_write_b64 v43, v[52:53]
    ds_write_b64 v44, v[52:53]
    s_mov_b64 exec, -1
    F_prx:
    s_waitcnt vmcnt(20)
    s_barrier
    """)
    a(f"""
    v_lshlrev_b32 v1, 7, v14
    s_and_b32 s36, s28, 7
    s_lshl_b32 s36, s36, 2
    s_add_u32 s36, s36, s31
    s_lshl_b32 s36, s36, 13
    s_mul_i32 s37, s29, {68*5120}
    s_add_u32 s36, s36, s37
    s_add_u32 s36, s36, {WS_WT + 16*5120}
    """)
    if OPT["pfw"]: a("buffer_load_dword v15, v1, s[16:19], s36 offen sc1")
    p2_epi_addr(a, "s31", 14)
    a("s_waitcnt lgkmcnt(0)\ns_barrier")

class VM:
    def __init__(self, a): self.a = a; self.q = []
    def issue(self, tag, text): self.a(text); self.q.append(tag)
    def wait(self, tags, extra=""):
        last = max(i for i, t in enumerate(self.q) if t in tags)
        n = len(self.q) - 1 - last
        assert n < 64
        self.a(f"s_waitcnt vmcnt({n}){extra}")
OPT = dict(pfw=1, pfa=1, defer=1)
def phase2(a):
    a("F_p2:")
    stamp(a, 2)
    vm = VM(a)
    for i in range(4):
        for nt in range(5): vm.q.append(("W", i))
    if OPT["pfw"]: vm.q.append("pf")
    a("s_cmp_eq_u32 s31, 0\ns_cbranch_scc0 F_p2_wait")
    a(f"s_lshr_b32 s36, s28, 1\ns_lshl_b32 s36, s36, 11\ns_add_u32 s36, s36, {FL_H}\ns_mov_b64 s[38:39], 0xffff")
    poll(a, "s36", "s[38:39]", 14, va=10)
    setword(a, W_H, va=10)
    a("F_p2_wait:")
    a(f"""
    s_and_b32 s36, s29, 3
    s_lshl_b32 s37, s28, 2
    s_add_u32 s36, s36, s37
    s_mul_i32 s36, s36, {68*1024}
    s_lshl_b32 s37, s31, 13
    s_add_u32 s36, s36, s37
    s_add_u32 s36, s36, {WS_A2 + 16*1024}
    """)
    spin(a, W_H, 1, va=10)
    stamp(a, 3)
    for i in range(4):
        for m in range(4): vm.issue(("A", i), ldA(i, m, SC))
    if OPT["pfa"]: vm.issue("pf", "buffer_load_dword v15, v1, s[16:19], s36 offen sc1")
    xe = WR + 20
    for i in range(17):
        if i == (12 if OPT["defer"] else 8):
            stamp(a, 5)
            spin(a, W_O, 1, va=10)
            stamp(a, 6)
            if OPT["defer"]:
                for k in range(12, 17):
                    for m in range(4): vm.issue(("A", k), ldA(k, m, SC))
        vm.wait([("A", i), ("W", i)])
        if i == 0: stamp(a, 4)
        for nt in range(5):
            for m in range(4):
                d = vr(AC2 + 20*m + 4*nt, 4)
                a(f"v_mfma_f32_16x16x32_bf16 {d}, {vr(WR+20*(i%4)+4*nt,4)}, {vr(AR+16*(i%5)+4*m,4)}, {'0' if i == 0 else d}")
                if m == 1 and nt < 4 and i + 4 < (12 if OPT["defer"] else 17): vm.issue(("A", i + 4), ldA(i + 4, nt, SC))
            if i + 4 < 17: vm.issue(("W", i + 4), ldW(i + 4, nt, SC))
        if i == 13:
            for k, (n, o) in enumerate(((4, 0), (4, 16), (2, 32))):
                vm.issue("x", f"buffer_load_dwordx{n} {vr(xe+4*k,n)}, v8, s[4:7], s34 offen offset:{o}")
            for k, (n, o) in enumerate(((4, 0), (4, 16), (2, 32))):
                vm.issue("x", f"buffer_load_dwordx{n} {vr(xe+10+4*k,n)}, v9, {SB2}, s35 offen offset:{o}")
    stamp(a, 7)
    p2_final(a, "s31", 14, xe, 73728, SOUT)
    a("s_add_u32 s31, s31, 4")
    stamp_flush(a, 8, 1)
    a("s_endpgm")

def gen_f1():
    a = Asm()
    stamp(a, 0)
    srd(a, 4, 0, NB_X); srd(a, 8, 8, NB_WQKV); srd(a, 12, 40, NB_W1); srd(a, 16, 88, WS_END); srd(a, 20, 16, NB_WPHI); srd(a, 24, 48, NB_B1)
    srd(a, 60, 56, NB_W2); srd(a, 64, 24, NB_WO); srd(a, 68, 72, NB_X); srd(a, 72, 64, NB_B2); srd(a, 76, 80, 256)
    a(f"""
    s_cmp_ge_u32 s2, 256
    s_cbranch_scc1 F_end
    v_lshrrev_b32 v1, 6, v0
    v_and_b32 v60, 63, v0
    s_and_b32 s33, s2, 7                ; xcd
    v_readfirstlane_b32 s31, v1
    s_lshr_b32 s34, s2, 3               ; idx
    s_and_b32 s28, s33, 1
    s_lshl_b32 s28, s28, 3
    s_and_b32 s35, s34, 7
    s_add_u32 s28, s28, s35             ; rb
    s_lshr_b32 s35, s34, 3              ; jj
    s_lshr_b32 s30, s35, 1              ; type
    s_and_b32 s35, s35, 1
    s_and_b32 s29, s33, 6
    s_add_u32 s29, s29, s35             ; g
    s_mov_b32 s32, s33
    s_cmp_lt_u32 s31, 4
    s_cbranch_scc1 F_comp
    """)
    helper(a)
    phase2(a)
    issue_sub(a)
    a(f"""
    F_comp:
    s_lshl_b32 s33, s2, 2
    s_add_u32 s33, s33, s31
    s_cmp_eq_u32 s33, 3
    s_cbranch_scc0 F_nonce_x
    s_mov_b32 s34, {WS_NONCE}
    s_waitcnt lgkmcnt(0)
    s_buffer_load_dword s35, s[16:19], s34 glc
    v_mov_b32 v3, 0
    s_waitcnt lgkmcnt(0)
    s_add_u32 s35, s35, 1
    s_max_u32 s35, s35, 1
    v_mov_b32 v2, s35
    s_mov_b64 exec, 1
    buffer_store_dword v2, v3, {SDBG}, 0 offen sc1
    buffer_store_dword v2, v3, s[16:19], s34 offen sc1
    s_mov_b64 exec, -1
    F_nonce_x:
    """)
    phase0_issue(a)
    a(f"""
    v_lshrrev_b32 v61, 5, v60
    v_bfe_u32 v62, v60, 2, 2
    v_lshl_add_u32 v61, v61, 3, v62     ; 8hf + j
    v_and_b32 v62, 1, v60               ; c&1
    v_bfe_u32 v63, v60, 4, 1
    v_bfe_u32 v2, v60, 1, 1
    v_lshl_add_u32 v63, v63, 1, v2      ; 2gg + (c>>1)
    v_and_b32 v2, 31, v60
    s_lshl_b32 s43, s31, 5
    v_add_u32 v2, s43, v2
    v_lshrrev_b32 v3, 5, v60
    v_bfe_u32 v4, v2, 1, 3
    v_xor_b32 v3, v3, v4
    v_lshlrev_b32 v3, 4, v3
    v_lshl_add_u32 v{XA}, v2, 7, v3
    v_lshlrev_b32 v{RSTD}, 2, v2
    v_add_u32 v{RSTD}, {L_RSTD}, v{RSTD}
    v_add_u32 v{XA}, {SLOT}, v{XA}
    v_xor_b32 v{XA+1}, 32, v{XA}
    v_xor_b32 v{XA+2}, 64, v{XA}
    v_xor_b32 v{XA+3}, 96, v{XA}
    v_lshrrev_b32 v12, 5, v60
    v_cmp_eq_u32 vcc, v12, v62
    v_bfe_u32 v13, v60, 2, 2
    v_mul_u32_u24 v13, 96, v13
    v_cndmask_b32 v12, 2, v12, vcc
    v_mul_u32_u24 v12, 3840, v12
    v_lshl_add_u32 v13, v63, 3, v13
    v_add_u32 v{BDA}, v12, v13
    v_add_u32 v{BDA}, {L_BD}, v{BDA}
    s_cmp_eq_u32 s30, 1
    s_cbranch_scc1 F_as1
    """)
    addr_setup(a, 0)
    a("s_branch F_as2\nF_as1:")
    addr_setup(a, 1)
    a("F_as2:")
    for i in range(112): a(f"v_mov_b32 v{ACC+i}, 0")
    phase0_finish(a)
    flag_addrs(a)
    a(f"""
    s_waitcnt lgkmcnt(0)
    s_mov_b32 s40, 0
    s_mov_b32 s42, 1
    s_mov_b32 s45, {SLOT}
    s_cmp_eq_u32 s30, 1
    s_cbranch_scc1 F_c1
    """)
    compute(a, 0)
    compute(a, 1)
    fin(a)
    a("F_end:\ns_endpgm")
    return a.text()

def build():
    t = gen_f1()
    for e in check_hazards(t): print(e)
    return file_text([f"; @launch grid=(256,1,1) block=(512,1,1) lds={F_LDS}"], [(NAME + "_kernel", t, 256, 102, 256)])
if __name__ == "__main__":
    for arg in list(sys.argv[1:]):
        if "=" in arg:
            k, v = arg.split("="); OPT[k] = int(v); sys.argv.remove(arg)
    out = sys.argv[1] if len(sys.argv) > 1 else f"cdna_kernels/{NAME}.s"
    open(out, "w").write(build())
```

```python
import sys
sys.path.insert(0, "gen")
import asmlib
if "--stamps" in sys.argv: asmlib.STAMPS = True; sys.argv.remove("--stamps")
from asmlib import *
from layout import *
from k0 import srd, dpp_add
from k1 import ACC, SET, XA, QA, HA, RSTD, BDA, LOG2E, tile_reads, mfma_step, softmax
from k2b import wt_task, wt_finish, p2_setup, p2_epi_addr, p2_final, AR, WR, AC2
import k2b
NS = {0: " sc1", 1: "", 2: " nt", 3: " sc0"}
def ldA(i, m, sc): return k2b.ldA(i, m, NS[OPT['nsa']])
def ldW(i, nt, sc): return k2b.ldW(i, nt, NS[OPT['nsw']])
SC = " sc1"
SW2, SWO, SOUT, SB2, SDBG = "s[60:63]", "s[64:67]", "s[68:71]", "s[72:75]", "s[76:79]"
C_H, C_PV, W_K2, W_KV, C_OB, C_O, W_H, W_O, W_N = [L_CNT + 4*i for i in range(9)]
FL_S = WS_FLAG + 0x2000
WS_NONCE = WS_FLAG + 0x4000
NC = "s53"
TMO = 1 << 18
OPT = dict(pfw=0, pfa=0, defer=1, pf1=0, w8=8, w9=14, prio=0, nla=4, nlb=7, spoll=0, hfa=1, la=4, gh=1, ga=1, gb=1, dg=0, nsa=0, nsw=0)
def dstamp(a, i):
    if OPT['dg']: stamp(a, i)
PVB = 40960

def arrive(a, off, va=1):
    a(f"""
    v_mov_b32 v{va}, 1
    v_mov_b32 v{va+1}, {off}
    s_mov_b64 exec, 1
    ds_add_rtn_u32 v{va+2}, v{va+1}, v{va}
    s_waitcnt lgkmcnt(0)
    s_mov_b64 exec, -1
    v_readfirstlane_b32 s47, v{va+2}
    """)
def signal(a, off, va=1):
    a(f"v_mov_b32 v{va}, 1\nv_mov_b32 v{va+1}, {off}\ns_mov_b64 exec, 1\nds_add_u32 v{va+1}, v{va}\ns_mov_b64 exec, -1")
def spin(a, off, val, va=1):
    L = a.label("spin")
    a(f"""
    v_mov_b32 v{va+1}, {off}
    s_mov_b32 s48, 0
    {L}:
    ds_read_b32 v{va+2}, v{va+1}
    s_add_u32 s48, s48, 1
    s_waitcnt lgkmcnt(0)
    v_readfirstlane_b32 s47, v{va+2}
    s_cmp_ge_u32 s48, {TMO}
    s_cbranch_scc1 {L}_x
    s_cmp_lt_u32 s47, {val}
    s_cbranch_scc1 {L}
    {L}_x:
    """)
def setword(a, off, va=1):
    a(f"v_mov_b32 v{va}, 1\nv_mov_b32 v{va+1}, {off}\nds_write_b32 v{va+1}, v{va}\ns_waitcnt lgkmcnt(0)")
def flag_store(a, soff, va=1):
    a(f"v_mov_b32 v{va}, {NC}\nv_mov_b32 v{va+1}, 0\ns_mov_b64 exec, 1\nbuffer_store_dword v{va}, v{va+1}, s[16:19], {soff} offen sc1\ns_mov_b64 exec, -1")
def poll(a, soff, mask, lane, va=1):
    L = a.label("poll")
    a(f"""
    v_lshlrev_b32 v{va}, 7, v{lane}
    s_mov_b32 s48, 0
    s_mov_b64 exec, {mask}
    {L}:
    buffer_load_dword v{va+1}, v{va}, s[16:19], {soff} offen sc1
    s_add_u32 s48, s48, 1
    s_waitcnt vmcnt(0)
    v_cmp_eq_u32 vcc, {NC}, v{va+1}
    s_cmp_ge_u32 s48, {TMO}
    s_cbranch_scc1 {L}_x
    s_cmp_eq_u64 vcc, {mask}
    s_cbranch_scc0 {L}
    {L}_x:
    s_mov_b64 exec, -1
    """)

def spoll(a, soff, regs):
    L = a.label("spoll")
    a(f"s_mov_b32 s48, 0\n{L}:")
    for i, r in enumerate(regs): a(f"s_buffer_load_dword s{r}, s[16:19], {soff} offset:{128*i} glc")
    a(f"s_add_u32 s48, s48, 1\ns_cmp_ge_u32 s48, {TMO}\ns_waitcnt lgkmcnt(0)\ns_cbranch_scc1 {L}_x")
    for r in regs: a(f"s_cmp_eq_u32 s{r}, {NC}\ns_cbranch_scc0 {L}")
    a(f"{L}_x:")

def p2_ids(a, rg, cg):
    a(f"""
    s_and_b32 s36, s2, 7
    s_lshr_b32 s37, s2, 3
    s_lshr_b32 {rg}, s36, 1
    s_lshl_b32 {rg}, {rg}, 3
    s_and_b32 s38, s37, 7
    s_add_u32 {rg}, {rg}, s38
    s_and_b32 {cg}, s36, 1
    s_lshl_b32 {cg}, {cg}, 2
    s_lshr_b32 s38, s37, 3
    s_add_u32 {cg}, {cg}, s38
    """)

def phase0_issue(a):
    a(f"""
    s_cmp_ge_u32 s31, 2
    s_cbranch_scc1 P0_cols
    s_lshl_b32 s33, s2, 3
    s_lshl_b32 s34, s31, 2
    s_add_u32 s33, s33, s34
    v_lshrrev_b32 v65, 4, v60
    v_add_u32 v65, s33, v65
    v_and_b32 v66, 15, v60
    v_mul_u32_u24 v64, 1280, v65
    v_lshl_add_u32 v64, v66, 4, v64
    s_waitcnt lgkmcnt(0)
    """)
    for i in range(5): a(f"buffer_load_dwordx4 {vr(80+4*i,4)}, v64, s[4:7], 0 offen offset:{256*i}")
    a(f"""
    s_branch P0_issued
    P0_cols:
    s_cmp_ge_u32 s2, 216
    s_cbranch_scc1 P0_issued
    s_lshr_b32 s33, s2, 2            ; line
    s_and_b32 s34, s2, 3
    s_lshl_b32 s34, s34, 1
    s_add_u32 s34, s34, s31
    s_sub_u32 s34, s34, 2            ; part 0..7
    s_mul_i32 s35, s34, 80
    v_lshrrev_b32 v76, 3, v60
    v_add_u32 v76, s35, v76
    v_and_b32 v77, 7, v60
    v_lshlrev_b32 v77, 4, v77
    s_cmp_ge_u32 s33, 30
    s_cbranch_scc1 P0_w1
    s_lshl_b32 s36, s33, 7
    v_mul_u32_u24 v76, 3840, v76
    v_add_u32 v76, v76, v77
    s_waitcnt lgkmcnt(0)
    """)
    for i in range(10): a(f"buffer_load_dwordx4 {vr(80+4*i,4)}, v76, s[8:11], s36 offen\ns_add_u32 s36, s36, {8*3840}")
    a("""
    s_branch P0_issued
    P0_w1:
    s_sub_u32 s36, s33, 30
    s_lshl_b32 s36, s36, 7
    v_mul_u32_u24 v76, 3072, v76
    v_add_u32 v76, v76, v77
    s_waitcnt lgkmcnt(0)
    """)
    for i in range(10): a(f"buffer_load_dwordx4 {vr(80+4*i,4)}, v76, s[12:15], s36 offen\ns_add_u32 s36, s36, {8*3072}")
    a("P0_issued:")

def phase0_finish(a):
    a(f"""
    s_cmp_ge_u32 s31, 2
    s_cbranch_scc1 P0_fcols
    s_mov_b32 s37, 0xffff0000
    """)
    U = 100
    for i in range(5):
        a(f"s_waitcnt vmcnt({4-i+(3 if OPT['pf1'] == 1 else 0)})")
        for q in range(4):
            r = 80 + 4*i + q
            a(f"v_lshlrev_b32 v{U+2*(4*i+q)}, 16, v{r}\nv_and_b32 v{U+1+2*(4*i+q)}, s37, v{r}")
    a(f"v_pk_add_f32 v[68:69], {vr(U,2)}, {vr(U+2,2)}\nv_pk_add_f32 v[70:71], {vr(U+4,2)}, {vr(U+6,2)}")
    for i in range(4, 20, 2):
        a(f"v_pk_add_f32 v[68:69], v[68:69], {vr(U+2*i,2)}\nv_pk_add_f32 v[70:71], v[70:71], {vr(U+2+2*i,2)}")
    a("v_pk_add_f32 v[68:69], v[68:69], v[70:71]\nv_add_f32 v68, v68, v69")
    for ror in (8, 4, 2, 1): dpp_add(a, 68, 68, ror)
    a("v_mul_f32 v68, 0x3acccccd, v68")
    for i in range(20): a(f"v_pk_add_f32 {vr(U+2*i,2)}, {vr(U+2*i,2)}, v[68:69] op_sel_hi:[1,0] neg_lo:[0,1] neg_hi:[0,1]")
    a(f"v_pk_mul_f32 v[70:71], {vr(U,2)}, {vr(U,2)}\nv_pk_mul_f32 v[72:73], {vr(U+2,2)}, {vr(U+2,2)}")
    for i in range(2, 20, 2):
        a(f"v_pk_fma_f32 v[70:71], {vr(U+2*i,2)}, {vr(U+2*i,2)}, v[70:71]\nv_pk_fma_f32 v[72:73], {vr(U+2+2*i,2)}, {vr(U+2+2*i,2)}, v[72:73]")
    a("v_pk_add_f32 v[70:71], v[70:71], v[72:73]\nv_add_f32 v69, v70, v71")
    for ror in (8, 4, 2, 1): dpp_add(a, 69, 69, ror)
    a(f"""
    v_mov_b32 v70, 0x3727c5ac
    v_fmac_f32 v70, 0x3acccccd, v69
    v_rsq_f32 v69, v70
    v_lshlrev_b32 v65, 3, v65
    v_cmp_eq_u32 vcc, 0, v66
    s_and_saveexec_b64 s[48:49], vcc
    s_nop 1
    buffer_store_dwordx2 v[68:69], v65, s[16:19], 0 offen sc1
    s_mov_b64 exec, -1
    s_branch P0_done
    P0_fcols:
    s_cmp_ge_u32 s2, 216
    s_cbranch_scc1 P0_done
    v_and_b32 v68, 15, v60
    v_and_b32 v69, 1, v60
    v_lshlrev_b32 v69, 4, v69
    v_mov_b32 v70, 0x3f80
    v_lshlrev_b32 v69, v69, v70
    v_lshrrev_b32 v68, 1, v68
    """)
    for q in range(4): a(f"v_cmp_eq_u32 vcc, {q}, v68\ns_nop 1\nv_cndmask_b32 v{64+q}, 0, v69, vcc")
    a("s_nop 1")
    for i in range(10):
        a(f"s_waitcnt vmcnt({9-i+(3 if OPT['pf1'] == 1 else 0)})")
        a(f"v_mfma_f32_16x16x32_bf16 v[68:71], v[64:67], {vr(80+4*i,4)}, {'0' if i == 0 else 'v[68:71]'}")
    a(f"""
    s_mul_i32 s36, s34, {3456*4}
    s_lshl_b32 s35, s33, 8
    s_add_u32 s36, s36, s35
    s_add_u32 s36, s36, {WS_COLS}
    v_and_b32 v76, 7, v60
    v_lshlrev_b32 v76, 5, v76
    v_and_b32 v77, 16, v60
    v_add_u32 v76, v76, v77
    v_and_b32 v77, 40, v60
    """)
    for q in range(4): dpp_add(a, 72+q, 68+q, 8)
    a(f"""
    v_cmp_eq_u32 vcc, 0, v77
    s_and_saveexec_b64 s[48:49], vcc
    s_nop 1
    buffer_store_dwordx4 v[72:75], v76, s[16:19], s36 offen sc1
    s_mov_b64 exec, -1
    P0_done:
    """)

def l2_prefetch(a):
    a(f"""
    s_lshr_b32 s46, s2, 3               ; idx
    s_cmp_ge_u32 s31, 2
    s_cbranch_scc1 PF_w
    s_and_b32 s47, s2, 1
    s_lshl_b32 s47, s47, 5
    s_add_u32 s47, s47, s46
    s_mul_i32 s47, s47, {32*1280}
    v_and_b32 v20, 31, v60
    v_mul_u32_u24 v20, 1280, v20
    v_lshrrev_b32 v21, 5, v60
    s_lshl_b32 s48, s31, 1
    s_add_u32 s48, s48, s32
    s_add_u32 s48, s48, 2
    v_add_u32 v21, s48, v21
    """)
    for j in range(2):
        a(f"""
        v_add_u32 v22, {4*j}, v21
        v_subrev_u32 v23, 10, v22
        v_min_u32 v22, v22, v23
        v_lshl_add_u32 v22, v22, 7, v20
        buffer_load_dword v{16+j}, v22, s[4:7], s47 offen
        """)
    a(f"""
    buffer_load_dword v18, v22, s[4:7], s47 offen
    s_branch PF_x
    PF_w:
    s_lshr_b32 s47, s29, 1              ; pair
    s_add_u32 s48, s32, 2
    s_cmp_eq_u32 s31, 3
    s_cbranch_scc1 PF_w1
    s_mul_i32 s47, s47, 320
    s_and_b32 s47, s47, 0xffffff80
    s_mul_i32 s46, s46, {2*3840}
    s_add_u32 s47, s47, s46
    """)
    for j in range(3):
        a(f"""
        v_add_u32 v20, {64*j}, v60
        v_min_u32 v20, 143, v20
        v_mul_u32_u24 v21, 57, v20
        v_lshrrev_b32 v21, 9, v21           ; r = n / 9
        v_mul_u32_u24 v22, 9, v21
        v_sub_u32 v20, v20, v22             ; l
        v_mul_u32_u24 v22, 11, v20
        v_lshrrev_b32 v22, 5, v22           ; seg = l / 3
        v_mul_u32_u24 v22, {1280 - 384}, v22
        v_lshl_add_u32 v20, v20, 7, v22
        v_lshrrev_b32 v22, 1, v21
        v_add_u32 v22, s48, v22
        v_subrev_u32 v23, 10, v22
        v_min_u32 v22, v22, v23             ; chunk
        v_and_b32 v21, 1, v21
        v_lshl_add_u32 v21, v22, 6, v21
        v_mad_u32_u24 v20, v21, v24, v20
        buffer_load_dword v{16+j}, v20, s[8:11], s47 offen
        """.replace("v_add_u32 v20, 0, v60", "v_mov_b32 v24, 3840\nv_mov_b32 v20, v60"))
    a(f"""
    s_branch PF_x
    PF_w1:
    s_mul_i32 s46, s46, {2*3072}
    s_lshl_b32 s49, s47, 9
    s_add_u32 s46, s46, s49
    s_lshl_b32 s47, s47, 8
    s_sub_u32 s47, {2048 - 512}, s47
    v_mov_b32 v24, 3072
    """)
    for j in range(2):
        a(f"""
        v_add_u32 v20, {64*j}, v60
        v_min_u32 v20, 95, v20
        v_mul_u32_u24 v21, 43, v20
        v_lshrrev_b32 v21, 8, v21           ; r = n / 6
        v_mul_u32_u24 v22, 6, v21
        v_sub_u32 v20, v20, v22             ; l
        v_lshrrev_b32 v22, 2, v20
        v_mul_u32_u24 v22, s47, v22
        v_lshl_add_u32 v20, v20, 7, v22
        v_lshrrev_b32 v22, 1, v21
        v_add_u32 v22, s48, v22
        v_subrev_u32 v23, 10, v22
        v_min_u32 v22, v22, v23             ; chunk
        v_and_b32 v21, 1, v21
        v_lshl_add_u32 v21, v22, 6, v21
        v_mad_u32_u24 v20, v21, v24, v20
        buffer_load_dword v{16+j}, v20, s[12:15], s46 offen
        """)
    a("buffer_load_dword v18, v20, s[12:15], s46 offen\nPF_x:")

def flag_addrs(a):
    a(f"""
    s_lshl_b32 s50, s28, 11
    s_lshl_b32 s55, s30, 3
    s_add_u32 s55, s55, s29
    s_lshl_b32 s55, s55, 7
    s_add_u32 s50, s50, s55
    s_add_u32 s50, s50, {FL_H}
    s_lshl_b32 s51, s29, 11
    s_lshl_b32 s55, s28, 7
    s_add_u32 s51, s51, s55
    s_add_u32 s51, s51, {FL_KV}
    s_lshl_b32 s52, s28, 10
    s_lshl_b32 s55, s29, 7
    s_add_u32 s52, s52, s55
    s_add_u32 s52, s52, {FL_O}
    s_cmp_eq_u32 s30, 1
    s_cselect_b32 s51, s52, s51
    s_lshr_b32 s54, s2, 4
    s_lshl_b32 s54, s54, 7
    s_and_b32 s55, s2, 15
    s_lshl_b32 s55, s55, 2
    s_add_u32 s54, s54, s55
    s_add_u32 s54, s54, {FL_S}
    """)

def compute(a, typ):
    L = f"F_c{typ}"
    nh = 2 if typ == 0 else 4
    a(f"{L}:\ns_barrier")
    stamp(a, 1)
    for r in tile_reads(typ, 0, SET[0]): a(r)
    a(f"{L}_loop:")
    for s in range(4):
        if s < 3:
            a("s_waitcnt lgkmcnt(0)")
            fill = tile_reads(typ, s + 1, SET[(s + 1) % 2])
            if s == 2:
                fill += [f"s_cmp_eq_u32 s42, 2", f"s_cselect_b32 s41, {-2*SLOT}, s45", "s_add_u32 s42, s42, 1", "s_cmp_eq_u32 s42, 3", "s_cselect_b32 s42, 0, s42", "s_bitcmp1_b32 5, s40"]
        else:
            a(f"s_cbranch_scc1 {L}_it2\ns_waitcnt lgkmcnt(0)\ns_barrier\n{L}_it2r:")
            rd = tile_reads(typ, 0, SET[0])
            up = lambda r: f"v_add_u32 v{r}, s41, v{r}"
            fill = [up(XA), up(QA)] + rd[:3] + [up(HA + i) for i in range(nh)] + rd[3:6] + [up(XA + 1), up(XA + 2), up(XA + 3)] + rd[6:]
            fill += ["s_add_u32 s40, s40, 1", "s_cmp_lt_u32 s40, 10"]
        mfma_step(a, SET[s % 2], fill)
    a(f"s_cbranch_scc1 {L}_loop")
    if OPT['prio']: a("s_setprio 3")
    stamp(a, 2)
    fill = [f"ds_read_b32 v{RSTD}, v{RSTD}"]
    BD = 16
    bdr = {}
    order = [(0,0),(1,0),(0,1),(1,1),(2,2),(0,2),(1,2),(2,3),(1,3),(2,4),(1,4)]
    for n, (T, u) in enumerate(order):
        bdr[(T, u)] = BD + 4*n
        for uu in range(2): fill.append(f"ds_read_b64_tr_b16 {vr(BD+4*n+2*uu,2)}, v{BDA} offset:{(8*u+4*uu)*96 + T*32}")
    a("s_waitcnt lgkmcnt(0)")
    mfma_step(a, SET[0], fill, per=4)
    BF = 112; P = 64
    for i in range(20): a(f"v_cvt_pk_bf16_f32 v{BF+i}, v{ACC+2*i}, v{ACC+2*i+1}")
    a("s_waitcnt lgkmcnt(0)\ns_barrier")
    hb = ACC + (80 if typ == 0 else 48)
    npair = 4 if typ == 0 else 8
    va = [f"v_mul_f32 v12, {LOG2E}, v{RSTD}", f"v_mul_f32 v14, v{RSTD}, v{RSTD}"]
    for m in range(npair):
        b = hb + 8*m
        for i in range(8): va.append(f"v_max_f32 v{b+i}, 0, v{b+i}")
        for i in range(4): va.append(f"v_pk_mul_f32 {vr(136+2*i,2)}, {vr(b+2*i,2)}, v[14:15] op_sel_hi:[1,0]")
        for i in range(4): va.append(f"v_pk_mul_f32 {vr(b+2*i,2)}, {vr(136+2*i,2)}, {vr(b+2*i,2)}")
        for i in range(4): va.append(f"v_cvt_pk_bf16_f32 v{b+i}, v{b+2*i}, v{b+2*i+1}")
        va.append(f"buffer_store_dwordx4 {vr(b,4)}, v15, s[16:19], s43 offen offset:{(m>>1)*1024 + (m&1)*512} sc1")
    if typ == 0:
        vb = ACC + 40
        for i in range(20):
            va += [f"v_pk_mul_f32 {vr(vb+2*i,2)}, {vr(vb+2*i,2)}, {vr(RSTD,2)} op_sel_hi:[1,0]", f"v_cvt_pk_bf16_f32 v{vb+i}, v{vb+2*i}, v{vb+2*i+1}"]
        for i in range(5): va.append(f"ds_write_b128 v8, {vr(vb+4*i,4)} offset:{320+16*i}")
        va += ["v_mov_b32 v2, 0x3f80", "v_mov_b32 v3, 0", "ds_write_b64 v0, v[2:3] offset:480"]
    k = 0
    seen = set()
    for n, (T, u) in enumerate(order):
        d = vr(P + 16*T, 16)
        a(f"v_mfma_f32_32x32x16_bf16 {d}, {vr(bdr[(T,u)],4)}, {vr(BF+4*u,4)}, {d if T in seen else '0'}")
        seen.add(T)
        if n >= 2:
            for _ in range(6):
                if k < len(va): a(va[k]); k += 1
    while k < len(va): a(va[k]); k += 1
    stamp(a, 3)
    def hflag():
        a("s_waitcnt vmcnt(0)")
        arrive(a, C_H)
        a(f"s_cmp_eq_u32 s47, 3\ns_cbranch_scc0 {L}_nohf")
        flag_store(a, "s50")
        a(f"{L}_nohf:")
    if typ == 0:
        if OPT['hfa']: hflag()
        softmax(a, P, ACC, list(range(16, 26)), list(range(26, 36)))
        if not OPT['hfa']: hflag()
        for i in range(5): a(f"ds_write_b128 v9, {vr(16+4*i,4)} offset:{16*i}")
        softmax(a, P + 20, ACC + 20, list(range(36, 46)), list(range(46, 56)))
        stamp(a, 4)
        for i in range(5, 10): a(f"ds_write_b128 v9, {vr(16+4*i,4)} offset:{16*i}")
        signal(a, C_PV)
        dstamp(a, 1)
        spin(a, C_PV, 4)
        dstamp(a, 2)
        for st in range(8):
            for u in range(2):
                off = u*4*PV_PITCH + st*16*PV_PITCH
                a(f"ds_read_b64_tr_b16 {vr(64+12*st+2*u,2)}, v61 offset:{off}\nds_read_b64_tr_b16 {vr(68+12*st+2*u,2)}, v61 offset:{off+40}\nds_read_b64_tr_b16 {vr(72+12*st+2*u,2)}, v62 offset:{off}")
            if st >= 2:
                a("s_waitcnt lgkmcnt(12)")
                for sg in range(2):
                    d = vr(160 + 16*sg, 16)
                    a(f"v_mfma_f32_32x32x16_bf16 {d}, {vr(64+12*(st-2)+4*sg,4)}, {vr(72+12*(st-2),4)}, {'0' if st == 2 else d}")
        for st in range(6, 8):
            a(f"s_waitcnt lgkmcnt({42-6*st})")
            for sg in range(2):
                d = vr(160 + 16*sg, 16)
                a(f"v_mfma_f32_32x32x16_bf16 {d}, {vr(64+12*st+4*sg,4)}, {vr(72+12*st,4)}, {d}")
        dstamp(a, 3)
        a("s_mov_b32 exec_lo, 0x1fffff\ns_mov_b32 exec_hi, 0x1fffff\ns_nop 7\ns_nop 2")
        for sg in range(2):
            for i in range(4): a(f"v_cvt_pk_bf16_f32 v{200+4*sg+i}, v{160+16*sg+2*i}, v{161+16*sg+2*i}")
            for i in range(2): a(f"v_cvt_pk_bf16_f32 v{208+2*sg+i}, v{168+16*sg+2*i}, v{169+16*sg+2*i}")
            a(f"buffer_store_dwordx4 {vr(200+4*sg,4)}, v63, s[16:19], s56 offen offset:{672*sg} sc1")
        a("s_mov_b32 exec_hi, 0")
        a(f"buffer_store_dwordx4 v[208:211], v63, s[16:19], s56 offen offset:1344 sc1")
        a("s_mov_b64 exec, -1\ns_branch F_fin")
    else:
        for hh in range(2):
            o = 16 + 20*hh
            softmax(a, P + 20*hh, ACC + 20*hh, [o+i for i in range(8)] + [o+16, o+17], [o+8+i for i in range(8)] + [o+18, o+19])
            if hh == 0: hflag()
        stamp(a, 4)
        otask(a)
    a(f"""
    {L}_it2:
    s_cmp_eq_u32 s40, 0
    s_cbranch_scc1 {L}_it0
    v_mov_b32 v13, {W_N}
    ds_read_b32 v12, v13
    s_waitcnt vmcnt(0) lgkmcnt(0)
    s_barrier
    v_readfirstlane_b32 {NC}, v12
    s_cmp_eq_u32 s31, 0
    s_cbranch_scc0 {L}_it2r
    v_mov_b32 v13, 0
    s_mov_b64 exec, 1
    buffer_store_dword v12, v13, s[16:19], s54 offen sc1
    s_mov_b64 exec, -1
    s_branch {L}_it2r
    {L}_it0:
    """)
    if typ == 0:
        a("""
        v_lshlrev_b32 v13, 4, v60
        buffer_store_dwordx4 v[16:19], v13, s[16:19], s56 offen sc1
        v_cmp_gt_u32 vcc, 41, v60
        s_mov_b64 exec, vcc
        buffer_store_dwordx4 v[16:19], v13, s[16:19], s56 offen offset:1024 sc1
        s_mov_b64 exec, -1
        """)
    else:
        for p in range(0, 10, 2): a(f"buffer_store_dwordx4 v[16:19], v15, s[16:19], s56 offen offset:{256*p} sc1")
    a(f"s_waitcnt lgkmcnt(0)\ns_barrier\ns_branch {L}_it2r")

def addr_setup(a, typ):
    nh = 2 if typ == 0 else 4
    a(f"""
    v_mul_u32_u24 v{QA}, {QP[typ]}, v61
    v_mul_u32_u24 v14, {QP[typ]//2}, v62
    v_lshlrev_b32 v15, 3, v63
    v_add3_u32 v{QA}, v{QA}, v14, v15
    v_add_u32 v{QA}, {QB + SLOT}, v{QA}
    v_lshlrev_b32 v{HA}, {7 if typ == 0 else 8}, v61
    v_and_b32 v14, 16, v60
    v_lshlrev_b32 v14, 1, v14
    v_lshl_add_u32 v14, v62, 4, v14
    v_and_b32 v15, 2, v60
    v_lshl_add_u32 v14, v15, 2, v14
    v_add_u32 v{HA}, v{HA}, v14
    v_add_u32 v{HA}, {HB[typ] + SLOT}, v{HA}
    """)
    if typ == 0: a(f"v_and_b32 v14, 8, v60\nv_lshl_add_u32 v{HA}, v14, 3, v{HA}")
    else:        a(f"v_and_b32 v14, 12, v60\nv_lshl_add_u32 v{HA}, v14, 4, v{HA}")
    for i in range(1, nh): a(f"v_xor_b32 v{HA+i}, {64*i}, v{HA}")
    a(f"""
    s_lshl_b32 s43, s28, 3
    s_lshl_b32 s44, s31, 1
    s_add_u32 s43, s43, s44
    s_mul_i32 s43, s43, {68*1024}
    s_mul_i32 s56, s29, 2560
    s_add_u32 s56, s56, s43
    s_add_u32 s56, s56, {WS_A2 + 192*256}
    s_lshl_b32 s44, s29, {11 if typ == 0 else 12}
    s_add_u32 s43, s43, s44
    s_add_u32 s43, s43, {WS_A2 + (32*1024 if typ == 0 else 0)}
    v_and_b32 v15, 16, v60
    v_mul_u32_u24 v15, {68*64}, v15
    v_and_b32 v13, 15, v60
    v_lshl_add_u32 v15, v13, 4, v15
    v_and_b32 v13, 32, v60
    v_lshl_add_u32 v15, v13, 3, v15
    v_mov_b32 v16, -1
    v_mov_b32 v17, -1
    v_mov_b32 v18, -1
    v_mov_b32 v19, -1
    """)
    if typ == 0:
        a(f"""
        v_and_b32 v0, 31, v60
        s_lshl_b32 s44, s31, 5
        v_lshrrev_b32 v13, 5, v60
        v_mul_u32_u24 v63, 336, v13
        v_lshl_add_u32 v63, v0, 4, v63
        v_add_u32 v0, s44, v0
        v_mul_u32_u24 v0, {PV_PITCH}, v0
        v_add_u32 v0, {PVB}, v0
        v_mul_u32_u24 v13, 80, v13
        v_add_u32 v8, v0, v13
        v_add_u32 v9, v8, v13
        v_mul_u32_u24 v20, {PV_PITCH}, v61
        v_add_u32 v20, {PVB}, v20
        v_bfe_u32 v21, v60, 1, 1
        v_lshl_add_u32 v21, v62, 1, v21
        v_and_b32 v22, 16, v60
        v_cmp_eq_u32 vcc, 0, v22
        s_mul_i32 s44, s31, 80
        s_and_b32 s46, s31, 1
        v_cndmask_b32 v21, 4, v21, vcc
        v_lshl_add_u32 v61, v21, 3, v20
        v_add_u32 v61, s44, v61
        v_add_u32 v21, s46, v21
        v_cmp_eq_u32 vcc, 5, v21
        s_mul_i32 s44, s31, 40
        s_add_u32 s44, s44, 320
        v_cndmask_b32 v21, v21, 0, vcc
        v_lshl_add_u32 v21, v21, 3, s44
        v_and_b32 v22, 19, v60
        v_cmp_lt_u32 vcc, 16, v22
        v_mov_b32 v23, 480
        s_lshl_b32 s56, s29, 2
        s_add_u32 s56, s56, s31             ; head
        v_cndmask_b32 v21, v21, v23, vcc
        v_add_u32 v62, v21, v20             ; B address
        s_lshl_b32 s56, s56, 4
        s_add_u32 s56, s56, s28
        s_mul_i32 s56, s56, 1792
        s_add_u32 s56, s56, {WS_KVP}
        """)

def otask(a):
    for hh in range(2):
        for sg in range(2):
            for q in range(4): a(f"v_permlane32_swap_b32 v{16+20*hh+8*sg+q}, v{20+20*hh+8*sg+q}")
    a(f"""
    v_lshrrev_b32 v3, 4, v60
    v_mul_u32_u24 v4, 1792, v3
    v_and_b32 v5, 15, v60
    v_lshl_add_u32 v4, v5, 4, v4
    v_lshlrev_b32 v12, 7, v5
    s_lshl_b32 s45, s29, 11
    s_add_u32 s45, s45, {FL_KV}
    s_lshl_b32 s33, s29, 2
    s_add_u32 s33, s33, s31
    s_mul_i32 s33, s33, {16*1792}
    s_add_u32 s33, s33, {WS_KVP}
    v_and_b32 v6, 1, v60
    v_lshlrev_b32 v6, 4, v6
    v_mov_b32 v7, 0x3f80
    v_lshlrev_b32 v6, v6, v7
    v_lshrrev_b32 v7, 1, v5
    """)
    for q in range(4): a(f"v_cmp_eq_u32 vcc, {q}, v7\ns_nop 1\nv_cndmask_b32 v{56+q}, 0, v6, vcc")
    a(f"""
    s_mul_i32 s34, s31, 1792
    s_add_u32 s34, s34, {L_STG}
    v_lshlrev_b32 v5, 4, v5
    v_bfe_u32 v6, v60, 4, 1
    v_lshl_add_u32 v5, v6, 3, v5
    v_add_u32 v5, s34, v5
    v_and_b32 v6, 31, v60
    v_min_u32 v6, 20, v6
    v_lshrrev_b32 v7, 5, v60
    v_mul_u32_u24 v8, 336, v7
    v_lshlrev_b32 v6, 4, v6
    v_add_u32 v6, {L_STG}, v6
    v_add_u32 v8, v8, v6
    v_add_u32 v6, 1344, v6
    v_mov_b32 v9, {L_BD + 2*3840 + 1024}
    v_cmp_gt_u32 vcc, 32, v60
    v_add_u32 v10, {2*1792}, v6
    s_mov_b32 s38, 0x01ff01ff
    s_mov_b32 s39, 0x01ff01ff
    v_cndmask_b32 v6, v9, v6, vcc
    v_cndmask_b32 v10, v10, v9, vcc
    s_cmp_eq_u32 s31, 0
    s_cbranch_scc0 F_o1w
    s_mov_b32 s48, 0
    s_mov_b64 exec, 0xffff
    F_o1:
    buffer_load_dword v3, v12, s[16:19], s45 offen sc1
    s_add_u32 s48, s48, 1
    s_waitcnt vmcnt(0)
    v_cmp_eq_u32 vcc, {NC}, v3
    s_mov_b32 s47, 3
    s_cmp_ge_u32 s48, {TMO}
    s_cbranch_scc1 F_o1x
    s_and_b32 s36, vcc_lo, 0xff
    s_cmp_eq_u32 s36, 0xff
    s_cselect_b32 s47, 1, 0
    s_cmp_ge_u32 vcc_lo, 0xff00
    s_cselect_b32 s36, 2, 0
    s_or_b32 s47, s47, s36
    s_cbranch_scc0 F_o1
    F_o1x:
    v_mov_b32 v1, s47
    v_mov_b32 v2, {W_KV}
    ds_write_b32 v2, v1
    s_mov_b64 exec, -1
    s_branch F_o1y
    F_o1w:
    """)
    spin(a, W_KV, 1)
    a(f"""
    F_o1y:
    s_mov_b32 s34, s47
    s_cmp_eq_u32 s47, 2
    s_cselect_b32 s35, {8*1792}, 0
    s_add_u32 s36, s33, s35
    s_xor_b32 s35, s35, {8*1792}
    s_add_u32 s35, s33, s35
    s_add_u32 s37, s36, {4*1792}
    s_add_u32 s44, s35, {4*1792}
    """)
    stamp(a, 5)
    LD = 140
    def loads(h, s0, s1):
        for i in range(2):
            for g in range(7): a(f"buffer_load_dwordx4 {vr(LD+4*(14*h+7*i+g),4)}, v4, s[16:19], {(s0, s1)[i]} offen offset:{256*g} sc1")
    def verify(h, L):
        r = [LD + 4*(14*h+7*i+g) + 3 for i in range(2) for g in range(6)]
        a(f"v_max3_u32 v11, v{r[0]}, v{r[1]}, v{r[2]}\nv_max3_u32 v13, v{r[3]}, v{r[4]}, v{r[5]}")
        a(f"v_max3_u32 v11, v11, v{r[6]}, v{r[7]}\nv_max3_u32 v13, v13, v{r[8]}, v{r[9]}\nv_max3_u32 v11, v11, v{r[10]}, v{r[11]}")
        a(f"""
        v_max_u32 v14, v{LD+4*(14*h+6)+3}, v{LD+4*(14*h+13)+3}
        v_max_u32 v11, v11, v13
        v_cmp_eq_u32 s[46:47], -1, v14
        v_cmp_eq_u32 vcc, -1, v11
        s_add_u32 s49, s49, 1
        s_and_b64 s[46:47], s[46:47], s[38:39]
        s_or_b64 vcc, vcc, s[46:47]
        s_cmp_ge_u32 s49, {TMO}
        s_cselect_b64 vcc, 0, vcc
        s_cbranch_vccnz {L}
        """)
    a("s_mov_b32 s49, 0\nF_o2:")
    loads(0, "s36", "s37")
    a(f"""
    s_cmp_eq_u32 s34, 3
    s_cbranch_scc1 F_o3x
    s_cmp_eq_u32 s31, 0
    s_cbranch_scc0 F_o3w
    s_mov_b64 s[40:41], 0xffff
    """)
    poll(a, "s45", "s[40:41]", 60)
    a(f"v_mov_b32 v1, 1\nv_mov_b32 v2, {W_K2}\nds_write_b32 v2, v1\ns_branch F_o3x\nF_o3w:")
    spin(a, W_K2, 1)
    a("F_o3x:\ns_mov_b32 s34, 3")
    dstamp(a, 1)
    loads(1, "s35", "s44")
    for h in range(2):
        for i in range(2):
            for g in range(7):
                if h == 1 or i + g == 0: a(f"s_waitcnt vmcnt({14 if h == 0 else 13 - 7*i - g})")
                d = vr(64 + 4*g, 4)
                a(f"v_mfma_f32_16x16x32_bf16 {d}, v[56:59], {vr(LD+4*(14*h+7*i+g),4)}, {'0' if h + i == 0 else d}")
        verify(h, "F_o2")
    dstamp(a, 2)
    a("s_mov_b32 exec_hi, 0")
    for g in range(7):
        a(f"v_cvt_pk_bf16_f32 v{96+2*g}, v{64+4*g}, v{65+4*g}\nv_cvt_pk_bf16_f32 v{97+2*g}, v{66+4*g}, v{67+4*g}\nds_write_b64 v5, {vr(96+2*g,2)} offset:{256*g}")
    signal(a, C_OB)
    spin(a, C_OB, 4)
    dstamp(a, 3)
    AF = 64
    for hd in range(4):
        for st in range(2): a(f"ds_read_b128 {vr(AF+12*hd+4*st,4)}, v8 offset:{1792*hd + 672*st}")
        a(f"ds_read_b128 {vr(AF+12*hd+8,4)}, v{6 if hd < 2 else 10} offset:{1792*(hd&1)}")
    OD = 128
    pp = [0, 3, 5, 8]
    def norm(hd):
        d = OD + 16*hd
        r = [f"v_add_f32 v{d+12}, 0x358637bd, v{d+12}", f"v_rcp_f32 v{d+12}, v{d+12}", "s_nop 0"]
        for i in range(6): r.append(f"v_pk_mul_f32 {vr(d+2*i,2)}, {vr(d+2*i,2)}, {vr(d+12,2)} op_sel_hi:[1,0]")
        for i in range(4): r.append(f"v_cvt_pk_bf16_f32 v{d+i}, v{d+2*i}, v{d+2*i+1}")
        for i in range(2): r.append(f"v_cvt_pk_bf16_f32 v{112+2*hd+i}, v{d+8+2*i}, v{d+9+2*i}")
        r.append(f"buffer_store_dwordx4 {vr(d,4)}, v15, s[16:19], s56 offen offset:{256*pp[hd]} sc1")
        return r
    q = []
    for hd in range(4):
        a(f"s_waitcnt lgkmcnt({9-3*hd})")
        hh = hd & 1; up = hd >> 1
        for st in range(3):
            b = 16 + 20*hh + (8*st + 4*up if st < 2 else 16)
            d = vr(OD + 16*hd, 16)
            a(f"v_mfma_f32_32x32x16_bf16 {d}, {vr(AF+12*hd+4*st,4)}, {vr(b,4)}, {'0' if st == 0 else d}")
            if hd >= 1 and st == 2: q += (['s_nop 7'] if hd == 1 else []) + norm(hd - 1)
            for _ in range(6):
                if q: a(q.pop(0))
    for x in q: a(x)
    a("s_mov_b32 exec_hi, 0")
    a(f"buffer_store_dwordx4 v[112:115], v15, s[16:19], s56 offen offset:{256*2} sc1\ns_mov_b32 exec_hi, -1\ns_nop 3")
    for x in norm(3): a(x)
    a("s_mov_b32 exec_hi, 0")
    a(f"buffer_store_dwordx4 v[116:119], v15, s[16:19], s56 offen offset:{256*7} sc1")
    a("s_mov_b64 exec, -1\ns_branch F_fin")

def fin(a):
    a("F_fin:")
    stamp(a, 6)
    arrive(a, C_O)
    a("s_cmp_eq_u32 s47, 3\ns_cbranch_scc0 F_ot_end")
    flag_store(a, "s51")
    p2_ids(a, "s33", "s34")
    a(f"s_lshr_b32 s33, s33, 1\ns_lshl_b32 s33, s33, 10\ns_add_u32 s33, s33, {FL_O}\ns_mov_b64 s[34:35], 0xff")
    poll(a, "s33", "s[34:35]", 60)
    setword(a, W_O)
    a("F_ot_end:")
    stamp(a, 7)
    stamp_flush(a, 8, 1)
    a("s_endpgm")

def dma(a, base, j, v, srd_, soff):
    a(f"s_add_u32 m0, {base}, {1024*j}\ns_nop 0\nbuffer_load_dwordx4 v{v}, {srd_}, {soff} offen lds")
def issue_head(a):
    a("""
    s_lshl_b32 s34, s32, 7
    s_mul_i32 s35, s32, 245760
    s_mul_i32 s36, s32, 196608
    s_add_u32 s41, s33, s45
    s_add_u32 s42, s33, s46
    s_add_u32 s43, s33, s47
    """)
def issue_tail(a):
    a(f"""
    s_add_u32 s32, s32, 1
    s_cmp_eq_u32 s32, 10
    s_cselect_b32 s32, 0, s32
    s_add_u32 s33, s33, {SLOT}
    s_cmp_eq_u32 s33, {3*SLOT}
    s_cselect_b32 s33, 0, s33
    """)
def first_chunk(a, typ):
    nq = 5 if typ == 0 else 3
    nh = 2 if typ == 0 else 4
    for j in range(nh):
        if j == 0:
            if typ == 0:
                a(f"""
                s_lshl_b32 s37, s31, 4
                v_lshrrev_b32 v3, 3, v60
                v_add_u32 v3, s37, v3               ; row
                v_lshrrev_b32 v4, 2, v60
                v_and_b32 v4, 4, v4
                v_and_b32 v5, 7, v60
                v_xor_b32 v4, v4, v5
                v_mul_u32_u24 v3, 3072, v3
                v_lshl_add_u32 v3, v4, 4, v3
                v_add_u32 v19, s39, v3
                """)
            else:
                a(f"""
                s_lshl_b32 s37, s31, 4
                v_lshrrev_b32 v3, 4, v60
                v_lshlrev_b32 v4, 2, v3
                v_add_u32 v3, s37, v3               ; row
                v_and_b32 v5, 15, v60
                v_xor_b32 v4, v4, v5
                v_mul_u32_u24 v3, 3072, v3
                v_lshl_add_u32 v3, v4, 4, v3
                v_add_u32 v19, s39, v3
                """)
        else:
            a(f"v_add_u32 v{19+j}, {(8 if typ == 0 else 4)*3072*j}, v19")
        dma(a, "s43", j, 19 + j, "s[12:15]", "s36")
    a(f"s_mul_i32 s37, s31, {16*3840}\ns_add_u32 s38, s38, s37")
    for j in range(nq):
        a(f"v_add_u32 v2, {64*j}, v60")
        if typ == 0:
            a(f"""
            v_mul_u32_u24 v3, 3277, v2
            v_lshrrev_b32 v3, 16, v3            ; row
            v_mul_u32_u24 v4, 20, v3
            v_sub_u32 v4, v2, v4                ; pos
            v_mul_u32_u24 v5, 52, v4
            v_lshrrev_b32 v5, 8, v5             ; seg
            v_mul_u32_u24 v3, 3840, v3
            v_lshl_add_u32 v3, v4, 4, v3
            v_and_b32 v6, 1, v5
            v_mul_u32_u24 v6, 1200, v6
            v_lshrrev_b32 v5, 1, v5
            v_mul_u32_u24 v5, 80, v5
            v_add3_u32 v3, v3, v6, s38
            v_sub_u32 v{14+j}, v3, v5
            """)
        else:
            a(f"""
            v_mul_u32_u24 v3, 5462, v2
            v_lshrrev_b32 v3, 16, v3            ; row
            v_mul_u32_u24 v4, 12, v3
            v_sub_u32 v4, v2, v4                ; pos
            v_mul_u32_u24 v5, 43, v4
            v_lshrrev_b32 v5, 8, v5             ; seg
            v_sub_u32 v6, v4, v5
            v_mul_u32_u24 v3, 3840, v3
            v_lshl_add_u32 v3, v6, 4, v3
            v_add_u32 v{14+j}, s38, v3
            """)
        dma(a, "s42", j, 14 + j, "s[8:11]", "s35")

def issue_sub(a):
    a("F_issue:")
    issue_head(a)
    for j in range(4): dma(a, "s41", j, 10 + j, "s[4:7]", "s34")
    for j in range(3): dma(a, "s42", j, 14 + j, "s[8:11]", "s35")
    for j in range(2): dma(a, "s43", j, 19 + j, "s[12:15]", "s36")
    a("s_cmp_eq_u32 s30, 1\ns_cbranch_scc1 F_issue_b")
    for j in range(3, 5): dma(a, "s42", j, 14 + j, "s[8:11]", "s35")
    a("s_branch F_issue_e\nF_issue_b:")
    for j in range(2, 4): dma(a, "s43", j, 19 + j, "s[12:15]", "s36")
    a("F_issue_e:")
    issue_tail(a)
    a("s_setpc_b64 s[56:57]")
CALL = "s_call_b64 s[56:57], F_issue"

def cols_addr(a, typ):
    nql = 40 if typ == 0 else 24
    if typ == 0:
        a(f"""
        v_mul_u32_u24 v2, 26, v60
        v_lshrrev_b32 v2, 8, v2             ; seg
        v_mul_u32_u24 v3, 10, v2
        v_sub_u32 v3, v60, v3               ; w
        v_and_b32 v4, 1, v2
        v_mul_u32_u24 v4, 640, v4
        v_lshrrev_b32 v2, 1, v2
        v_mul_u32_u24 v2, 40, v2
        v_lshl_add_u32 v2, v3, 2, v2
        s_mul_i32 s37, s29, 80
        s_add_u32 s37, s37, 640
        v_add3_u32 v2, v2, v4, s37          ; colQ
        s_lshl_b32 s37, s29, 6
        s_add_u32 s37, s37, {1024 - 4*nql}
        """)
    else:
        a(f"""
        v_mul_u32_u24 v2, 22, v60
        v_lshrrev_b32 v2, 8, v2             ; seg
        v_lshlrev_b32 v2, 1, v2
        v_sub_u32 v2, v60, v2
        s_mul_i32 s37, s29, 80
        v_lshl_add_u32 v2, v2, 2, s37       ; colQ
        s_lshl_b32 s37, s29, 7
        s_sub_u32 s37, s37, {4*nql}
        """)
    a(f"""
    v_lshl_add_u32 v3, v60, 2, s37          ; w1 column
    v_add_u32 v4, 1920, v3
    v_lshlrev_b32 v3, 1, v3
    v_mov_b32 v5, 0x40000000
    v_cmp_gt_u32 vcc, {nql}, v60
    v_mov_b32 v6, {2*SLOT + HB[typ] - 8*nql}
    v_mov_b32 v7, {2*SLOT + QB}
    v_cndmask_b32 v2, v4, v2, vcc
    v_cndmask_b32 v51, v3, v5, vcc
    v_cndmask_b32 v6, v6, v7, vcc
    v_lshl_add_u32 v6, v60, 3, v6           ; A0
    v_mov_b32 v7, {HP[typ]}
    v_mov_b32 v8, {QP[typ]}
    v_cndmask_b32 v7, v7, v8, vcc           ; pitch
    v_mov_b32 v8, 64
    v_cndmask_b32 v8, v8, v56, vcc          ; X
    v_lshlrev_b32 v50, 2, v2
    """)
    for k in range(5):
        xm = ((k >> 1) & 1) if typ == 0 else (k & 3)
        a(f"v_mul_u32_u24 v{40+k}, {xm}, v8\nv_xor_b32 v{40+k}, v{40+k}, v6\nv_mad_u32_u24 v{40+k}, v7, {k}, v{40+k}")

def helper(a):
    a(f"""
    F_helper:
    s_sub_u32 s31, s31, 4
    s_lshl_b32 s37, s28, 7
    s_lshl_b32 s38, s31, 5
    s_add_u32 s37, s37, s38             ; first token row
    v_lshrrev_b32 v2, 3, v60
    v_add_u32 v2, s37, v2
    v_mul_u32_u24 v2, 1280, v2
    v_lshrrev_b32 v3, 4, v60
    v_and_b32 v4, 7, v60
    v_xor_b32 v3, v3, v4
    v_lshl_add_u32 v10, v3, 4, v2
    v_xor_b32 v3, 4, v3
    v_lshl_add_u32 v11, v3, 4, v2
    v_add_u32 v11, {8*1280}, v11
    v_add_u32 v12, {16*1280}, v10
    v_add_u32 v13, {16*1280}, v11
    s_lshl_b32 s45, s31, 12
    s_cmp_eq_u32 s30, 1
    s_cselect_b32 s46, 3072, 5120
    s_cselect_b32 s47, 4096, 2048
    s_cselect_b32 s37, {HB[1]}, 0
    s_cselect_b32 s38, 0, {HB[0]}
    s_mul_i32 s46, s46, s31
    s_add_u32 s46, s46, {QB}
    s_mul_i32 s47, s47, s31
    s_add_u32 s47, s47, s37
    s_add_u32 s47, s47, s38
    s_mov_b32 s33, {SLOT}
    """.replace("s_cselect_b32 s46, 3072, 5120", "s_cselect_b32 s46, 3, 5\ns_lshl_b32 s46, s46, 10\ns_cmp_eq_u32 s30, 1").replace("s_cselect_b32 s47, 4096, 2048", "s_cselect_b32 s47, 4, 2\ns_lshl_b32 s47, s47, 10\ns_cmp_eq_u32 s30, 1"))
    issue_head(a)
    a("s_mul_i32 s38, s29, 160\ns_waitcnt lgkmcnt(0)")
    stamp(a, 1)
    for j in range(4): dma(a, "s41", j, 10 + j, "s[4:7]", "s34")
    a("""
    s_cmp_eq_u32 s30, 1
    s_cbranch_scc1 F_hb
    s_add_u32 s38, s38, 1280
    s_lshl_b32 s39, s29, 7
    s_add_u32 s39, s39, 2048
    """)
    first_chunk(a, 0)
    a("v_mov_b32 v21, v19\nv_mov_b32 v22, v19\ns_branch F_hc\nF_hb:\ns_lshl_b32 s39, s29, 8")
    first_chunk(a, 1)
    a("v_mov_b32 v17, v14\nv_mov_b32 v18, v14\nF_hc:")
    issue_tail(a)
    a(CALL)
    a(f"""
    s_mov_b32 s40, s2
    s_mov_b32 s44, s31
    s_cmp_lt_u32 s31, 2
    s_cselect_b32 s58, 1, 0
    s_cbranch_scc1 F_wt_sel
    s_and_b32 s44, s2, 1
    s_lshr_b32 s40, s2, 1
    s_add_u32 s40, s40, {256 - 112}
    s_cmp_eq_u32 s31, 2
    s_cselect_b32 s58, 1, 0
    s_cmp_ge_u32 s2, 224
    s_cselect_b32 s58, s58, 0
    F_wt_sel:
    s_mul_i32 s49, s31, 5120
    s_add_u32 s49, s49, {L_STG}
    v_mov_b32 v62, 0
    v_mov_b32 v63, 0
    s_cmp_eq_u32 s58, 0
    s_cbranch_scc1 F_wt_skip1
    """)
    t = Asm(); t.nlabel = 900
    wt_task(t, "s40", "s44", "s49", 60, SW2, SWO, "s[16:19]", "FW")
    txt = t.text()
    import re
    remap = {20: 62, 21: 63, 22: 23, 23: 24, 24: 25, 25: 26, 26: 27}
    txt = re.sub(r"\bv(2[0-6])\b", lambda m: f"v{remap[int(m.group(1))]}", txt)
    a(txt)
    a(f"""
    F_wt_skip1:
    s_lshl_b32 s37, s29, 2
    s_add_u32 s37, s37, s31
    s_mul_i32 s37, s37, 800
    v_lshlrev_b32 v2, 3, v60
    buffer_load_dwordx2 v[30:31], v2, s[20:23], s37 offen
    buffer_load_dwordx2 v[32:33], v2, s[20:23], s37 offen offset:512
    v_mov_b32 v56, 0
    v_mov_b32 v57, 0
    v_mov_b32 v58, 0
    v_mov_b32 v59, 0
    s_mul_i32 s37, s31, 2880
    s_add_u32 s37, s37, {L_BD}
    v_lshl_add_u32 v2, v60, 4, s37
    ds_write_b128 v2, v[56:59]
    ds_write_b128 v2, v[56:59] offset:1024
    ds_write_b128 v2, v[56:59] offset:1856
    v_lshlrev_b32 v61, 2, v60
    v_min_u32 v2, 60, v61
    v_add_u32 v2, {L_CNT}, v2
    ds_write_b32 v2, v56
    v_mov_b32 v50, 0
    v_mov_b32 v51, 0
    s_cmp_eq_u32 s31, 3
    s_cbranch_scc0 F_ca2
    s_cmp_eq_u32 s30, 1
    s_cbranch_scc1 F_ca1
    """)
    cols_addr(a, 0)
    a("s_branch F_ca2\nF_ca1:")
    cols_addr(a, 1)
    a(f"""
    F_ca2:
    v_mov_b32 v49, {W_N}
    s_mov_b32 s40, {FL_S}
    s_cmp_eq_u32 s58, 1
    s_cbranch_scc1 F_wt_j1
    s_waitcnt vmcnt(13)
    F_wt_j1:
    s_waitcnt vmcnt(18) lgkmcnt(0)
    s_barrier
    {CALL}
    s_waitcnt vmcnt(13)
    s_barrier
    s_cmp_eq_u32 s58, 0
    s_cbranch_scc1 F_wt_skip2
    """)
    for nt in range(5):
        for u in range(2): a(f"ds_read_b64_tr_b16 {vr(64+4*nt+2*u,2)}, v62 offset:{u*640 + 8*nt}")
    a(f"{CALL}\ns_waitcnt lgkmcnt(0)")
    for nt in range(5):
        a(f"buffer_store_dwordx4 {vr(64+4*nt,4)}, v63, s[16:19], s{54 if nt < 4 else 55} offen offset:{(nt%4)*1024}{SC}")
    a(f"""
    s_waitcnt vmcnt(16)
    s_branch F_wt_j2
    F_wt_skip2:
    s_buffer_load_dword {NC}, {SDBG}, 0
    {CALL}
    s_cmp_eq_u32 s31, 3
    s_cbranch_scc0 F_ng_x
    s_mov_b32 s48, 0
    s_waitcnt lgkmcnt(0)
    s_cmp_eq_u32 {NC}, 0
    s_cbranch_scc0 F_ng_y
    F_ng:
    s_buffer_load_dword {NC}, {SDBG}, 0 glc
    s_add_u32 s48, s48, 1
    s_waitcnt lgkmcnt(0)
    s_cmp_ge_u32 s48, {TMO}
    s_cbranch_scc1 F_ng_y
    s_cmp_eq_u32 {NC}, 0
    s_cbranch_scc1 F_ng
    F_ng_y:
    v_mov_b32 v2, {NC}
    ds_write_b32 v49, v2
    F_ng_x:
    s_waitcnt vmcnt(11) lgkmcnt(0)
    F_wt_j2:
    s_barrier
    """)
    for k in range(3, 7):
        a(CALL)
        if k == 5: a(f"""
    s_sub_u32 s37, s31, 1
    s_lshl_b32 s37, s37, 6
    v_add_u32 v2, s37, v60
    v_and_b32 v2, 127, v2
    v_lshlrev_b32 v45, 3, v2
    v_lshlrev_b32 v46, 7, v2
    v_and_b32 v7, 14, v2
    v_lshl_add_u32 v46, v7, 3, v46
    v_add_u32 v46, {2*SLOT}, v46
    v_xor_b32 v47, 16, v46
    v_lshlrev_b32 v48, 2, v2
    v_add_u32 v48, {L_RSTD}, v48
    v_lshrrev_b32 v61, 2, v60
    v_lshlrev_b32 v61, 7, v61
    v_and_b32 v3, 3, v60
    v_lshl_add_u32 v61, v3, 4, v61
 """)
        a("s_waitcnt vmcnt(11)\ns_barrier")
    a(f"""
    s_cmp_eq_u32 s31, 3
    s_cbranch_scc1 F_pl
    {CALL}
    s_waitcnt vmcnt(11)
    s_branch F_pollx
    F_pl:
    buffer_load_dwordx4 v[36:39], v61, s[16:19], s40 offen sc1
    {CALL}
    s_mov_b32 s48, 0
    s_waitcnt vmcnt(11)
    F_poll:
    v_min3_u32 v2, v36, v37, v38
    v_max3_u32 v3, v36, v37, v38
    v_min_u32 v2, v2, v39
    v_max_u32 v3, v3, v39
    v_cmp_eq_u32 s[38:39], {NC}, v2
    v_cmp_eq_u32 vcc, {NC}, v3
    s_and_b64 vcc, vcc, s[38:39]
    s_add_u32 s48, s48, 1
    s_cmp_ge_u32 s48, {TMO}
    s_cbranch_scc1 F_pollx
    s_cmp_eq_u64 vcc, -1
    s_cbranch_scc1 F_pollx
    buffer_load_dwordx4 v[36:39], v61, s[16:19], s40 offen sc1
    s_waitcnt vmcnt(0)
    s_branch F_poll
    F_pollx:
    s_barrier
    """)
    a(CALL)
    a(f"""
    s_cmp_eq_u32 s31, 3
    s_cbranch_scc1 F_ldc
    s_lshl_b32 s38, s28, 10
    buffer_load_dwordx2 v[64:65], v45, s[16:19], s38 offen sc1
    s_waitcnt vmcnt(12)
    s_branch F_ldx
    F_ldc:
    s_mov_b32 s37, {WS_COLS}
    """)
    for i in range(8): a(f"buffer_load_dwordx4 {vr(64+4*i,4)}, v50, s[16:19], s37 offen sc1\ns_add_u32 s37, s37, {3456*4}")
    a(f"""
    buffer_load_dwordx2 v[52:53], v51, s[24:27], 0 offen
    s_waitcnt vmcnt(20)
    F_ldx:
    s_barrier
    ds_read_b32 v36, v49
    s_and_b32 s37, s31, 1
    s_mul_i32 s37, s37, {20*96 + 40}
    s_lshr_b32 s38, s31, 1
    s_mul_i32 s38, s38, 3840
    s_add_u32 s37, s37, s38
    s_add_u32 s37, s37, {L_BD}
    v_mul_u32_u24 v2, 205, v60
    v_lshrrev_b32 v2, 10, v2
    v_mul_u32_u24 v2, 56, v2
    v_lshl_add_u32 v2, v60, 3, v2
    v_add_u32 v28, s37, v2
    v_add_u32 v3, 64, v60
    v_mul_u32_u24 v2, 205, v3
    v_lshrrev_b32 v2, 10, v2
    v_mul_u32_u24 v2, 56, v2
    v_lshl_add_u32 v2, v3, 3, v2
    v_add_u32 v29, s37, v2
    ds_write_b64 v28, v[30:31]
    v_cmp_gt_u32 vcc, 36, v60
    s_and_saveexec_b64 s[48:49], vcc
    ds_write_b64 v29, v[32:33]
    s_mov_b64 exec, -1
    s_mov_b32 s39, 0xffff0000
    """)
    p2_ids(a, "s28", "s29")
    a("v_mov_b32 v14, v60")
    p2_setup(a, "s31", 14)
    n1, n2 = OPT['w8'], OPT['w8'] + OPT['w9']
    wl = [ldW(i, nt, SC) for i in range(4) for nt in range(5)] + [wdma(0, j, nt) for j in range(2) for nt in range(5)]
    for x in wl[:n1]: a(x)
    p2_epi_addr(a, "s31", 14)
    a(f"""
    s_mul_i32 s37, s31, 5120
    s_waitcnt lgkmcnt(0)
    v_readfirstlane_b32 {NC}, v36
    s_cmp_eq_u32 s31, 3
    s_cbranch_scc1 F_w9
    s_waitcnt vmcnt({1+n1})
    F_w9:
    s_waitcnt vmcnt({9+n1})
    s_barrier
    s_waitcnt vmcnt({n1})
    s_cbranch_scc1 F_prc
    s_cmp_eq_u32 s31, 0
    s_cbranch_scc1 F_prx
    v_rcp_f32 v66, v65
    v_sub_f32 v64, 0, v64
    v_cvt_pk_bf16_f32 v68, v64, v64
    v_and_b32 v67, s39, v68
    v_sub_f32 v64, v64, v67
    v_cvt_pk_bf16_f32 v69, v64, v66
    v_and_b32 v67, s39, v69
    v_sub_f32 v66, v66, v67
    v_cvt_pk_bf16_f32 v70, v66, v56
    v_mov_b32 v71, 0
    ds_write_b128 v46, v[68:71]
    ds_write_b128 v47, v[56:59]
    ds_write_b32 v48, v65
    s_branch F_prx
    F_prc:
    """)
    for i in range(1, 8):
        for q in range(2): a(f"v_pk_add_f32 {vr(64+2*q,2)}, {vr(64+2*q,2)}, {vr(64+4*i+2*q,2)}")
    a("""
    v_cvt_pk_bf16_f32 v70, v64, v65
    v_cvt_pk_bf16_f32 v71, v66, v67
    v_lshlrev_b32 v72, 16, v70
    v_and_b32 v73, s39, v70
    v_lshlrev_b32 v74, 16, v71
    v_and_b32 v75, s39, v71
    v_sub_f32 v64, v64, v72
    v_sub_f32 v65, v65, v73
    v_sub_f32 v66, v66, v74
    v_sub_f32 v67, v67, v75
    v_cvt_pk_bf16_f32 v72, v64, v65
    v_cvt_pk_bf16_f32 v73, v66, v67
    v_cmp_gt_u32 vcc, 56, v60
    s_and_saveexec_b64 s[48:49], vcc
    ds_write_b64 v40, v[70:71]
    ds_write_b64 v41, v[72:73]
    ds_write_b64 v42, v[70:71]
    ds_write_b64 v43, v[52:53]
    ds_write_b64 v44, v[52:53]
    s_mov_b64 exec, -1
    F_prx:
    """)
    for x in wl[n1:n2]: a(x)
    a("v_add_u32 v15, s37, v6\nv_add_u32 v13, 61440, v15\nv_add_u32 v1, 112640, v15\ns_waitcnt lgkmcnt(0)\ns_barrier\ns_barrier")
    if OPT['gh']: spin(a, C_H, 4, va=10)
    for x in wl[n2:]: a(x)

def wslot(typ, j): return j*20480 + (128*PV_PITCH if typ == 0 and j >= 2 else 0)
def wdma(typ, j, nt):
    t = f"s_add_u32 m0, s37, {wslot(typ, j) + (4096 if nt == 4 else 0)}\ns_nop 0\n" if nt in (0, 4) else ""
    if nt < 4: return t + f"buffer_load_dwordx4 v6, s[16:19], s33 offen offset:{nt*1024}{NS[OPT['nsw']]} lds"
    return t + f"buffer_load_dwordx4 v7, s[16:19], s33 offen{NS[OPT['nsw']]} lds\ns_add_u32 s33, s33, 20480"

class VM:
    def __init__(self, a): self.a = a; self.q = []
    def issue(self, tag, text): self.a(text); self.q.append(tag)
    def wait(self, tags, extra=""):
        last = max(i for i, t in enumerate(self.q) if t in tags)
        n = len(self.q) - 1 - last
        assert n < 64
        self.a(f"s_waitcnt vmcnt({n}){extra}")
def phase2(a):
    a("F_p2:\ns_cmp_eq_u32 s30, 1\ns_cbranch_scc1 F_p2_1")
    for typ in range(2):
        a(f"F_p2_{typ}:")
        phase2_t(a, typ)
        if typ == 0: a("s_branch F_p2_e")
    a("F_p2_e:")
    stamp(a, 7)
    a("s_waitcnt lgkmcnt(0)\ns_barrier")
    for m in range(3):
        for nt in range(5): a(f"ds_read_b128 {vr(20+20*m+4*nt,4)}, v{10+m} offset:{m*20480 + nt*1024}")
    for m in range(3):
        a(f"s_waitcnt lgkmcnt({10-5*m})")
        for q in range(10): a(f"v_pk_add_f32 {vr(AC2+2*q,2)}, {vr(AC2+2*q,2)}, {vr(20+20*m+2*q,2)}")
    for q in range(10): a(f"v_cvt_pk_bf16_f32 v{AC2+q}, v{AC2+2*q}, v{AC2+2*q+1}")
    a(f"buffer_store_dwordx4 {vr(AC2,4)}, v8, {SOUT}, s34 offen\nbuffer_store_dwordx4 {vr(AC2+4,4)}, v8, {SOUT}, s34 offen offset:16\nbuffer_store_dwordx2 {vr(AC2+8,2)}, v8, {SOUT}, s34 offen offset:32")
    a("s_add_u32 s31, s31, 4")
    stamp_flush(a, 8, 1)
    a("s_endpgm")
    for x in ool: a(x)

ool = []
def phase2_t(a, typ):
    nl = OPT['nlb'] if typ else OPT['nla']
    LA = OPT['la']
    vm = VM(a)
    for i in range(4):
        for nt in range(5): vm.q.append(("W", i))
    for j in range(nl):
        for nt in range(5):
            if j < 2: vm.q.append(("WL", j))
            else: vm.issue(("WL", j), wdma(typ, j, nt))
    stamp(a, 2)
    a(f"s_cmp_eq_u32 s31, 0\ns_cbranch_scc0 F_p2_wait{typ}")
    a(f"s_lshr_b32 s36, s28, 1\ns_lshl_b32 s36, s36, 11\ns_add_u32 s36, s36, {FL_H}\ns_mov_b64 s[38:39], 0xffff")
    if OPT['spoll'] & 1: spoll(a, "s36", list(range(38, 48)) + [50, 51, 52, 54, 55, 56])
    else: poll(a, "s36", "s[38:39]", 14, va=10)
    setword(a, W_H, va=10)
    a(f"F_p2_wait{typ}:")
    spin(a, W_H, 1, va=10)
    stamp(a, 3)
    if typ == 0 and OPT['ga']: spin(a, C_O, 4, va=10)
    gate = 4 + nl if typ == 1 and OPT['gb'] else 99
    for i in range(LA):
        for m in range(4): vm.issue(("A", i), ldA(i, m, SC))
    xe = AR + 32
    def lds_rd(i, nt):
        o = wslot(typ, i - 4) + nt*1024
        r, o = (15, o) if o < 61440 else (13, o - 61440) if o < 112640 else (1, o - 112640)
        return f"ds_read_b128 {vr(WR+20*(i%4)+4*nt,4)}, v{r} offset:{o}"
    for i in range(17):
        if i == 12:
            vm.wait(["x"])
            a("s_mov_b32 s39, 0xffff0000")
            for q in range(10):
                x = xe + q; b = xe + 10 + q
                a(f"v_lshlrev_b32 v16, 16, v{x}\nv_and_b32 v17, s39, v{x}\nv_lshlrev_b32 v18, 16, v{b}\nv_and_b32 v19, s39, v{b}")
                a(f"v_pk_add_f32 v[16:17], v[16:17], v[18:19]\nv_pk_add_f32 {vr(AC2+2*q,2)}, {vr(AC2+2*q,2)}, v[16:17]")
            stamp(a, 5)
            spin(a, W_O, 1, va=10)
            stamp(a, 6)
            for k in range(12, 17):
                for m in range(4): vm.issue(("A", k), ldA(k, m, SC))
            a("s_mov_b32 s48, 0")
            for m in range(1, 4):
                a(f"s_sub_u32 s36, s31, {m}\ns_and_b32 s36, s36, 3\ns_mul_i32 s36, s36, 5120\nv_add_u32 v{9+m}, s36, v6")
        if i == gate:
            spin(a, C_OB if OPT['gb'] == 1 else C_O, 4, va=10)
            for k in range(gate, gate + 4):
                for nt in range(5): vm.issue(("W", k), ldW(k, nt, SC))
        ex = ""
        if 4 <= i < 4 + nl: ex = f" lgkmcnt({5*(min(i + 3, 3 + nl) - i)})"
        vm.wait([("A", i), ("W", i)], ex)
        if i == 0: stamp(a, 4)
        if i >= 12:
            b = AR + 16*(i % 5)
            a(f"F_v{typ}_{i}:\nv_max3_u32 v1, v{b+3}, v{b+7}, v{b+11}\nv_max_u32 v1, v1, v{b+15}\nv_cmp_eq_u32 vcc, -1, v1\ns_cbranch_vccnz F_r{typ}_{i}\nF_g{typ}_{i}:")
            t = f"F_r{typ}_{i}:\ns_add_u32 s48, s48, 1\ns_cmp_ge_u32 s48, {TMO}\ns_cbranch_scc1 F_g{typ}_{i}\ns_sub_u32 s36, s32, {(17-i)*4096}\n"
            for m in range(4): t += f"buffer_load_dwordx4 {vr(b+4*m,4)}, v{2+m}, s[16:19], s36 offen sc1\n"
            ool.append(t + f"s_waitcnt vmcnt(0)\ns_branch F_v{typ}_{i}")
        if i == 16:
            for m in (1, 2, 3, 0):
                for nt in range(5):
                    d = vr(AC2 + 20*m + 4*nt, 4)
                    a(f"v_mfma_f32_16x16x32_bf16 {d}, {vr(WR+20*(i%4)+4*nt,4)}, {vr(AR+16*(i%5)+4*m,4)}, {d}")
                    pm = (m - 1) % 4
                    if pm == 1 and nt == 0: a('s_nop 2')
                    if pm: a(f"ds_write_b128 v15, {vr(AC2+20*pm+4*nt,4)} offset:{(pm-1)*20480 + nt*1024}")
            continue
        for nt in range(5):
            for m in range(4):
                d = vr(AC2 + 20*m + 4*nt, 4)
                a(f"v_mfma_f32_16x16x32_bf16 {d}, {vr(WR+20*(i%4)+4*nt,4)}, {vr(AR+16*(i%5)+4*m,4)}, {'0' if i == 0 else d}")
                if m == 1 and nt < 4 and i + LA < 12: vm.issue(("A", i + LA), ldA(i + LA, nt, SC))
            if i + 4 < 4 + nl: a(lds_rd(i + 4, nt))
            elif i + 4 < 17 and not (gate <= i + 4 < gate + 4): vm.issue(("W", i + 4), ldW(i + 4, nt, SC))
        if i == 8:
            for k, (n, o) in enumerate(((4, 0), (4, 16), (2, 32))):
                vm.issue("x", f"buffer_load_dwordx{n} {vr(xe+4*k,n)}, v8, s[4:7], s34 offen offset:{o}")
            for k, (n, o) in enumerate(((4, 0), (4, 16), (2, 32))):
                vm.issue("x", f"buffer_load_dwordx{n} {vr(xe+10+4*k,n)}, v9, {SB2}, s35 offen offset:{o}")

def gen_f1():
    a = Asm()
    stamp(a, 0)
    srd(a, 4, 0, NB_X); srd(a, 8, 8, NB_WQKV); srd(a, 12, 40, NB_W1); srd(a, 16, 88, WS_END); srd(a, 20, 16, NB_WPHI); srd(a, 24, 48, NB_B1)
    srd(a, 60, 56, NB_W2); srd(a, 64, 24, NB_WO); srd(a, 68, 72, NB_X); srd(a, 72, 64, NB_B2); srd(a, 76, 80, 256)
    a(f"""
    s_cmp_ge_u32 s2, 256
    s_cbranch_scc1 F_end
    v_lshrrev_b32 v1, 6, v0
    v_and_b32 v60, 63, v0
    s_and_b32 s33, s2, 7                ; xcd
    v_readfirstlane_b32 s31, v1
    s_lshr_b32 s34, s2, 3               ; idx
    s_and_b32 s28, s33, 1
    s_lshl_b32 s28, s28, 3
    s_and_b32 s35, s34, 7
    s_add_u32 s28, s28, s35             ; rb
    s_lshr_b32 s35, s34, 3              ; jj
    s_lshr_b32 s30, s35, 1              ; type
    s_and_b32 s35, s35, 1
    s_and_b32 s29, s33, 6
    s_add_u32 s29, s29, s35             ; g
    s_mov_b32 s32, s33
    s_cmp_lt_u32 s31, 4
    s_cbranch_scc1 F_comp
    """)
    helper(a)
    phase2(a)
    issue_sub(a)
    a(f"""
    F_comp:
    s_lshl_b32 s33, s2, 2
    s_add_u32 s33, s33, s31
    s_cmp_eq_u32 s33, 3
    s_cbranch_scc0 F_nonce_x
    s_mov_b32 s34, {WS_NONCE}
    s_waitcnt lgkmcnt(0)
    s_buffer_load_dword s35, s[16:19], s34 glc
    v_mov_b32 v3, 0
    s_waitcnt lgkmcnt(0)
    s_add_u32 s35, s35, 1
    s_max_u32 s35, s35, 1
    v_mov_b32 v2, s35
    s_mov_b64 exec, 1
    buffer_store_dword v2, v3, {SDBG}, 0 offen sc1
    buffer_store_dword v2, v3, s[16:19], s34 offen sc1
    s_mov_b64 exec, -1
    F_nonce_x:
    """)
    phase0_issue(a)
    if OPT['pf1'] == 1: a('s_waitcnt lgkmcnt(0)'); l2_prefetch(a)
    a(f"""
    v_lshrrev_b32 v61, 5, v60
    v_bfe_u32 v62, v60, 2, 2
    v_lshl_add_u32 v61, v61, 3, v62     ; 8hf + j
    v_and_b32 v62, 1, v60               ; c&1
    v_bfe_u32 v63, v60, 4, 1
    v_bfe_u32 v2, v60, 1, 1
    v_lshl_add_u32 v63, v63, 1, v2      ; 2gg + (c>>1)
    v_and_b32 v2, 31, v60
    s_lshl_b32 s43, s31, 5
    v_add_u32 v2, s43, v2
    v_lshrrev_b32 v3, 5, v60
    v_bfe_u32 v4, v2, 1, 3
    v_xor_b32 v3, v3, v4
    v_lshlrev_b32 v3, 4, v3
    v_lshl_add_u32 v{XA}, v2, 7, v3
    v_lshlrev_b32 v{RSTD}, 2, v2
    v_add_u32 v{RSTD}, {L_RSTD}, v{RSTD}
    v_add_u32 v{XA}, {SLOT}, v{XA}
    v_xor_b32 v{XA+1}, 32, v{XA}
    v_xor_b32 v{XA+2}, 64, v{XA}
    v_xor_b32 v{XA+3}, 96, v{XA}
    v_lshrrev_b32 v12, 5, v60
    v_cmp_eq_u32 vcc, v12, v62
    v_bfe_u32 v13, v60, 2, 2
    v_mul_u32_u24 v13, 96, v13
    v_cndmask_b32 v12, 2, v12, vcc
    v_mul_u32_u24 v12, 3840, v12
    v_lshl_add_u32 v13, v63, 3, v13
    v_add_u32 v{BDA}, v12, v13
    v_add_u32 v{BDA}, {L_BD}, v{BDA}
    s_cmp_eq_u32 s30, 1
    s_cbranch_scc1 F_as1
    """)
    addr_setup(a, 0)
    a("s_branch F_as2\nF_as1:")
    addr_setup(a, 1)
    a("F_as2:")
    for i in range(112): a(f"v_mov_b32 v{ACC+i}, 0")
    phase0_finish(a)
    if OPT['pf1'] == 2: a('s_waitcnt lgkmcnt(0)'); l2_prefetch(a)
    flag_addrs(a)
    a(f"""
    s_waitcnt lgkmcnt(0)
    s_mov_b32 s40, 0
    s_mov_b32 s42, 1
    s_mov_b32 s45, {SLOT}
    s_cmp_eq_u32 s30, 1
    s_cbranch_scc1 F_c1
    """)
    compute(a, 0)
    compute(a, 1)
    fin(a)
    a("F_end:\ns_endpgm")
    return a.text()

def build():
    t = gen_f1()
    for e in check_hazards(t): print(e)
    return file_text([f"; @launch grid=(256,1,1) block=(512,1,1) lds={F_LDS}"], [(NAME + "_kernel", t, 256, 102, 256)])
if __name__ == "__main__":
    for arg in list(sys.argv[1:]):
        if "=" in arg:
            k, v = arg.split("="); OPT[k] = int(v); sys.argv.remove(arg)
    out = sys.argv[1] if len(sys.argv) > 1 else f"cdna_kernels/{NAME}.s"
    open(out, "w").write(build())
```

```python
import sys
sys.path.insert(0, "gen")
import asmlib
if "--stamps" in sys.argv: asmlib.STAMPS = True; sys.argv.remove("--stamps")
from asmlib import *
from layout import *
from k0 import srd, dpp_add
from k1 import ACC, SET, XA, QA, HA, RSTD, BDA, LOG2E, tile_reads, mfma_step, softmax
from k2b import wt_task, wt_finish, p2_setup, p2_epi_addr, p2_final, AR, WR, AC2
import k2b
NS = {0: " sc1", 1: "", 2: " nt", 3: " sc0"}
def ldA(i, m, sc):
    t = k2b.ldA(i, m, NS[OPT['nsa']])
    if i == 11: t = t.replace("s32, 4096", "s32, s57")
    if i > 11: t = t.replace("s32, 4096", "s32, 1024")
    return t
def ldW(i, nt, sc):
    t = k2b.ldW(i, nt, NS[OPT['nsw']])
    if i == 11: t = t.replace("s33, 20480", "s33, s58")
    if i > 11: t = t.replace("s33, 20480", "s33, 5120")
    return t
SC = " sc1"
SW2, SWO, SOUT, SB2, SDBG = "s[60:63]", "s[64:67]", "s[68:71]", "s[72:75]", "s[76:79]"
C_H, C_PV, W_K2, W_KV, C_OB, C_O, W_H, W_O, W_N = [L_CNT + 4*i for i in range(9)]
FL_S = WS_FLAG + 0x2000
WS_NONCE = WS_FLAG + 0x4000
NC = "s53"
TMO = 1 << 18
OPT = dict(pfw=0, pfa=0, defer=1, pf1=0, w8=8, w9=14, prio=0, nla=4, nlb=7, spoll=0, hfa=0, la=4, gh=1, ga=0, gb=0, hfb=1, pd=1, ek=1, eo=0, il=1, bf=1, w16=1, fa=2, map=0, bp=0, k2=0, fast=0, dg=0, nsa=0, nsw=0)
def dstamp(a, i):
    if OPT['dg']: stamp(a, i)
PVB = 40960

def arrive(a, off, va=1):
    a(f"""
    v_mov_b32 v{va}, 1
    v_mov_b32 v{va+1}, {off}
    s_mov_b64 exec, 1
    ds_add_rtn_u32 v{va+2}, v{va+1}, v{va}
    s_waitcnt lgkmcnt(0)
    s_mov_b64 exec, -1
    v_readfirstlane_b32 s47, v{va+2}
    """)
def signal(a, off, va=1):
    a(f"v_mov_b32 v{va}, 1\nv_mov_b32 v{va+1}, {off}\ns_mov_b64 exec, 1\nds_add_u32 v{va+1}, v{va}\ns_mov_b64 exec, -1")
def spin(a, off, val, va=1):
    L = a.label("spin")
    a(f"""
    v_mov_b32 v{va+1}, {off}
    s_mov_b32 s48, 0
    {L}:
    ds_read_b32 v{va+2}, v{va+1}
    s_add_u32 s48, s48, 1
    s_waitcnt lgkmcnt(0)
    v_readfirstlane_b32 s47, v{va+2}
    s_cmp_ge_u32 s48, {TMO}
    s_cbranch_scc1 {L}_x
    {f's_cmp_lt_u32 s47, {val}' if val else 's_andn2_b32 s47, s55, s47'}
    s_cbranch_scc1 {L}
    {L}_x:
    """)
def setword(a, off, va=1):
    a(f"v_mov_b32 v{va}, 1\nv_mov_b32 v{va+1}, {off}\nds_write_b32 v{va+1}, v{va}\ns_waitcnt lgkmcnt(0)")
def flag_store(a, soff, va=1):
    a(f"v_mov_b32 v{va}, {NC}\nv_mov_b32 v{va+1}, 0\ns_mov_b64 exec, 1\nbuffer_store_dword v{va}, v{va+1}, s[16:19], {soff} offen sc1\ns_mov_b64 exec, -1")
def poll(a, soff, mask, lane, va=1, pub=None):
    L = a.label("poll")
    pd = OPT['pd']
    R = [va + 1, va + 2] + [va + 4 + i for i in range(2)] if va == 1 else [va + 1, va + 2, 16, 17]
    a(f"""
    v_lshlrev_b32 v{va}, 7, v{lane}
    s_mov_b32 s48, 0
    {f'v_mov_b32 v{va+3}, {pub}' if pub else ''}
    s_mov_b64 exec, {mask}
    """)
    ld = lambda k: f"buffer_load_dword v{R[k]}, v{va}, s[16:19], {soff} offen sc1"
    for k in range(pd - 1): a(ld(k) + "\ns_nop 7\ns_nop 7" * 0)
    a(f"{L}:")
    for k in range(pd):
        a(f"""
        {ld((k + pd - 1) % pd)}
        s_add_u32 s48, s48, 1
        s_waitcnt vmcnt({pd-1})
        v_cmp_eq_u32 vcc, {NC}, v{R[k]}
        s_cmp_ge_u32 s48, {TMO}
        s_cbranch_scc1 {L}_x
        """)
        if pub: a(f"v_mov_b32 v{R[k]}, vcc_lo\nds_write_b32 v{va+3}, v{R[k]}\ns_waitcnt lgkmcnt(0)")
        a(f"s_cmp_eq_u64 vcc, {mask}")
        a(f"s_cbranch_scc0 {L}" if k == pd - 1 else f"s_cbranch_scc1 {L}_x")
    a(f"{L}_x:\ns_mov_b64 exec, -1")

def early_flag(a):
    L = a.label("ef")
    a(f"s_cmp_eq_u32 s31, 0\ns_cbranch_scc0 {L}")
    flag_store(a, "s51")
    a(f"{L}:")
def spoll(a, soff, regs):
    L = a.label("spoll")
    a(f"s_mov_b32 s48, 0\n{L}:")
    for i, r in enumerate(regs): a(f"s_buffer_load_dword s{r}, s[16:19], {soff} offset:{128*i} glc")
    a(f"s_add_u32 s48, s48, 1\ns_cmp_ge_u32 s48, {TMO}\ns_waitcnt lgkmcnt(0)\ns_cbranch_scc1 {L}_x")
    for r in regs: a(f"s_cmp_eq_u32 s{r}, {NC}\ns_cbranch_scc0 {L}")
    a(f"{L}_x:")

def p2_ids(a, rg, cg):
    if OPT['map'] == 1:
        a(f"s_and_b32 s36, s2, 7\ns_lshl_b32 s36, s36, 2\ns_bfe_u32 s37, s2, 0x20003\ns_add_u32 {rg}, s36, s37\ns_lshr_b32 {cg}, s2, 5")
        return
    if OPT['map'] == 2:
        a(f"s_bfe_u32 s36, s2, 0x10002\ns_lshl_b32 s36, s36, 4\ns_bfe_u32 s37, s2, 0x40003\ns_add_u32 {rg}, s36, s37\ns_and_b32 s36, s2, 3\ns_lshl_b32 s36, s36, 1\ns_lshr_b32 {cg}, s2, 7\ns_add_u32 {cg}, {cg}, s36")
        return
    a(f"""
    s_and_b32 s36, s2, 7
    s_lshr_b32 s37, s2, 3
    s_lshr_b32 {rg}, s36, 1
    s_lshl_b32 {rg}, {rg}, 3
    s_and_b32 s38, s37, 7
    s_add_u32 {rg}, {rg}, s38
    s_and_b32 {cg}, s36, 1
    s_lshl_b32 {cg}, {cg}, 2
    s_lshr_b32 s38, s37, 3
    s_add_u32 {cg}, {cg}, s38
    """)

def phase0_issue(a):
    a(f"""
    s_cmp_ge_u32 s31, 2
    s_cbranch_scc1 P0_cols
    s_lshl_b32 s33, s2, 3
    s_lshl_b32 s34, s31, 2
    s_add_u32 s33, s33, s34
    v_lshrrev_b32 v65, 4, v60
    v_add_u32 v65, s33, v65
    v_and_b32 v66, 15, v60
    v_mul_u32_u24 v64, 1280, v65
    v_lshl_add_u32 v64, v66, 4, v64
    s_waitcnt lgkmcnt(0)
    """)
    for i in range(5): a(f"buffer_load_dwordx4 {vr(80+4*i,4)}, v64, s[4:7], 0 offen offset:{256*i}")
    a(f"""
    s_branch P0_issued
    P0_cols:
    s_cmp_ge_u32 s2, 216
    s_cbranch_scc1 P0_issued
    s_lshr_b32 s33, s2, 2            ; line
    s_and_b32 s34, s2, 3
    s_lshl_b32 s34, s34, 1
    s_add_u32 s34, s34, s31
    s_sub_u32 s34, s34, 2            ; part 0..7
    s_mul_i32 s35, s34, 80
    v_lshrrev_b32 v76, 3, v60
    v_add_u32 v76, s35, v76
    v_and_b32 v77, 7, v60
    v_lshlrev_b32 v77, 4, v77
    s_cmp_ge_u32 s33, 30
    s_cbranch_scc1 P0_w1
    s_lshl_b32 s36, s33, 7
    v_mul_u32_u24 v76, 3840, v76
    v_add_u32 v76, v76, v77
    s_waitcnt lgkmcnt(0)
    """)
    for i in range(10): a(f"buffer_load_dwordx4 {vr(80+4*i,4)}, v76, s[8:11], s36 offen\ns_add_u32 s36, s36, {8*3840}")
    a("""
    s_branch P0_issued
    P0_w1:
    s_sub_u32 s36, s33, 30
    s_lshl_b32 s36, s36, 7
    v_mul_u32_u24 v76, 3072, v76
    v_add_u32 v76, v76, v77
    s_waitcnt lgkmcnt(0)
    """)
    for i in range(10): a(f"buffer_load_dwordx4 {vr(80+4*i,4)}, v76, s[12:15], s36 offen\ns_add_u32 s36, s36, {8*3072}")
    a("P0_issued:")

def phase0_finish(a):
    a(f"""
    s_cmp_ge_u32 s31, 2
    s_cbranch_scc1 P0_fcols
    s_mov_b32 s37, 0xffff0000
    """)
    U = 100
    for i in range(5):
        a(f"s_waitcnt vmcnt({4-i+(3 if OPT['pf1'] == 1 else 0)})")
        for q in range(4):
            r = 80 + 4*i + q
            a(f"v_lshlrev_b32 v{U+2*(4*i+q)}, 16, v{r}\nv_and_b32 v{U+1+2*(4*i+q)}, s37, v{r}")
    a(f"v_pk_add_f32 v[68:69], {vr(U,2)}, {vr(U+2,2)}\nv_pk_add_f32 v[70:71], {vr(U+4,2)}, {vr(U+6,2)}")
    for i in range(4, 20, 2):
        a(f"v_pk_add_f32 v[68:69], v[68:69], {vr(U+2*i,2)}\nv_pk_add_f32 v[70:71], v[70:71], {vr(U+2+2*i,2)}")
    a("v_pk_add_f32 v[68:69], v[68:69], v[70:71]\nv_add_f32 v68, v68, v69")
    for ror in (8, 4, 2, 1): dpp_add(a, 68, 68, ror)
    a("v_mul_f32 v68, 0x3acccccd, v68")
    for i in range(20): a(f"v_pk_add_f32 {vr(U+2*i,2)}, {vr(U+2*i,2)}, v[68:69] op_sel_hi:[1,0] neg_lo:[0,1] neg_hi:[0,1]")
    a(f"v_pk_mul_f32 v[70:71], {vr(U,2)}, {vr(U,2)}\nv_pk_mul_f32 v[72:73], {vr(U+2,2)}, {vr(U+2,2)}")
    for i in range(2, 20, 2):
        a(f"v_pk_fma_f32 v[70:71], {vr(U+2*i,2)}, {vr(U+2*i,2)}, v[70:71]\nv_pk_fma_f32 v[72:73], {vr(U+2+2*i,2)}, {vr(U+2+2*i,2)}, v[72:73]")
    a("v_pk_add_f32 v[70:71], v[70:71], v[72:73]\nv_add_f32 v69, v70, v71")
    for ror in (8, 4, 2, 1): dpp_add(a, 69, 69, ror)
    a(f"""
    v_mov_b32 v70, 0x3727c5ac
    v_fmac_f32 v70, 0x3acccccd, v69
    v_rsq_f32 v69, v70
    v_lshlrev_b32 v65, 3, v65
    v_cmp_eq_u32 vcc, 0, v66
    s_and_saveexec_b64 s[48:49], vcc
    s_nop 1
    buffer_store_dwordx2 v[68:69], v65, s[16:19], 0 offen sc1
    s_mov_b64 exec, -1
    s_branch P0_done
    P0_fcols:
    s_cmp_ge_u32 s2, 216
    s_cbranch_scc1 P0_done
    v_and_b32 v68, 15, v60
    v_and_b32 v69, 1, v60
    v_lshlrev_b32 v69, 4, v69
    v_mov_b32 v70, 0x3f80
    v_lshlrev_b32 v69, v69, v70
    v_lshrrev_b32 v68, 1, v68
    """)
    for q in range(4): a(f"v_cmp_eq_u32 vcc, {q}, v68\ns_nop 1\nv_cndmask_b32 v{64+q}, 0, v69, vcc")
    a("s_nop 1")
    for i in range(10):
        a(f"s_waitcnt vmcnt({9-i+(3 if OPT['pf1'] == 1 else 0)})")
        a(f"v_mfma_f32_16x16x32_bf16 v[68:71], v[64:67], {vr(80+4*i,4)}, {'0' if i == 0 else 'v[68:71]'}")
    a(f"""
    s_mul_i32 s36, s34, {3456*4}
    s_lshl_b32 s35, s33, 8
    s_add_u32 s36, s36, s35
    s_add_u32 s36, s36, {WS_COLS}
    v_and_b32 v76, 7, v60
    v_lshlrev_b32 v76, 5, v76
    v_and_b32 v77, 16, v60
    v_add_u32 v76, v76, v77
    v_and_b32 v77, 40, v60
    """)
    for q in range(4): dpp_add(a, 72+q, 68+q, 8)
    a(f"""
    v_cmp_eq_u32 vcc, 0, v77
    s_and_saveexec_b64 s[48:49], vcc
    s_nop 1
    buffer_store_dwordx4 v[72:75], v76, s[16:19], s36 offen sc1
    s_mov_b64 exec, -1
    P0_done:
    """)

def l2_prefetch(a):
    a(f"""
    s_lshr_b32 s46, s2, 3               ; idx
    s_cmp_ge_u32 s31, 2
    s_cbranch_scc1 PF_w
    s_and_b32 s47, s2, 1
    s_lshl_b32 s47, s47, 5
    s_add_u32 s47, s47, s46
    s_mul_i32 s47, s47, {32*1280}
    v_and_b32 v20, 31, v60
    v_mul_u32_u24 v20, 1280, v20
    v_lshrrev_b32 v21, 5, v60
    s_lshl_b32 s48, s31, 1
    s_add_u32 s48, s48, s32
    s_add_u32 s48, s48, 2
    v_add_u32 v21, s48, v21
    """)
    for j in range(2):
        a(f"""
        v_add_u32 v22, {4*j}, v21
        v_subrev_u32 v23, 10, v22
        v_min_u32 v22, v22, v23
        v_lshl_add_u32 v22, v22, 7, v20
        buffer_load_dword v{16+j}, v22, s[4:7], s47 offen
        """)
    a(f"""
    buffer_load_dword v18, v22, s[4:7], s47 offen
    s_branch PF_x
    PF_w:
    s_lshr_b32 s47, s29, 1              ; pair
    s_add_u32 s48, s32, 2
    s_cmp_eq_u32 s31, 3
    s_cbranch_scc1 PF_w1
    s_mul_i32 s47, s47, 320
    s_and_b32 s47, s47, 0xffffff80
    s_mul_i32 s46, s46, {2*3840}
    s_add_u32 s47, s47, s46
    """)
    for j in range(3):
        a(f"""
        v_add_u32 v20, {64*j}, v60
        v_min_u32 v20, 143, v20
        v_mul_u32_u24 v21, 57, v20
        v_lshrrev_b32 v21, 9, v21           ; r = n / 9
        v_mul_u32_u24 v22, 9, v21
        v_sub_u32 v20, v20, v22             ; l
        v_mul_u32_u24 v22, 11, v20
        v_lshrrev_b32 v22, 5, v22           ; seg = l / 3
        v_mul_u32_u24 v22, {1280 - 384}, v22
        v_lshl_add_u32 v20, v20, 7, v22
        v_lshrrev_b32 v22, 1, v21
        v_add_u32 v22, s48, v22
        v_subrev_u32 v23, 10, v22
        v_min_u32 v22, v22, v23             ; chunk
        v_and_b32 v21, 1, v21
        v_lshl_add_u32 v21, v22, 6, v21
        v_mad_u32_u24 v20, v21, v24, v20
        buffer_load_dword v{16+j}, v20, s[8:11], s47 offen
        """.replace("v_add_u32 v20, 0, v60", "v_mov_b32 v24, 3840\nv_mov_b32 v20, v60"))
    a(f"""
    s_branch PF_x
    PF_w1:
    s_mul_i32 s46, s46, {2*3072}
    s_lshl_b32 s49, s47, 9
    s_add_u32 s46, s46, s49
    s_lshl_b32 s47, s47, 8
    s_sub_u32 s47, {2048 - 512}, s47
    v_mov_b32 v24, 3072
    """)
    for j in range(2):
        a(f"""
        v_add_u32 v20, {64*j}, v60
        v_min_u32 v20, 95, v20
        v_mul_u32_u24 v21, 43, v20
        v_lshrrev_b32 v21, 8, v21           ; r = n / 6
        v_mul_u32_u24 v22, 6, v21
        v_sub_u32 v20, v20, v22             ; l
        v_lshrrev_b32 v22, 2, v20
        v_mul_u32_u24 v22, s47, v22
        v_lshl_add_u32 v20, v20, 7, v22
        v_lshrrev_b32 v22, 1, v21
        v_add_u32 v22, s48, v22
        v_subrev_u32 v23, 10, v22
        v_min_u32 v22, v22, v23             ; chunk
        v_and_b32 v21, 1, v21
        v_lshl_add_u32 v21, v22, 6, v21
        v_mad_u32_u24 v20, v21, v24, v20
        buffer_load_dword v{16+j}, v20, s[12:15], s46 offen
        """)
    a("buffer_load_dword v18, v20, s[12:15], s46 offen\nPF_x:")

def flag_addrs(a):
    a(f"""
    s_lshl_b32 s50, s28, 11
    s_lshl_b32 s55, s30, 3
    s_add_u32 s55, s55, s29
    s_lshl_b32 s55, s55, 7
    s_add_u32 s50, s50, s55
    s_add_u32 s50, s50, {FL_H}
    s_lshl_b32 s51, s29, 11
    s_lshl_b32 s55, s28, 7
    s_add_u32 s51, s51, s55
    s_add_u32 s51, s51, {FL_KV}
    s_lshl_b32 s52, s28, 10
    s_lshl_b32 s55, s29, 7
    s_add_u32 s52, s52, s55
    s_add_u32 s52, s52, {FL_O}
    s_cmp_eq_u32 s30, 1
    s_cselect_b32 s51, s52, s51
    s_lshr_b32 s54, s2, 4
    s_lshl_b32 s54, s54, 7
    s_and_b32 s55, s2, 15
    s_lshl_b32 s55, s55, 2
    s_add_u32 s54, s54, s55
    s_add_u32 s54, s54, {FL_S}
    """)

def compute(a, typ):
    L = f"F_c{typ}"
    nh = 2 if typ == 0 else 4
    a(f"{L}:\ns_barrier")
    stamp(a, 1)
    for r in tile_reads(typ, 0, SET[0]): a(r)
    a(f"{L}_loop:")
    for s in range(4):
        if s < 3:
            a("s_waitcnt lgkmcnt(0)")
            fill = tile_reads(typ, s + 1, SET[(s + 1) % 2])
            if s == 2:
                fill += [f"s_cmp_eq_u32 s42, 2", f"s_cselect_b32 s41, {-2*SLOT}, s45", "s_add_u32 s42, s42, 1", "s_cmp_eq_u32 s42, 3", "s_cselect_b32 s42, 0, s42", "s_bitcmp1_b32 5, s40"]
        else:
            a(f"s_cbranch_scc1 {L}_it2\ns_waitcnt lgkmcnt(0)\ns_barrier\n{L}_it2r:")
            rd = tile_reads(typ, 0, SET[0])
            up = lambda r: f"v_add_u32 v{r}, s41, v{r}"
            fill = [up(XA), up(QA)] + rd[:3] + [up(HA + i) for i in range(nh)] + rd[3:6] + [up(XA + 1), up(XA + 2), up(XA + 3)] + rd[6:]
            fill += ["s_add_u32 s40, s40, 1", "s_cmp_lt_u32 s40, 10"]
        mfma_step(a, SET[s % 2], fill)
    a(f"s_cbranch_scc1 {L}_loop")
    if OPT['prio']: a("s_setprio 3")
    stamp(a, 2)
    fill = [f"ds_read_b32 v{RSTD}, v{RSTD}"]
    BD = 16
    bdr = {}
    order = [(0,0),(1,0),(0,1),(1,1),(2,2),(0,2),(1,2),(2,3),(1,3),(2,4),(1,4)]
    for n, (T, u) in enumerate(order):
        bdr[(T, u)] = BD + 4*n
        for uu in range(2): fill.append(f"ds_read_b64_tr_b16 {vr(BD+4*n+2*uu,2)}, v{BDA} offset:{(8*u+4*uu)*96 + T*32}")
    a("s_waitcnt lgkmcnt(0)")
    hfirst = typ == 1 and OPT['bf']
    k = 0
    for n, t in enumerate([3, 4, 5, 6, 0, 1, 2] if hfirst else range(7)):
        acc = vr(ACC + 16*t, 16)
        a(f"v_mfma_f32_32x32x16_bf16 {acc}, {vr(SET[0]+4+4*t,4)}, {vr(SET[0],4)}, {acc}")
        for x in fill[4*n:4*n+4]: a(x)
    BF = 112; P = 64
    cv = [f"v_cvt_pk_bf16_f32 v{BF+i}, v{ACC+2*i}, v{ACC+2*i+1}" for i in range(20)]
    if not hfirst:
        for x in cv: a(x)
        a("s_waitcnt lgkmcnt(0)\ns_barrier")
    hb = ACC + (80 if typ == 0 else 48)
    npair = 4 if typ == 0 else 8
    va = [f"v_mul_f32 v12, {LOG2E}, v{RSTD}", f"v_mul_f32 v14, v{RSTD}, v{RSTD}"]
    for m in range(npair):
        b = hb + 8*m
        for i in range(8): va.append(f"v_max_f32 v{b+i}, 0, v{b+i}")
        for i in range(4): va.append(f"v_pk_mul_f32 {vr(136+2*i,2)}, {vr(b+2*i,2)}, v[14:15] op_sel_hi:[1,0]")
        for i in range(4): va.append(f"v_pk_mul_f32 {vr(b+2*i,2)}, {vr(136+2*i,2)}, {vr(b+2*i,2)}")
        for i in range(4): va.append(f"v_cvt_pk_bf16_f32 v{b+i}, v{b+2*i}, v{b+2*i+1}")
        va.append(f"buffer_store_dwordx4 {vr(b,4)}, v15, s[16:19], s43 offen offset:{(m>>1)*1024 + (m&1)*512} sc1")
    if OPT['gh'] == 2 or (OPT['gh'] == 3 and typ == 0): va.append(f"v_mov_b32 v1, 1\nv_mov_b32 v2, {W_O}\ns_mov_b64 exec, 1\nds_add_u32 v2, v1\ns_mov_b64 exec, -1")
    if hfirst:
        a("s_waitcnt lgkmcnt(15)")
        for x in va[:23]: a(x)
        a("s_waitcnt lgkmcnt(0)\ns_barrier")
        for x in va[23:] + cv + ["s_nop 1"]: a(x)
        va = []
    if typ == 0:
        vb = ACC + 40
        for i in range(20):
            va += [f"v_pk_mul_f32 {vr(vb+2*i,2)}, {vr(vb+2*i,2)}, {vr(RSTD,2)} op_sel_hi:[1,0]", f"v_cvt_pk_bf16_f32 v{vb+i}, v{vb+2*i}, v{vb+2*i+1}"]
        for i in range(5): va.append(f"ds_write_b128 v8, {vr(vb+4*i,4)} offset:{320+16*i}")
        va += ["v_mov_b32 v2, 0x3f80", "v_mov_b32 v3, 0", "ds_write_b64 v0, v[2:3] offset:480"]
    k = 0
    seen = set()
    for n, (T, u) in enumerate(order):
        d = vr(P + 16*T, 16)
        a(f"v_mfma_f32_32x32x16_bf16 {d}, {vr(bdr[(T,u)],4)}, {vr(BF+4*u,4)}, {d if T in seen else '0'}")
        seen.add(T)
        if n >= 2:
            for _ in range(6):
                if k < len(va): a(va[k]); k += 1
    while k < len(va): a(va[k]); k += 1
    stamp(a, 3)
    def hflag():
        a("s_waitcnt vmcnt(0)")
        arrive(a, C_H)
        a(f"s_cmp_eq_u32 s47, 3\ns_cbranch_scc0 {L}_nohf")
        flag_store(a, "s50")
        if typ == 1 and OPT['bp']:
            p2_ids(a, "s33", "s34")
            a(f"s_lshr_b32 s33, s33, 1\ns_lshl_b32 s33, s33, 11\ns_add_u32 s33, s33, {FL_H}\ns_mov_b64 s[34:35], 0xff00")
            poll(a, "s33", "s[34:35]", 60)
            setword(a, W_H)
        a(f"{L}_nohf:")
    if typ == 0:
        if OPT['hfa']: hflag()
        softmax(a, P, ACC, list(range(16, 26)), list(range(26, 36)))
        if not OPT['hfa']: hflag()
        for i in range(5): a(f"ds_write_b128 v9, {vr(16+4*i,4)} offset:{16*i}")
        if OPT['ek'] == 3: early_flag(a)
        softmax(a, P + 20, ACC + 20, list(range(36, 46)), list(range(46, 56)))
        stamp(a, 4)
        if OPT['ek'] == 4: early_flag(a)
        for i in range(5, 10): a(f"ds_write_b128 v9, {vr(16+4*i,4)} offset:{16*i}")
        signal(a, C_PV)
        dstamp(a, 1)
        spin(a, C_PV, 4)
        if OPT['ek'] == 1: early_flag(a)
        dstamp(a, 2)
        for st in range(8):
            for u in range(2):
                off = u*4*PV_PITCH + st*16*PV_PITCH
                a(f"ds_read_b64_tr_b16 {vr(64+12*st+2*u,2)}, v61 offset:{off}\nds_read_b64_tr_b16 {vr(68+12*st+2*u,2)}, v61 offset:{off+40}\nds_read_b64_tr_b16 {vr(72+12*st+2*u,2)}, v62 offset:{off}")
            if st >= 2:
                a("s_waitcnt lgkmcnt(12)")
                for sg in range(2):
                    d = vr(160 + 16*sg, 16)
                    a(f"v_mfma_f32_32x32x16_bf16 {d}, {vr(64+12*(st-2)+4*sg,4)}, {vr(72+12*(st-2),4)}, {'0' if st == 2 else d}")
        for st in range(6, 8):
            a(f"s_waitcnt lgkmcnt({42-6*st})")
            for sg in range(2):
                d = vr(160 + 16*sg, 16)
                a(f"v_mfma_f32_32x32x16_bf16 {d}, {vr(64+12*st+4*sg,4)}, {vr(72+12*st,4)}, {d}")
        dstamp(a, 3)
        if OPT['ek'] == 2: early_flag(a)
        a("s_mov_b32 exec_lo, 0x1fffff\ns_mov_b32 exec_hi, 0x1fffff\ns_nop 7\ns_nop 2")
        for sg in range(2):
            for i in range(4): a(f"v_cvt_pk_bf16_f32 v{200+4*sg+i}, v{160+16*sg+2*i}, v{161+16*sg+2*i}")
            for i in range(2): a(f"v_cvt_pk_bf16_f32 v{208+2*sg+i}, v{168+16*sg+2*i}, v{169+16*sg+2*i}")
            a(f"buffer_store_dwordx4 {vr(200+4*sg,4)}, v63, s[16:19], s56 offen offset:{672*sg} sc1")
        a("s_mov_b32 exec_hi, 0")
        a(f"buffer_store_dwordx4 v[208:211], v63, s[16:19], s56 offen offset:1344 sc1")
        a("s_mov_b64 exec, -1\ns_branch F_fin")
    else:
        if OPT['hfb']: hflag()
        for hh in range(2):
            o = 16 + 20*hh
            softmax(a, P + 20*hh, ACC + 20*hh, [o+i for i in range(8)] + [o+16, o+17], [o+8+i for i in range(8)] + [o+18, o+19])
            if hh == 0 and not OPT['hfb']: hflag()
        stamp(a, 4)
        otask(a)
    a(f"""
    {L}_it2:
    s_cmp_eq_u32 s40, 0
    s_cbranch_scc1 {L}_it0
    v_mov_b32 v13, {W_N}
    ds_read_b32 v12, v13
    s_waitcnt vmcnt(0) lgkmcnt(0)
    s_barrier
    v_readfirstlane_b32 {NC}, v12
    s_cmp_eq_u32 s31, 0
    s_cbranch_scc0 {L}_it2r
    v_mov_b32 v13, 0
    s_mov_b64 exec, 1
    buffer_store_dword v12, v13, s[16:19], s54 offen sc1
    s_mov_b64 exec, -1
    s_branch {L}_it2r
    {L}_it0:
    """)
    if typ == 0:
        a("""
        v_lshlrev_b32 v13, 4, v60
        buffer_store_dwordx4 v[16:19], v13, s[16:19], s56 offen sc1
        v_cmp_gt_u32 vcc, 41, v60
        s_mov_b64 exec, vcc
        buffer_store_dwordx4 v[16:19], v13, s[16:19], s56 offen offset:1024 sc1
        s_mov_b64 exec, -1
        """)
    else:
        for p in range(0, 10, 2): a(f"buffer_store_dwordx4 v[16:19], v15, s[16:19], s56 offen offset:{256*p} sc1")
    a(f"s_waitcnt lgkmcnt(0)\ns_barrier\ns_branch {L}_it2r")

def addr_setup(a, typ):
    nh = 2 if typ == 0 else 4
    a(f"""
    v_mul_u32_u24 v{QA}, {QP[typ]}, v61
    v_mul_u32_u24 v14, {QP[typ]//2}, v62
    v_lshlrev_b32 v15, 3, v63
    v_add3_u32 v{QA}, v{QA}, v14, v15
    v_add_u32 v{QA}, {QB + SLOT}, v{QA}
    v_lshlrev_b32 v{HA}, {7 if typ == 0 else 8}, v61
    v_and_b32 v14, 16, v60
    v_lshlrev_b32 v14, 1, v14
    v_lshl_add_u32 v14, v62, 4, v14
    v_and_b32 v15, 2, v60
    v_lshl_add_u32 v14, v15, 2, v14
    v_add_u32 v{HA}, v{HA}, v14
    v_add_u32 v{HA}, {HB[typ] + SLOT}, v{HA}
    """)
    if typ == 0: a(f"v_and_b32 v14, 8, v60\nv_lshl_add_u32 v{HA}, v14, 3, v{HA}")
    else:        a(f"v_and_b32 v14, 12, v60\nv_lshl_add_u32 v{HA}, v14, 4, v{HA}")
    for i in range(1, nh): a(f"v_xor_b32 v{HA+i}, {64*i}, v{HA}")
    a(f"""
    s_lshl_b32 s43, s28, 3
    s_lshl_b32 s44, s31, 1
    s_add_u32 s43, s43, s44
    s_mul_i32 s43, s43, {68*1024}
    s_mul_i32 s56, s29, 2560
    s_add_u32 s56, s56, s43
    s_add_u32 s56, s56, {WS_A2 + 192*256}
    s_lshl_b32 s44, s29, {11 if typ == 0 else 12}
    s_add_u32 s43, s43, s44
    s_add_u32 s43, s43, {WS_A2 + (32*1024 if typ == 0 else 0)}
    v_and_b32 v15, 16, v60
    v_mul_u32_u24 v15, {68*64}, v15
    v_and_b32 v13, 15, v60
    v_lshl_add_u32 v15, v13, 4, v15
    v_and_b32 v13, 32, v60
    v_lshl_add_u32 v15, v13, 3, v15
    v_mov_b32 v16, -1
    v_mov_b32 v17, -1
    v_mov_b32 v18, -1
    v_mov_b32 v19, -1
    """)
    if typ == 0:
        a(f"""
        v_and_b32 v0, 31, v60
        s_lshl_b32 s44, s31, 5
        v_lshrrev_b32 v13, 5, v60
        v_mul_u32_u24 v63, 336, v13
        v_lshl_add_u32 v63, v0, 4, v63
        v_add_u32 v0, s44, v0
        v_mul_u32_u24 v0, {PV_PITCH}, v0
        v_add_u32 v0, {PVB}, v0
        v_mul_u32_u24 v13, 80, v13
        v_add_u32 v8, v0, v13
        v_add_u32 v9, v8, v13
        v_mul_u32_u24 v20, {PV_PITCH}, v61
        v_add_u32 v20, {PVB}, v20
        v_bfe_u32 v21, v60, 1, 1
        v_lshl_add_u32 v21, v62, 1, v21     ; fmap for pc<4
        v_and_b32 v22, 16, v60
        v_cmp_eq_u32 vcc, 0, v22
        s_mul_i32 s44, s31, 80
        s_and_b32 s46, s31, 1
        v_cndmask_b32 v21, 4, v21, vcc
        v_lshl_add_u32 v61, v21, 3, v20
        v_add_u32 v61, s44, v61
        v_add_u32 v21, s46, v21
        v_cmp_eq_u32 vcc, 5, v21
        s_mul_i32 s44, s31, 40
        s_add_u32 s44, s44, 320
        v_cndmask_b32 v21, v21, 0, vcc
        v_lshl_add_u32 v21, v21, 3, s44
        v_and_b32 v22, 19, v60
        v_cmp_lt_u32 vcc, 16, v22
        v_mov_b32 v23, 480
        s_lshl_b32 s56, s29, 2
        s_add_u32 s56, s56, s31             ; head
        v_cndmask_b32 v21, v21, v23, vcc
        v_add_u32 v62, v21, v20             ; B address
        s_lshl_b32 s56, s56, 4
        s_add_u32 s56, s56, s28
        s_mul_i32 s56, s56, 1792
        s_add_u32 s56, s56, {WS_KVP}
        """)

def otask(a):
    for hh in range(2):
        for sg in range(2):
            for q in range(4): a(f"v_permlane32_swap_b32 v{16+20*hh+8*sg+q}, v{20+20*hh+8*sg+q}")
    a(f"""
    v_lshrrev_b32 v3, 4, v60
    v_mul_u32_u24 v4, 1792, v3
    v_and_b32 v5, 15, v60
    v_lshl_add_u32 v4, v5, 4, v4
    v_lshlrev_b32 v12, 7, v5
    s_lshl_b32 s45, s29, 11
    s_add_u32 s45, s45, {FL_KV}
    s_lshl_b32 s33, s29, 2
    s_add_u32 s33, s33, s31
    s_mul_i32 s33, s33, {16*1792}
    s_add_u32 s33, s33, {WS_KVP}
    v_and_b32 v6, 1, v60
    v_lshlrev_b32 v6, 4, v6
    v_mov_b32 v7, 0x3f80
    v_lshlrev_b32 v6, v6, v7
    v_lshrrev_b32 v7, 1, v5
    """)
    for q in range(4): a(f"v_cmp_eq_u32 vcc, {q}, v7\ns_nop 1\nv_cndmask_b32 v{56+q}, 0, v6, vcc")
    a(f"""
    s_mul_i32 s34, s31, 1792
    s_add_u32 s34, s34, {L_STG}
    v_lshlrev_b32 v5, 4, v5
    v_bfe_u32 v6, v60, 4, 1
    v_lshl_add_u32 v5, v6, 3, v5
    v_add_u32 v5, s34, v5
    v_and_b32 v6, 31, v60
    v_min_u32 v6, 20, v6
    v_lshrrev_b32 v7, 5, v60
    v_mul_u32_u24 v8, 336, v7
    v_lshlrev_b32 v6, 4, v6
    v_add_u32 v6, {L_STG}, v6
    v_add_u32 v8, v8, v6
    v_add_u32 v6, 1344, v6
    v_mov_b32 v9, {L_BD + 2*3840 + 1024}
    v_cmp_gt_u32 vcc, 32, v60
    v_add_u32 v10, {2*1792}, v6
    s_mov_b32 s38, 0x01ff01ff
    s_mov_b32 s39, 0x01ff01ff
    v_cndmask_b32 v6, v9, v6, vcc
    v_cndmask_b32 v10, v10, v9, vcc
    s_cmp_eq_u32 s31, 0
    s_cbranch_scc0 F_o1w
    s_mov_b32 s48, 0
    s_mov_b64 exec, 0xffff
    F_o1:
    buffer_load_dword v3, v12, s[16:19], s45 offen sc1
    s_add_u32 s48, s48, 1
    s_waitcnt vmcnt(0)
    v_cmp_eq_u32 vcc, {NC}, v3
    s_mov_b32 s47, 3
    s_cmp_ge_u32 s48, {TMO}
    s_cbranch_scc1 F_o1x
    s_and_b32 s36, vcc_lo, 0xff
    s_cmp_eq_u32 s36, 0xff
    s_cselect_b32 s47, 1, 0
    s_cmp_ge_u32 vcc_lo, 0xff00
    s_cselect_b32 s36, 2, 0
    s_or_b32 s47, s47, s36
    s_cbranch_scc0 F_o1
    F_o1x:
    v_mov_b32 v1, s47
    v_mov_b32 v2, {W_KV}
    ds_write_b32 v2, v1
    s_mov_b64 exec, -1
    s_branch F_o1y
    F_o1w:
    """)
    spin(a, W_KV, 1)
    a(f"""
    F_o1y:
    s_mov_b32 s34, s47
    s_cmp_eq_u32 s47, 2
    s_cselect_b32 s35, {8*1792}, 0
    s_add_u32 s36, s33, s35
    s_xor_b32 s35, s35, {8*1792}
    s_add_u32 s35, s33, s35
    s_add_u32 s37, s36, {4*1792}
    s_add_u32 s44, s35, {4*1792}
    """)
    stamp(a, 5)
    LD = 140
    def loads(h, s0, s1):
        for i in range(2):
            for g in range(7): a(f"buffer_load_dwordx4 {vr(LD+4*(14*h+7*i+g),4)}, v4, s[16:19], {(s0, s1)[i]} offen offset:{256*g} sc1")
    def verify(h, L):
        r = [LD + 4*(14*h+7*i+g) + 3 for i in range(2) for g in range(6)]
        a(f"v_max3_u32 v11, v{r[0]}, v{r[1]}, v{r[2]}\nv_max3_u32 v13, v{r[3]}, v{r[4]}, v{r[5]}")
        a(f"v_max3_u32 v11, v11, v{r[6]}, v{r[7]}\nv_max3_u32 v13, v13, v{r[8]}, v{r[9]}\nv_max3_u32 v11, v11, v{r[10]}, v{r[11]}")
        a(f"""
        v_max_u32 v14, v{LD+4*(14*h+6)+3}, v{LD+4*(14*h+13)+3}
        v_max_u32 v11, v11, v13
        v_cmp_eq_u32 s[46:47], -1, v14
        v_cmp_eq_u32 vcc, -1, v11
        s_add_u32 s49, s49, 1
        s_and_b64 s[46:47], s[46:47], s[38:39]
        s_or_b64 vcc, vcc, s[46:47]
        s_cmp_ge_u32 s49, {TMO}
        s_cselect_b64 vcc, 0, vcc
        s_cbranch_vccnz {L}
        """)
    a("s_mov_b32 s49, 0\nF_o2:")
    loads(0, "s36", "s37")
    a(f"""
    s_cmp_eq_u32 s34, 3
    s_cbranch_scc1 F_o3x
    s_cmp_eq_u32 s31, 0
    s_cbranch_scc0 F_o3w
    s_mov_b64 s[40:41], 0xffff
    """)
    if OPT['k2'] == 1:
        a("s_and_b32 s40, s34, 1\ns_lshl_b32 s40, s40, 10\ns_add_u32 s45, s45, s40")
        spoll(a, "s45", [40, 41, 42, 43, 46, 47, 57, 58])
    else: poll(a, "s45", "s[40:41]", 60)
    a(f"v_mov_b32 v1, 1\nv_mov_b32 v2, {W_K2}\nds_write_b32 v2, v1\ns_branch F_o3x\nF_o3w:")
    spin(a, W_K2, 1)
    a("F_o3x:\ns_mov_b32 s34, 3")
    dstamp(a, 1)
    loads(1, "s35", "s44")
    for h in range(2):
        a(f"s_waitcnt vmcnt({14 - 14*h})\nF_ov{h}:")
        verify(h, f"F_or{h}")
        for i in range(2):
            for g in range(7):
                d = vr(64 + 4*g, 4)
                a(f"v_mfma_f32_16x16x32_bf16 {d}, v[56:59], {vr(LD+4*(14*h+7*i+g),4)}, {'0' if h + i == 0 else d}")
    a("s_nop 0")
    dstamp(a, 2)
    if OPT['eo'] == 3: early_flag(a)
    a("s_mov_b32 exec_hi, 0")
    for g in range(7):
        a(f"v_cvt_pk_bf16_f32 v{96+2*g}, v{64+4*g}, v{65+4*g}\nv_cvt_pk_bf16_f32 v{97+2*g}, v{66+4*g}, v{67+4*g}\nds_write_b64 v5, {vr(96+2*g,2)} offset:{256*g}")
    signal(a, C_OB)
    spin(a, C_OB, 4)
    if OPT['eo'] == 1: early_flag(a)
    dstamp(a, 3)
    AF = 64
    for hd in range(4):
        for st in range(2): a(f"ds_read_b128 {vr(AF+12*hd+4*st,4)}, v8 offset:{1792*hd + 672*st}")
        a(f"ds_read_b128 {vr(AF+12*hd+8,4)}, v{6 if hd < 2 else 10} offset:{1792*(hd&1)}")
    OD = 128
    pp = [0, 3, 5, 8]
    def norm(hd):
        d = OD + 16*hd
        r = [f"v_add_f32 v{d+12}, 0x358637bd, v{d+12}", f"v_rcp_f32 v{d+12}, v{d+12}", "s_nop 0"]
        for i in range(6): r.append(f"v_pk_mul_f32 {vr(d+2*i,2)}, {vr(d+2*i,2)}, {vr(d+12,2)} op_sel_hi:[1,0]")
        for i in range(4): r.append(f"v_cvt_pk_bf16_f32 v{d+i}, v{d+2*i}, v{d+2*i+1}")
        for i in range(2): r.append(f"v_cvt_pk_bf16_f32 v{112+2*hd+i}, v{d+8+2*i}, v{d+9+2*i}")
        r.append(f"buffer_store_dwordx4 {vr(d,4)}, v15, s[16:19], s56 offen offset:{256*pp[hd]} sc1")
        return r
    q = []
    for up in range(2):
        for st in range(3):
            for hh in range(2):
                hd = 2*up + hh
                if st == 0: a(f"s_waitcnt lgkmcnt({9-3*hd})")
                b = 16 + 20*hh + (8*st + 4*up if st < 2 else 16)
                d = vr(OD + 16*hd, 16)
                a(f"v_mfma_f32_32x32x16_bf16 {d}, {vr(AF+12*hd+4*st,4)}, {vr(b,4)}, {'0' if st == 0 else d}")
                if up == 1 and st == 0 and hh == 1: q = ['s_nop 6'] + norm(0) + norm(1)
                for _ in range(7):
                    if q: a(q.pop(0))
    for x in q: a(x)
    a("s_mov_b32 exec_hi, 0")
    a(f"buffer_store_dwordx4 v[112:115], v15, s[16:19], s56 offen offset:{256*2} sc1\ns_mov_b32 exec_hi, -1\ns_nop 3")
    for x in norm(2) + norm(3): a(x)
    a("s_mov_b32 exec_hi, 0")
    a(f"buffer_store_dwordx4 v[116:119], v15, s[16:19], s56 offen offset:{256*7} sc1")
    a("s_mov_b64 exec, -1\ns_branch F_fin")
    for h in range(2):
        a(f"F_or{h}:")
        loads(h, *(("s36", "s37"), ("s35", "s44"))[h])
        a(f"s_waitcnt vmcnt(0)\ns_branch F_ov{h}")

def fin(a):
    a("F_fin:")
    stamp(a, 6)
    if OPT['eo'] == 0 or OPT['ek'] == 0:
        arrive(a, C_O)
        a("s_cmp_eq_u32 s47, 3\ns_cbranch_scc0 F_ot_end")
        if OPT['ek']: a("s_cmp_eq_u32 s30, 1\ns_cbranch_scc0 F_ot_end")
        flag_store(a, "s51")
    else:
        signal(a, C_O)
        a("s_waitcnt lgkmcnt(0)")
    a("F_ot_end:")
    stamp(a, 7)
    stamp_flush(a, 8, 1)
    a("s_endpgm")

def dma(a, base, j, v, srd_, soff):
    a(f"s_add_u32 m0, {base}, {1024*j}\ns_nop 0\nbuffer_load_dwordx4 v{v}, {srd_}, {soff} offen lds")
def issue_head(a):
    a("""
    s_lshl_b32 s34, s32, 7
    s_mul_i32 s35, s32, 245760
    s_mul_i32 s36, s32, 196608
    s_add_u32 s41, s33, s45
    s_add_u32 s42, s33, s46
    s_add_u32 s43, s33, s47
    """)
def issue_tail(a):
    a(f"""
    s_add_u32 s32, s32, 1
    s_cmp_eq_u32 s32, 10
    s_cselect_b32 s32, 0, s32
    s_add_u32 s33, s33, {SLOT}
    s_cmp_eq_u32 s33, {3*SLOT}
    s_cselect_b32 s33, 0, s33
    """)
def first_chunk(a, typ):
    nq = 5 if typ == 0 else 3
    nh = 2 if typ == 0 else 4
    for j in range(nh):
        if j == 0:
            if typ == 0:
                a(f"""
                s_lshl_b32 s37, s31, 4
                v_lshrrev_b32 v3, 3, v60
                v_add_u32 v3, s37, v3               ; row
                v_lshrrev_b32 v4, 2, v60
                v_and_b32 v4, 4, v4
                v_and_b32 v5, 7, v60
                v_xor_b32 v4, v4, v5
                v_mul_u32_u24 v3, 3072, v3
                v_lshl_add_u32 v3, v4, 4, v3
                v_add_u32 v19, s39, v3
                """)
            else:
                a(f"""
                s_lshl_b32 s37, s31, 4
                v_lshrrev_b32 v3, 4, v60
                v_lshlrev_b32 v4, 2, v3
                v_add_u32 v3, s37, v3               ; row
                v_and_b32 v5, 15, v60
                v_xor_b32 v4, v4, v5
                v_mul_u32_u24 v3, 3072, v3
                v_lshl_add_u32 v3, v4, 4, v3
                v_add_u32 v19, s39, v3
                """)
        else:
            a(f"v_add_u32 v{19+j}, {(8 if typ == 0 else 4)*3072*j}, v19")
        dma(a, "s43", j, 19 + j, "s[12:15]", "s36")
    a(f"s_mul_i32 s37, s31, {16*3840}\ns_add_u32 s38, s38, s37")
    for j in range(nq):
        a(f"v_add_u32 v2, {64*j}, v60")
        if typ == 0:
            a(f"""
            v_mul_u32_u24 v3, 3277, v2
            v_lshrrev_b32 v3, 16, v3            ; row
            v_mul_u32_u24 v4, 20, v3
            v_sub_u32 v4, v2, v4                ; pos
            v_mul_u32_u24 v5, 52, v4
            v_lshrrev_b32 v5, 8, v5             ; seg
            v_mul_u32_u24 v3, 3840, v3
            v_lshl_add_u32 v3, v4, 4, v3
            v_and_b32 v6, 1, v5
            v_mul_u32_u24 v6, 1200, v6
            v_lshrrev_b32 v5, 1, v5
            v_mul_u32_u24 v5, 80, v5
            v_add3_u32 v3, v3, v6, s38
            v_sub_u32 v{14+j}, v3, v5
            """)
        else:
            a(f"""
            v_mul_u32_u24 v3, 5462, v2
            v_lshrrev_b32 v3, 16, v3            ; row
            v_mul_u32_u24 v4, 12, v3
            v_sub_u32 v4, v2, v4                ; pos
            v_mul_u32_u24 v5, 43, v4
            v_lshrrev_b32 v5, 8, v5             ; seg
            v_sub_u32 v6, v4, v5
            v_mul_u32_u24 v3, 3840, v3
            v_lshl_add_u32 v3, v6, 4, v3
            v_add_u32 v{14+j}, s38, v3
            """)
        dma(a, "s42", j, 14 + j, "s[8:11]", "s35")

def issue_sub(a):
    a("F_issue:")
    issue_head(a)
    for j in range(4): dma(a, "s41", j, 10 + j, "s[4:7]", "s34")
    for j in range(3): dma(a, "s42", j, 14 + j, "s[8:11]", "s35")
    for j in range(2): dma(a, "s43", j, 19 + j, "s[12:15]", "s36")
    a("s_cmp_eq_u32 s30, 1\ns_cbranch_scc1 F_issue_b")
    for j in range(3, 5): dma(a, "s42", j, 14 + j, "s[8:11]", "s35")
    a("s_branch F_issue_e\nF_issue_b:")
    for j in range(2, 4): dma(a, "s43", j, 19 + j, "s[12:15]", "s36")
    a("F_issue_e:")
    issue_tail(a)
    a("s_setpc_b64 s[56:57]")
CALL = "s_call_b64 s[56:57], F_issue"

def cols_addr(a, typ):
    nql = 40 if typ == 0 else 24
    if typ == 0:
        a(f"""
        v_mul_u32_u24 v2, 26, v60
        v_lshrrev_b32 v2, 8, v2             ; seg
        v_mul_u32_u24 v3, 10, v2
        v_sub_u32 v3, v60, v3               ; w
        v_and_b32 v4, 1, v2
        v_mul_u32_u24 v4, 640, v4
        v_lshrrev_b32 v2, 1, v2
        v_mul_u32_u24 v2, 40, v2
        v_lshl_add_u32 v2, v3, 2, v2
        s_mul_i32 s37, s29, 80
        s_add_u32 s37, s37, 640
        v_add3_u32 v2, v2, v4, s37          ; colQ
        s_lshl_b32 s37, s29, 6
        s_add_u32 s37, s37, {1024 - 4*nql}
        """)
    else:
        a(f"""
        v_mul_u32_u24 v2, 22, v60
        v_lshrrev_b32 v2, 8, v2             ; seg
        v_lshlrev_b32 v2, 1, v2
        v_sub_u32 v2, v60, v2
        s_mul_i32 s37, s29, 80
        v_lshl_add_u32 v2, v2, 2, s37       ; colQ
        s_lshl_b32 s37, s29, 7
        s_sub_u32 s37, s37, {4*nql}
        """)
    a(f"""
    v_lshl_add_u32 v3, v60, 2, s37          ; w1 column
    v_add_u32 v4, 1920, v3
    v_lshlrev_b32 v3, 1, v3
    v_mov_b32 v5, 0x40000000
    v_cmp_gt_u32 vcc, {nql}, v60
    v_mov_b32 v6, {2*SLOT + HB[typ] - 8*nql}
    v_mov_b32 v7, {2*SLOT + QB}
    v_cndmask_b32 v2, v4, v2, vcc
    v_cndmask_b32 v51, v3, v5, vcc
    v_cndmask_b32 v6, v6, v7, vcc
    v_lshl_add_u32 v6, v60, 3, v6           ; A0
    v_mov_b32 v7, {HP[typ]}
    v_mov_b32 v8, {QP[typ]}
    v_cndmask_b32 v7, v7, v8, vcc           ; pitch
    v_mov_b32 v8, 64
    v_cndmask_b32 v8, v8, v56, vcc          ; X
    v_lshlrev_b32 v50, 2, v2
    """)
    for k in range(5):
        xm = ((k >> 1) & 1) if typ == 0 else (k & 3)
        a(f"v_mul_u32_u24 v{40+k}, {xm}, v8\nv_xor_b32 v{40+k}, v{40+k}, v6\nv_mad_u32_u24 v{40+k}, v7, {k}, v{40+k}")

def helper(a):
    a(f"""
    F_helper:
    s_sub_u32 s31, s31, 4
    s_lshl_b32 s37, s28, 7
    s_lshl_b32 s38, s31, 5
    s_add_u32 s37, s37, s38             ; first token row
    v_lshrrev_b32 v2, 3, v60
    v_add_u32 v2, s37, v2
    v_mul_u32_u24 v2, 1280, v2
    v_lshrrev_b32 v3, 4, v60
    v_and_b32 v4, 7, v60
    v_xor_b32 v3, v3, v4
    v_lshl_add_u32 v10, v3, 4, v2
    v_xor_b32 v3, 4, v3
    v_lshl_add_u32 v11, v3, 4, v2
    v_add_u32 v11, {8*1280}, v11
    v_add_u32 v12, {16*1280}, v10
    v_add_u32 v13, {16*1280}, v11
    s_lshl_b32 s45, s31, 12
    s_cmp_eq_u32 s30, 1
    s_cselect_b32 s46, 3072, 5120
    s_cselect_b32 s47, 4096, 2048
    s_cselect_b32 s37, {HB[1]}, 0
    s_cselect_b32 s38, 0, {HB[0]}
    s_mul_i32 s46, s46, s31
    s_add_u32 s46, s46, {QB}
    s_mul_i32 s47, s47, s31
    s_add_u32 s47, s47, s37
    s_add_u32 s47, s47, s38
    s_mov_b32 s33, {SLOT}
    """.replace("s_cselect_b32 s46, 3072, 5120", "s_cselect_b32 s46, 3, 5\ns_lshl_b32 s46, s46, 10\ns_cmp_eq_u32 s30, 1").replace("s_cselect_b32 s47, 4096, 2048", "s_cselect_b32 s47, 4, 2\ns_lshl_b32 s47, s47, 10\ns_cmp_eq_u32 s30, 1"))
    issue_head(a)
    a("s_mul_i32 s38, s29, 160\ns_waitcnt lgkmcnt(0)")
    stamp(a, 1)
    for j in range(4): dma(a, "s41", j, 10 + j, "s[4:7]", "s34")
    a("""
    s_cmp_eq_u32 s30, 1
    s_cbranch_scc1 F_hb
    s_add_u32 s38, s38, 1280
    s_lshl_b32 s39, s29, 7
    s_add_u32 s39, s39, 2048
    """)
    first_chunk(a, 0)
    a("v_mov_b32 v21, v19\nv_mov_b32 v22, v19\ns_branch F_hc\nF_hb:\ns_lshl_b32 s39, s29, 8")
    first_chunk(a, 1)
    a("v_mov_b32 v17, v14\nv_mov_b32 v18, v14\nF_hc:")
    issue_tail(a)
    a(CALL)
    a(f"""
    s_mov_b32 s40, s2
    s_mov_b32 s44, s31
    s_cmp_lt_u32 s31, 2
    s_cselect_b32 s58, 1, 0
    s_cbranch_scc1 F_wt_sel
    s_and_b32 s44, s2, 1
    s_lshr_b32 s40, s2, 1
    s_add_u32 s40, s40, {256 - 112}
    s_cmp_eq_u32 s31, 2
    s_cselect_b32 s58, 1, 0
    s_cmp_ge_u32 s2, 224
    s_cselect_b32 s58, s58, 0
    F_wt_sel:
    s_mul_i32 s49, s31, 5120
    s_add_u32 s49, s49, {L_STG}
    v_mov_b32 v62, 0
    v_mov_b32 v63, 0
    s_cmp_eq_u32 s58, 0
    s_cbranch_scc1 F_wt_skip1
    """)
    t = Asm(); t.nlabel = 900
    wt_task(t, "s40", "s44", "s49", 60, SW2, SWO, "s[16:19]", "FW")
    txt = t.text()
    import re
    remap = {20: 62, 21: 63, 22: 23, 23: 24, 24: 25, 25: 26, 26: 27}
    txt = re.sub(r"\bv(2[0-6])\b", lambda m: f"v{remap[int(m.group(1))]}", txt)
    a(txt)
    a(f"""
    F_wt_skip1:
    s_lshl_b32 s37, s29, 2
    s_add_u32 s37, s37, s31
    s_mul_i32 s37, s37, 800
    v_lshlrev_b32 v2, 3, v60
    buffer_load_dwordx2 v[30:31], v2, s[20:23], s37 offen
    buffer_load_dwordx2 v[32:33], v2, s[20:23], s37 offen offset:512
    v_mov_b32 v56, 0
    v_mov_b32 v57, 0
    v_mov_b32 v58, 0
    v_mov_b32 v59, 0
    s_mul_i32 s37, s31, 2880
    s_add_u32 s37, s37, {L_BD}
    v_lshl_add_u32 v2, v60, 4, s37
    ds_write_b128 v2, v[56:59]
    ds_write_b128 v2, v[56:59] offset:1024
    ds_write_b128 v2, v[56:59] offset:1856
    v_lshlrev_b32 v61, 2, v60
    v_min_u32 v2, 60, v61
    v_add_u32 v2, {L_CNT}, v2
    ds_write_b32 v2, v56
    v_mov_b32 v50, 0
    v_mov_b32 v51, 0
    s_cmp_eq_u32 s31, 3
    s_cbranch_scc0 F_ca2
    s_cmp_eq_u32 s30, 1
    s_cbranch_scc1 F_ca1
    """)
    cols_addr(a, 0)
    a("s_branch F_ca2\nF_ca1:")
    cols_addr(a, 1)
    a(f"""
    F_ca2:
    v_mov_b32 v49, {W_N}
    s_mov_b32 s40, {FL_S}
    s_cmp_eq_u32 s58, 1
    s_cbranch_scc1 F_wt_j1
    s_waitcnt vmcnt(13)
    F_wt_j1:
    s_waitcnt vmcnt(18) lgkmcnt(0)
    s_barrier
    {CALL}
    s_waitcnt vmcnt(13)
    s_barrier
    s_cmp_eq_u32 s58, 0
    s_cbranch_scc1 F_wt_skip2
    """)
    for nt in range(5):
        for u in range(2): a(f"ds_read_b64_tr_b16 {vr(64+4*nt+2*u,2)}, v62 offset:{u*640 + 8*nt}")
    a(f"{CALL}\ns_waitcnt lgkmcnt(0)")
    for nt in range(5):
        a(f"buffer_store_dwordx4 {vr(64+4*nt,4)}, v63, s[16:19], s{54 if nt < 4 else 55} offen offset:{(nt%4)*1024}{SC}")
    a(f"""
    s_waitcnt vmcnt(16)
    s_branch F_wt_j2
    F_wt_skip2:
    s_buffer_load_dword {NC}, {SDBG}, 0
    {CALL}
    s_cmp_eq_u32 s31, 3
    s_cbranch_scc0 F_ng_x
    s_mov_b32 s48, 0
    s_waitcnt lgkmcnt(0)
    s_cmp_eq_u32 {NC}, 0
    s_cbranch_scc0 F_ng_y
    F_ng:
    s_buffer_load_dword {NC}, {SDBG}, 0 glc
    s_add_u32 s48, s48, 1
    s_waitcnt lgkmcnt(0)
    s_cmp_ge_u32 s48, {TMO}
    s_cbranch_scc1 F_ng_y
    s_cmp_eq_u32 {NC}, 0
    s_cbranch_scc1 F_ng
    F_ng_y:
    v_mov_b32 v2, {NC}
    ds_write_b32 v49, v2
    F_ng_x:
    s_waitcnt vmcnt(11) lgkmcnt(0)
    F_wt_j2:
    s_barrier
    """)
    for k in range(3, 7):
        a(CALL)
        if k == 5: a(f"""
    s_sub_u32 s37, s31, 1
    s_lshl_b32 s37, s37, 6
    v_add_u32 v2, s37, v60
    v_and_b32 v2, 127, v2
    v_lshlrev_b32 v45, 3, v2
    v_lshlrev_b32 v46, 7, v2
    v_and_b32 v7, 14, v2
    v_lshl_add_u32 v46, v7, 3, v46
    v_add_u32 v46, {2*SLOT}, v46
    v_xor_b32 v47, 16, v46
    v_lshlrev_b32 v48, 2, v2
    v_add_u32 v48, {L_RSTD}, v48
    v_lshrrev_b32 v61, 2, v60
    v_lshlrev_b32 v61, 7, v61
    v_and_b32 v3, 3, v60
    v_lshl_add_u32 v61, v3, 4, v61
 """)
        a("s_waitcnt vmcnt(11)\ns_barrier")
    a(f"""
    s_cmp_eq_u32 s31, 3
    s_cbranch_scc1 F_pl
    {CALL}
    s_waitcnt vmcnt(11)
    s_branch F_pollx
    F_pl:
    buffer_load_dwordx4 v[36:39], v61, s[16:19], s40 offen sc1
    {CALL}
    s_mov_b32 s48, 0
    s_waitcnt vmcnt(11)
    F_poll:
    v_min3_u32 v2, v36, v37, v38
    v_max3_u32 v3, v36, v37, v38
    v_min_u32 v2, v2, v39
    v_max_u32 v3, v3, v39
    v_cmp_eq_u32 s[38:39], {NC}, v2
    v_cmp_eq_u32 vcc, {NC}, v3
    s_and_b64 vcc, vcc, s[38:39]
    s_add_u32 s48, s48, 1
    s_cmp_ge_u32 s48, {TMO}
    s_cbranch_scc1 F_pollx
    s_cmp_eq_u64 vcc, -1
    s_cbranch_scc1 F_pollx
    buffer_load_dwordx4 v[36:39], v61, s[16:19], s40 offen sc1
    s_waitcnt vmcnt(0)
    s_branch F_poll
    F_pollx:
    s_barrier
    """)
    a(CALL)
    a(f"""
    s_cmp_eq_u32 s31, 3
    s_cbranch_scc1 F_ldc
    s_lshl_b32 s38, s28, 10
    buffer_load_dwordx2 v[64:65], v45, s[16:19], s38 offen sc1
    s_waitcnt vmcnt(12)
    s_branch F_ldx
    F_ldc:
    s_mov_b32 s37, {WS_COLS}
    """)
    for i in range(8): a(f"buffer_load_dwordx4 {vr(64+4*i,4)}, v50, s[16:19], s37 offen sc1\ns_add_u32 s37, s37, {3456*4}")
    a(f"""
    buffer_load_dwordx2 v[52:53], v51, s[24:27], 0 offen
    s_waitcnt vmcnt(20)
    F_ldx:
    s_barrier
    ds_read_b32 v36, v49
    s_and_b32 s37, s31, 1
    s_mul_i32 s37, s37, {20*96 + 40}
    s_lshr_b32 s38, s31, 1
    s_mul_i32 s38, s38, 3840
    s_add_u32 s37, s37, s38
    s_add_u32 s37, s37, {L_BD}
    v_mul_u32_u24 v2, 205, v60
    v_lshrrev_b32 v2, 10, v2
    v_mul_u32_u24 v2, 56, v2
    v_lshl_add_u32 v2, v60, 3, v2
    v_add_u32 v28, s37, v2
    v_add_u32 v3, 64, v60
    v_mul_u32_u24 v2, 205, v3
    v_lshrrev_b32 v2, 10, v2
    v_mul_u32_u24 v2, 56, v2
    v_lshl_add_u32 v2, v3, 3, v2
    v_add_u32 v29, s37, v2
    ds_write_b64 v28, v[30:31]
    v_cmp_gt_u32 vcc, 36, v60
    s_and_saveexec_b64 s[48:49], vcc
    ds_write_b64 v29, v[32:33]
    s_mov_b64 exec, -1
    s_mov_b32 s39, 0xffff0000
    """)
    p2_ids(a, "s28", "s29")
    a("v_mov_b32 v14, v60")
    p2_setup(a, "s31", 14)
    n1, n2 = OPT['w8'], OPT['w8'] + OPT['w9']
    wl = [ldW(i, nt, SC) for i in range(4) for nt in range(5)] + [wdma(0, j, nt) for j in range(2) for nt in range(5)]
    for x in wl[:n1]: a(x)
    p2_epi_addr(a, "s31", 14)
    a(f"""
    s_mul_i32 s37, s31, 5120
    s_add_u32 s57, s31, 1
    s_mul_i32 s58, s57, 20480
    s_lshl_b32 s57, s57, 12
    s_lshr_b32 s55, s28, 1
    s_lshl_b32 s55, s55, 2
    s_add_u32 s55, s55, s31
    s_lshl_b32 s55, s55, 8
    s_add_u32 s55, s55, {FL_O}
    s_waitcnt lgkmcnt(0)
    v_readfirstlane_b32 {NC}, v36
    s_cmp_eq_u32 s31, 3
    s_cbranch_scc1 F_w9
    s_waitcnt vmcnt({1+n1})
    F_w9:
    s_waitcnt vmcnt({9+n1})
    s_barrier
    s_waitcnt vmcnt({n1})
    s_cbranch_scc1 F_prc
    s_cmp_eq_u32 s31, 0
    s_cbranch_scc1 F_prx
    v_rcp_f32 v66, v65
    v_sub_f32 v64, 0, v64
    v_cvt_pk_bf16_f32 v68, v64, v64
    v_and_b32 v67, s39, v68
    v_sub_f32 v64, v64, v67
    v_cvt_pk_bf16_f32 v69, v64, v66
    v_and_b32 v67, s39, v69
    v_sub_f32 v66, v66, v67
    v_cvt_pk_bf16_f32 v70, v66, v56
    v_mov_b32 v71, 0
    ds_write_b128 v46, v[68:71]
    ds_write_b128 v47, v[56:59]
    ds_write_b32 v48, v65
    s_branch F_prx
    F_prc:
    """)
    for i in range(1, 8):
        for q in range(2): a(f"v_pk_add_f32 {vr(64+2*q,2)}, {vr(64+2*q,2)}, {vr(64+4*i+2*q,2)}")
    a("""
    v_cvt_pk_bf16_f32 v70, v64, v65
    v_cvt_pk_bf16_f32 v71, v66, v67
    v_lshlrev_b32 v72, 16, v70
    v_and_b32 v73, s39, v70
    v_lshlrev_b32 v74, 16, v71
    v_and_b32 v75, s39, v71
    v_sub_f32 v64, v64, v72
    v_sub_f32 v65, v65, v73
    v_sub_f32 v66, v66, v74
    v_sub_f32 v67, v67, v75
    v_cvt_pk_bf16_f32 v72, v64, v65
    v_cvt_pk_bf16_f32 v73, v66, v67
    v_cmp_gt_u32 vcc, 56, v60
    s_and_saveexec_b64 s[48:49], vcc
    ds_write_b64 v40, v[70:71]
    ds_write_b64 v41, v[72:73]
    ds_write_b64 v42, v[70:71]
    ds_write_b64 v43, v[52:53]
    ds_write_b64 v44, v[52:53]
    s_mov_b64 exec, -1
    F_prx:
    """)
    for x in wl[n1:n2]: a(x)
    a("v_add_u32 v15, s37, v6\nv_add_u32 v13, 61440, v15\nv_add_u32 v1, 112640, v15\ns_waitcnt lgkmcnt(0)\ns_barrier\ns_barrier")
    if OPT['gh'] == 3:
        a(f"s_mul_i32 s36, s30, {C_H - W_O}\ns_add_u32 s36, s36, {W_O}")
        spin(a, "s36", 4, va=10)
    elif OPT['gh']: spin(a, C_H if OPT['gh'] == 1 else W_O, 4, va=10)
    for x in wl[n2:]: a(x)

def wslot(typ, j): return j*20480 + (128*PV_PITCH if typ == 0 and j >= 2 else 0)
def wdma(typ, j, nt):
    t = f"s_add_u32 m0, s37, {wslot(typ, j) + (4096 if nt == 4 else 0)}\ns_nop 0\n" if nt in (0, 4) else ""
    if nt < 4: return t + f"buffer_load_dwordx4 v6, s[16:19], s33 offen offset:{nt*1024}{NS[OPT['nsw']]} lds"
    return t + f"buffer_load_dwordx4 v7, s[16:19], s33 offen{NS[OPT['nsw']]} lds\ns_add_u32 s33, s33, 20480"

class VM:
    def __init__(self, a): self.a = a; self.q = []
    def issue(self, tag, text): self.a(text); self.q.append(tag)
    def wait(self, tags, extra=""):
        last = max(i for i, t in enumerate(self.q) if t in tags)
        n = len(self.q) - 1 - last
        assert n < 64
        self.a(f"s_waitcnt vmcnt({n}){extra}")
def phase2(a):
    a("F_p2:\ns_cmp_eq_u32 s30, 1\ns_cbranch_scc1 F_p2_1")
    for typ in range(2):
        a(f"F_p2_{typ}:")
        phase2_t(a, typ)
        if typ == 0: a("s_branch F_p2_e")
    a("F_p2_e:")
    stamp(a, 7)
    a("s_waitcnt lgkmcnt(0)\ns_barrier")
    for m in range(3):
        for nt in range(5): a(f"ds_read_b128 {vr(20+20*m+4*nt,4)}, v{10+m} offset:{m*20480 + nt*1024}")
    for m in range(3):
        a(f"s_waitcnt lgkmcnt({10-5*m})")
        for q in range(10): a(f"v_pk_add_f32 {vr(AC2+2*q,2)}, {vr(AC2+2*q,2)}, {vr(20+20*m+2*q,2)}")
    for q in range(10): a(f"v_cvt_pk_bf16_f32 v{AC2+q}, v{AC2+2*q}, v{AC2+2*q+1}")
    a(f"buffer_store_dwordx4 {vr(AC2,4)}, v8, {SOUT}, s34 offen\nbuffer_store_dwordx4 {vr(AC2+4,4)}, v8, {SOUT}, s34 offen offset:16\nbuffer_store_dwordx2 {vr(AC2+8,2)}, v8, {SOUT}, s34 offen offset:32")
    a("s_add_u32 s31, s31, 4")
    stamp_flush(a, 8, 1)
    a("s_endpgm")
    for x in ool: a(x)

ool = []
def phase2_t(a, typ):
    nl = OPT['nlb'] if typ else OPT['nla']
    LA = OPT['la']
    vm = VM(a)
    for i in range(4):
        for nt in range(5): vm.q.append(("W", i))
    for j in range(nl):
        for nt in range(5):
            if j < 2: vm.q.append(("WL", j))
            else: vm.issue(("WL", j), wdma(typ, j, nt))
    stamp(a, 2)
    a(f"s_lshr_b32 s54, s28, 1\ns_lshl_b32 s54, s54, 11\ns_add_u32 s54, s54, {FL_H}\ns_mov_b64 s[38:39], {'0xff00' if OPT['bf'] else '0xffff'}\ns_mov_b64 s[40:41], 0xff")
    if not (typ == 1 and OPT['bp']):
        a(f"s_cmp_eq_u32 s31, 0\ns_cbranch_scc0 F_p2_wait{typ}")
        poll(a, "s54", "s[38:39]", 14, va=10)
        setword(a, W_H, va=10)
    a(f"F_p2_wait{typ}:")
    spin(a, W_H, 1, va=10)
    stamp(a, 3)
    if typ == 0 and OPT['ga']: spin(a, C_O, 4, va=10)
    gate = 4 + nl if typ == 1 and OPT['gb'] else 99
    for i in range(LA):
        for m in range(4): vm.issue(("A", i), ldA(i, m, SC))
    xe = AR + 32
    def lds_rd(i, nt):
        o = wslot(typ, i - 4) + nt*1024
        r, o = (15, o) if o < 61440 else (13, o - 61440) if o < 112640 else (1, o - 112640)
        return f"ds_read_b128 {vr(WR+20*(i%4)+4*nt,4)}, v{r} offset:{o}"
    FS = OPT['fast']
    def xadd():
        vm.wait(["x"])
        a("s_mov_b32 s39, 0xffff0000")
        for q in range(10):
            x = xe + q; b = xe + 10 + q
            t = xe + 20
            a(f"v_lshlrev_b32 v{t}, 16, v{x}\nv_and_b32 v{t+1}, s39, v{x}\nv_lshlrev_b32 v{t+2}, 16, v{b}\nv_and_b32 v{t+3}, s39, v{b}")
            a(f"v_pk_add_f32 {vr(t,2)}, {vr(t,2)}, {vr(t+2,2)}\nv_pk_add_f32 {vr(AC2+2*q,2)}, {vr(AC2+2*q,2)}, {vr(t,2)}")
    def prep():
        a("s_mov_b32 s48, 0")
        for m in range(1, 4):
            a(f"s_sub_u32 s36, s31, {m}\ns_and_b32 s36, s36, 3\ns_mul_i32 s36, s36, 5120\nv_add_u32 v{9+m}, s36, v6")
    def fo_issue():
        a("v_and_b32 v0, 1, v14\nv_lshlrev_b32 v0, 7, v0")
        vm.issue("fo", "buffer_load_dword v0, v0, s[16:19], s55 offen sc1")
    def steps(i0, i1, fast):
      tg = f"{typ}{'f' if fast else ''}"
      for i in range(i0, i1):
        if i == 12 and not fast:
            if not FS: xadd()
            stamp(a, 5)
            if typ == 0: spin(a, C_O, 4, va=10)
            vm.wait(["fo"])
            a(f"v_cmp_eq_u32 vcc, {NC}, v0\ns_cmp_eq_u64 vcc, -1\ns_cbranch_scc1 F_fo{typ}")
            poll(a, "s55", "3", 14, va=10)
            a(f"F_fo{typ}:")
            stamp(a, 6)
            a("s_mov_b32 s56, s32")
            for k in range(12, 17):
                for m in range(4): vm.issue(("A", k), ldA(k, m, SC))
            prep()
        if i == 12 and fast:
            stamp(a, 5)
            if typ == 0: spin(a, C_O, 4, va=10)
            prep()
        if i == gate:
            spin(a, C_OB if OPT['gb'] == 1 else C_O, 4, va=10)
            for k in range(gate, gate + 4):
                for nt in range(5): vm.issue(("W", k), ldW(k, nt, SC))
        if OPT['bf'] and i == OPT['fa']:
            a("v_and_b32 v12, 7, v14\nv_lshlrev_b32 v12, 7, v12")
            vm.issue("fa", "buffer_load_dword v12, v12, s[16:19], s54 offen sc1")
        if OPT['bf'] and i == 8 - LA:
            vm.wait(["fa"])
            a(f"v_cmp_eq_u32 vcc, {NC}, v12\ns_cmp_eq_u64 vcc, -1\ns_cbranch_scc1 F_fa{typ}")
            poll(a, "s54", "s[40:41]", 14, va=10)
            a(f"F_fa{typ}:")
        ex = ""
        if i == 16: ex = " lgkmcnt(0)"
        if 4 <= i < 4 + nl: ex = f" lgkmcnt({5*(min(i + 3, 3 + nl) - i)})"
        vm.wait([("A", i), ("W", i)] + ([("W", 16)] if i == 12 else []), ex)
        if i == 0: stamp(a, 4)
        if i >= 12:
            b = AR + 16*(i % 5)
            a(f"F_v{tg}_{i}:\nv_max3_u32 v0, v{b+3}, v{b+7}, v{b+11}\nv_max_u32 v0, v0, v{b+15}\nv_cmp_eq_u32 vcc, -1, v0\ns_cbranch_vccnz F_r{tg}_{i}\nF_g{tg}_{i}:")
            t = f"F_r{tg}_{i}:\ns_add_u32 s48, s48, 1\ns_cmp_ge_u32 s48, {TMO}\ns_cbranch_scc1 F_g{tg}_{i}\ns_add_u32 s36, s56, {(i-12)*1024}\n"
            for m in range(4): t += f"buffer_load_dwordx4 {vr(b+4*m,4)}, v{2+m}, s[16:19], s36 offen sc1\n"
            ool.append(t + f"s_waitcnt vmcnt(0)\ns_branch F_v{tg}_{i}")
        if i == 16:
            for m in (1, 2, 3, 0):
                for nt in range(5):
                    d = vr(AC2 + 20*m + 4*nt, 4)
                    a(f"v_mfma_f32_16x16x32_bf16 {d}, {vr(WR+20*(i%4)+4*nt,4)}, {vr(AR+16*(i%5)+4*m,4)}, {d}")
                    pm = (m - 1) % 4
                    if pm == 1 and nt == 0: a('s_nop 2')
                    if pm: a(f"ds_write_b128 v15, {vr(AC2+20*pm+4*nt,4)} offset:{(pm-1)*20480 + nt*1024}")
            continue
        for nt in range(5):
            for m in range(4):
                d = vr(AC2 + 20*m + 4*nt, 4)
                a(f"v_mfma_f32_16x16x32_bf16 {d}, {vr(WR+20*(i%4)+4*nt,4)}, {vr(AR+16*(i%5)+4*m,4)}, {'0' if i == 0 else d}")
                if m == 1 and nt < 4:
                    if i + LA < 12: vm.issue(("A", i + LA), ldA(i + LA, nt, SC))
                    elif fast and i + 4 < 17: vm.issue(("A", i + 4), ldA(i + 4, nt, SC))
            if i + 4 < 4 + nl: a(lds_rd(i + 4, nt))
            elif i == 12: a(lds_rd(7, nt).replace(vr(WR+60+4*nt,4), vr(WR+4*nt,4)))
            elif i + 4 < 16 and not (gate <= i + 4 < gate + 4): vm.issue(("W", i + 4), ldW(i + 4, nt, SC))
        if i == 7:
            a("s_mov_b32 s52, s33\ns_add_u32 s33, s33, 20480")
            for nt in range(5): vm.issue(("W", 16), wdma(typ, 3, nt))
            a("s_mov_b32 s33, s52")
        if i == 11 and not fast: fo_issue()
        if i == 8:
            for k, (n, o) in enumerate(((4, 0), (4, 16), (2, 32))):
                vm.issue("x", f"buffer_load_dwordx{n} {vr(xe+4*k,n)}, v8, s[4:7], s34 offen offset:{o}")
            for k, (n, o) in enumerate(((4, 0), (4, 16), (2, 32))):
                vm.issue("x", f"buffer_load_dwordx{n} {vr(xe+10+4*k,n)}, v9, {SB2}, s35 offen offset:{o}")
        if FS and i == FS - 2: fo_issue()
    if not FS:
        steps(0, 17, False)
        return
    steps(0, FS, False)
    xadd()
    vm.wait(["fo"])
    a(f"v_cmp_eq_u32 vcc, {NC}, v0\ns_cmp_eq_u64 vcc, -1\ns_cbranch_scc1 F_fast{typ}")
    q0 = list(vm.q)
    steps(FS, 17, False)
    a(f"s_branch F_p2_e\nF_fast{typ}:")
    vm.q = q0
    stamp(a, 6)
    a("s_mov_b32 s56, s32")
    for k in range(12, FS + 4):
        for m in range(4): vm.issue(("A", k), ldA(k, m, SC))
    steps(FS, 17, True)

def gen_f1():
    a = Asm()
    stamp(a, 0)
    srd(a, 4, 0, NB_X); srd(a, 8, 8, NB_WQKV); srd(a, 12, 40, NB_W1); srd(a, 16, 88, WS_END); srd(a, 20, 16, NB_WPHI); srd(a, 24, 48, NB_B1)
    srd(a, 60, 56, NB_W2); srd(a, 64, 24, NB_WO); srd(a, 68, 72, NB_X); srd(a, 72, 64, NB_B2); srd(a, 76, 80, 256)
    a(f"""
    s_cmp_ge_u32 s2, 256
    s_cbranch_scc1 F_end
    v_lshrrev_b32 v1, 6, v0
    v_and_b32 v60, 63, v0
    s_and_b32 s33, s2, 7                ; xcd
    v_readfirstlane_b32 s31, v1
    s_lshr_b32 s34, s2, 3               ; idx
    s_and_b32 s28, s33, 1
    s_lshl_b32 s28, s28, 3
    s_and_b32 s35, s34, 7
    s_add_u32 s28, s28, s35             ; rb
    s_lshr_b32 s35, s34, 3              ; jj
    s_lshr_b32 s30, s35, 1              ; type
    s_and_b32 s35, s35, 1
    s_and_b32 s29, s33, 6
    s_add_u32 s29, s29, s35             ; g
    s_mov_b32 s32, s33
    s_cmp_lt_u32 s31, 4
    s_cbranch_scc1 F_comp
    """)
    helper(a)
    phase2(a)
    issue_sub(a)
    a(f"""
    F_comp:
    s_lshl_b32 s33, s2, 2
    s_add_u32 s33, s33, s31
    s_cmp_eq_u32 s33, 3
    s_cbranch_scc0 F_nonce_x
    s_mov_b32 s34, {WS_NONCE}
    s_waitcnt lgkmcnt(0)
    s_buffer_load_dword s35, s[16:19], s34 glc
    v_mov_b32 v3, 0
    s_waitcnt lgkmcnt(0)
    s_add_u32 s35, s35, 1
    s_max_u32 s35, s35, 1
    v_mov_b32 v2, s35
    s_mov_b64 exec, 1
    buffer_store_dword v2, v3, {SDBG}, 0 offen sc1
    buffer_store_dword v2, v3, s[16:19], s34 offen sc1
    s_mov_b64 exec, -1
    F_nonce_x:
    """)
    phase0_issue(a)
    if OPT['pf1'] == 1: a('s_waitcnt lgkmcnt(0)'); l2_prefetch(a)
    a(f"""
    v_lshrrev_b32 v61, 5, v60
    v_bfe_u32 v62, v60, 2, 2
    v_lshl_add_u32 v61, v61, 3, v62     ; 8hf + j
    v_and_b32 v62, 1, v60               ; c&1
    v_bfe_u32 v63, v60, 4, 1
    v_bfe_u32 v2, v60, 1, 1
    v_lshl_add_u32 v63, v63, 1, v2      ; 2gg + (c>>1)
    v_and_b32 v2, 31, v60
    s_lshl_b32 s43, s31, 5
    v_add_u32 v2, s43, v2
    v_lshrrev_b32 v3, 5, v60
    v_bfe_u32 v4, v2, 1, 3
    v_xor_b32 v3, v3, v4
    v_lshlrev_b32 v3, 4, v3
    v_lshl_add_u32 v{XA}, v2, 7, v3
    v_lshlrev_b32 v{RSTD}, 2, v2
    v_add_u32 v{RSTD}, {L_RSTD}, v{RSTD}
    v_add_u32 v{XA}, {SLOT}, v{XA}
    v_xor_b32 v{XA+1}, 32, v{XA}
    v_xor_b32 v{XA+2}, 64, v{XA}
    v_xor_b32 v{XA+3}, 96, v{XA}
    v_lshrrev_b32 v12, 5, v60
    v_cmp_eq_u32 vcc, v12, v62
    v_bfe_u32 v13, v60, 2, 2
    v_mul_u32_u24 v13, 96, v13
    v_cndmask_b32 v12, 2, v12, vcc
    v_mul_u32_u24 v12, 3840, v12
    v_lshl_add_u32 v13, v63, 3, v13
    v_add_u32 v{BDA}, v12, v13
    v_add_u32 v{BDA}, {L_BD}, v{BDA}
    s_cmp_eq_u32 s30, 1
    s_cbranch_scc1 F_as1
    """)
    addr_setup(a, 0)
    a("s_branch F_as2\nF_as1:")
    addr_setup(a, 1)
    a("F_as2:")
    for i in range(112): a(f"v_mov_b32 v{ACC+i}, 0")
    phase0_finish(a)
    if OPT['pf1'] == 2: a('s_waitcnt lgkmcnt(0)'); l2_prefetch(a)
    flag_addrs(a)
    a(f"""
    s_waitcnt lgkmcnt(0)
    s_mov_b32 s40, 0
    s_mov_b32 s42, 1
    s_mov_b32 s45, {SLOT}
    s_cmp_eq_u32 s30, 1
    s_cbranch_scc1 F_c1
    """)
    compute(a, 0)
    compute(a, 1)
    fin(a)
    a("F_end:\ns_endpgm")
    return a.text()

def build():
    t = gen_f1()
    for e in check_hazards(t): print(e)
    return file_text([f"; @launch grid=(256,1,1) block=(512,1,1) lds={F_LDS}"], [(NAME + "_kernel", t, 256, 102, 256)])
if __name__ == "__main__":
    for arg in list(sys.argv[1:]):
        if "=" in arg:
            k, v = arg.split("="); OPT[k] = int(v); sys.argv.remove(arg)
    out = sys.argv[1] if len(sys.argv) > 1 else f"cdna_kernels/{NAME}.s"
    open(out, "w").write(build())
```

```python
import sys
sys.path.insert(0, "gen")
import asmlib
if "--stamps" in sys.argv: asmlib.STAMPS = True; sys.argv.remove("--stamps")
from asmlib import *
from layout import *
from k0 import srd, dpp_add
from k1 import ACC, SET, XA, QA, HA, RSTD, BDA, LOG2E, tile_reads, mfma_step, softmax
from k2b import wt_task, wt_finish, p2_setup, p2_epi_addr, p2_final, AR, WR, AC2
import k2b
NS = {0: " sc1", 1: "", 2: " nt", 3: " sc0"}
def ldA(i, m, sc):
    t = k2b.ldA(i, m, NS[OPT['nsa']])
    if i == 11: t = t.replace("s32, 4096", "s32, s57")
    if i > 11: t = t.replace("s32, 4096", "s32, 1024")
    return t
def ldW(i, nt, sc):
    t = k2b.ldW(i, nt, NS[OPT['nsw']])
    if i == 11: t = t.replace("s33, 20480", "s33, s58")
    if i > 11: t = t.replace("s33, 20480", "s33, 5120")
    return t
SC = " sc1"
SW2, SWO, SOUT, SB2, SDBG = "s[60:63]", "s[64:67]", "s[68:71]", "s[72:75]", "s[76:79]"
C_H, C_PV, W_K2, W_KV, C_OB, C_O, W_H, W_O, W_N = [L_CNT + 4*i for i in range(9)]
FL_S = WS_FLAG + 0x2000
WS_NONCE = WS_FLAG + 0x4000
NC = "s53"
TMO = 1 << 18
OPT = dict(pfw=0, pfa=0, defer=1, pf1=0, w8=8, w9=14, prio=1, nla=4, nlb=7, spoll=0, hfa=0, la=4, gh=1, ga=0, gb=0, hfb=1, pd=1, ek=1, eo=0, il=1, bf=1, w16=1, fa=2, map=0, bp=0, k2=0, fast=0, cpf=1, dg=0, nsa=0, nsw=0)
def dstamp(a, i):
    if OPT['dg']: stamp(a, i)
PVB = 40960

def arrive(a, off, va=1):
    a(f"""
    v_mov_b32 v{va}, 1
    v_mov_b32 v{va+1}, {off}
    s_mov_b64 exec, 1
    ds_add_rtn_u32 v{va+2}, v{va+1}, v{va}
    s_waitcnt lgkmcnt(0)
    s_mov_b64 exec, -1
    v_readfirstlane_b32 s47, v{va+2}
    """)
def signal(a, off, va=1):
    a(f"v_mov_b32 v{va}, 1\nv_mov_b32 v{va+1}, {off}\ns_mov_b64 exec, 1\nds_add_u32 v{va+1}, v{va}\ns_mov_b64 exec, -1")
def spin(a, off, val, va=1):
    L = a.label("spin")
    a(f"""
    v_mov_b32 v{va+1}, {off}
    s_mov_b32 s48, 0
    {L}:
    ds_read_b32 v{va+2}, v{va+1}
    s_add_u32 s48, s48, 1
    s_waitcnt lgkmcnt(0)
    v_readfirstlane_b32 s47, v{va+2}
    s_cmp_ge_u32 s48, {TMO}
    s_cbranch_scc1 {L}_x
    {f's_cmp_lt_u32 s47, {val}' if val else 's_andn2_b32 s47, s55, s47'}
    s_cbranch_scc1 {L}
    {L}_x:
    """)
def setword(a, off, va=1):
    a(f"v_mov_b32 v{va}, 1\nv_mov_b32 v{va+1}, {off}\nds_write_b32 v{va+1}, v{va}\ns_waitcnt lgkmcnt(0)")
def flag_store(a, soff, va=1):
    a(f"v_mov_b32 v{va}, {NC}\nv_mov_b32 v{va+1}, 0\ns_mov_b64 exec, 1\nbuffer_store_dword v{va}, v{va+1}, s[16:19], {soff} offen sc1\ns_mov_b64 exec, -1")
def poll(a, soff, mask, lane, va=1, pub=None):
    L = a.label("poll")
    pd = OPT['pd']
    R = [va + 1, va + 2] + [va + 4 + i for i in range(2)] if va == 1 else [va + 1, va + 2, 16, 17]
    a(f"""
    v_lshlrev_b32 v{va}, 7, v{lane}
    s_mov_b32 s48, 0
    {f'v_mov_b32 v{va+3}, {pub}' if pub else ''}
    s_mov_b64 exec, {mask}
    """)
    ld = lambda k: f"buffer_load_dword v{R[k]}, v{va}, s[16:19], {soff} offen sc1"
    for k in range(pd - 1): a(ld(k) + "\ns_nop 7\ns_nop 7" * 0)
    a(f"{L}:")
    for k in range(pd):
        a(f"""
        {ld((k + pd - 1) % pd)}
        s_add_u32 s48, s48, 1
        s_waitcnt vmcnt({pd-1})
        v_cmp_eq_u32 vcc, {NC}, v{R[k]}
        s_cmp_ge_u32 s48, {TMO}
        s_cbranch_scc1 {L}_x
        """)
        if pub: a(f"v_mov_b32 v{R[k]}, vcc_lo\nds_write_b32 v{va+3}, v{R[k]}\ns_waitcnt lgkmcnt(0)")
        a(f"s_cmp_eq_u64 vcc, {mask}")
        a(f"s_cbranch_scc0 {L}" if k == pd - 1 else f"s_cbranch_scc1 {L}_x")
    a(f"{L}_x:\ns_mov_b64 exec, -1")

def early_flag(a):
    L = a.label("ef")
    a(f"s_cmp_eq_u32 s31, 0\ns_cbranch_scc0 {L}")
    flag_store(a, "s51")
    a(f"{L}:")
def spoll(a, soff, regs):
    L = a.label("spoll")
    a(f"s_mov_b32 s48, 0\n{L}:")
    for i, r in enumerate(regs): a(f"s_buffer_load_dword s{r}, s[16:19], {soff} offset:{128*i} glc")
    a(f"s_add_u32 s48, s48, 1\ns_cmp_ge_u32 s48, {TMO}\ns_waitcnt lgkmcnt(0)\ns_cbranch_scc1 {L}_x")
    for r in regs: a(f"s_cmp_eq_u32 s{r}, {NC}\ns_cbranch_scc0 {L}")
    a(f"{L}_x:")

def p2_ids(a, rg, cg):
    if OPT['map'] == 1:
        a(f"s_and_b32 s36, s2, 7\ns_lshl_b32 s36, s36, 2\ns_bfe_u32 s37, s2, 0x20003\ns_add_u32 {rg}, s36, s37\ns_lshr_b32 {cg}, s2, 5")
        return
    if OPT['map'] == 2:
        a(f"s_bfe_u32 s36, s2, 0x10002\ns_lshl_b32 s36, s36, 4\ns_bfe_u32 s37, s2, 0x40003\ns_add_u32 {rg}, s36, s37\ns_and_b32 s36, s2, 3\ns_lshl_b32 s36, s36, 1\ns_lshr_b32 {cg}, s2, 7\ns_add_u32 {cg}, {cg}, s36")
        return
    a(f"""
    s_and_b32 s36, s2, 7
    s_lshr_b32 s37, s2, 3
    s_lshr_b32 {rg}, s36, 1
    s_lshl_b32 {rg}, {rg}, 3
    s_and_b32 s38, s37, 7
    s_add_u32 {rg}, {rg}, s38
    s_and_b32 {cg}, s36, 1
    s_lshl_b32 {cg}, {cg}, 2
    s_lshr_b32 s38, s37, 3
    s_add_u32 {cg}, {cg}, s38
    """)

def phase0_issue(a):
    a(f"""
    s_cmp_ge_u32 s31, 2
    s_cbranch_scc1 P0_cols
    s_lshl_b32 s33, s2, 3
    s_lshl_b32 s34, s31, 2
    s_add_u32 s33, s33, s34
    v_lshrrev_b32 v65, 4, v60
    v_add_u32 v65, s33, v65
    v_and_b32 v66, 15, v60
    v_mul_u32_u24 v64, 1280, v65
    v_lshl_add_u32 v64, v66, 4, v64
    s_waitcnt lgkmcnt(0)
    """)
    for i in range(5): a(f"buffer_load_dwordx4 {vr(80+4*i,4)}, v64, s[4:7], 0 offen offset:{256*i}")
    a(f"""
    s_branch P0_issued
    P0_cols:
    s_cmp_ge_u32 s2, 216
    s_cbranch_scc1 P0_issued
    s_lshr_b32 s33, s2, 2            ; line
    s_and_b32 s34, s2, 3
    s_lshl_b32 s34, s34, 1
    s_add_u32 s34, s34, s31
    s_sub_u32 s34, s34, 2            ; part 0..7
    s_mul_i32 s35, s34, 80
    v_lshrrev_b32 v76, 3, v60
    v_add_u32 v76, s35, v76
    v_and_b32 v77, 7, v60
    v_lshlrev_b32 v77, 4, v77
    s_cmp_ge_u32 s33, 30
    s_cbranch_scc1 P0_w1
    s_lshl_b32 s36, s33, 7
    v_mul_u32_u24 v76, 3840, v76
    v_add_u32 v76, v76, v77
    s_waitcnt lgkmcnt(0)
    """)
    for i in range(10): a(f"buffer_load_dwordx4 {vr(80+4*i,4)}, v76, s[8:11], s36 offen\ns_add_u32 s36, s36, {8*3840}")
    a("""
    s_branch P0_issued
    P0_w1:
    s_sub_u32 s36, s33, 30
    s_lshl_b32 s36, s36, 7
    v_mul_u32_u24 v76, 3072, v76
    v_add_u32 v76, v76, v77
    s_waitcnt lgkmcnt(0)
    """)
    for i in range(10): a(f"buffer_load_dwordx4 {vr(80+4*i,4)}, v76, s[12:15], s36 offen\ns_add_u32 s36, s36, {8*3072}")
    a("P0_issued:")

def phase0_finish(a):
    a(f"""
    s_cmp_ge_u32 s31, 2
    s_cbranch_scc1 P0_fcols
    s_mov_b32 s37, 0xffff0000
    """)
    U = 100
    for i in range(5):
        a(f"s_waitcnt vmcnt({4-i+(3 if OPT['pf1'] == 1 else 0)})")
        for q in range(4):
            r = 80 + 4*i + q
            a(f"v_lshlrev_b32 v{U+2*(4*i+q)}, 16, v{r}\nv_and_b32 v{U+1+2*(4*i+q)}, s37, v{r}")
    a(f"v_pk_add_f32 v[68:69], {vr(U,2)}, {vr(U+2,2)}\nv_pk_add_f32 v[70:71], {vr(U+4,2)}, {vr(U+6,2)}")
    for i in range(4, 20, 2):
        a(f"v_pk_add_f32 v[68:69], v[68:69], {vr(U+2*i,2)}\nv_pk_add_f32 v[70:71], v[70:71], {vr(U+2+2*i,2)}")
    a("v_pk_add_f32 v[68:69], v[68:69], v[70:71]\nv_add_f32 v68, v68, v69")
    for ror in (8, 4, 2, 1): dpp_add(a, 68, 68, ror)
    a("v_mul_f32 v68, 0x3acccccd, v68")
    for i in range(20): a(f"v_pk_add_f32 {vr(U+2*i,2)}, {vr(U+2*i,2)}, v[68:69] op_sel_hi:[1,0] neg_lo:[0,1] neg_hi:[0,1]")
    a(f"v_pk_mul_f32 v[70:71], {vr(U,2)}, {vr(U,2)}\nv_pk_mul_f32 v[72:73], {vr(U+2,2)}, {vr(U+2,2)}")
    for i in range(2, 20, 2):
        a(f"v_pk_fma_f32 v[70:71], {vr(U+2*i,2)}, {vr(U+2*i,2)}, v[70:71]\nv_pk_fma_f32 v[72:73], {vr(U+2+2*i,2)}, {vr(U+2+2*i,2)}, v[72:73]")
    a("v_pk_add_f32 v[70:71], v[70:71], v[72:73]\nv_add_f32 v69, v70, v71")
    for ror in (8, 4, 2, 1): dpp_add(a, 69, 69, ror)
    a(f"""
    v_mov_b32 v70, 0x3727c5ac
    v_fmac_f32 v70, 0x3acccccd, v69
    v_rsq_f32 v69, v70
    v_lshlrev_b32 v65, 3, v65
    v_cmp_eq_u32 vcc, 0, v66
    s_and_saveexec_b64 s[48:49], vcc
    s_nop 1
    buffer_store_dwordx2 v[68:69], v65, s[16:19], 0 offen sc1
    s_mov_b64 exec, -1
    s_branch P0_done
    P0_fcols:
    s_cmp_ge_u32 s2, 216
    s_cbranch_scc1 P0_done
    v_and_b32 v68, 15, v60
    v_and_b32 v69, 1, v60
    v_lshlrev_b32 v69, 4, v69
    v_mov_b32 v70, 0x3f80
    v_lshlrev_b32 v69, v69, v70
    v_lshrrev_b32 v68, 1, v68
    """)
    for q in range(4): a(f"v_cmp_eq_u32 vcc, {q}, v68\ns_nop 1\nv_cndmask_b32 v{64+q}, 0, v69, vcc")
    a("s_nop 1")
    for i in range(10):
        a(f"s_waitcnt vmcnt({9-i+(3 if OPT['pf1'] == 1 else 0)})")
        a(f"v_mfma_f32_16x16x32_bf16 v[68:71], v[64:67], {vr(80+4*i,4)}, {'0' if i == 0 else 'v[68:71]'}")
    a(f"""
    s_mul_i32 s36, s34, {3456*4}
    s_lshl_b32 s35, s33, 8
    s_add_u32 s36, s36, s35
    s_add_u32 s36, s36, {WS_COLS}
    v_and_b32 v76, 7, v60
    v_lshlrev_b32 v76, 5, v76
    v_and_b32 v77, 16, v60
    v_add_u32 v76, v76, v77
    v_and_b32 v77, 40, v60
    """)
    for q in range(4): dpp_add(a, 72+q, 68+q, 8)
    a(f"""
    v_cmp_eq_u32 vcc, 0, v77
    s_and_saveexec_b64 s[48:49], vcc
    s_nop 1
    buffer_store_dwordx4 v[72:75], v76, s[16:19], s36 offen sc1
    s_mov_b64 exec, -1
    P0_done:
    """)

def l2_prefetch(a):
    a(f"""
    s_lshr_b32 s46, s2, 3               ; idx
    s_cmp_ge_u32 s31, 2
    s_cbranch_scc1 PF_w
    s_and_b32 s47, s2, 1
    s_lshl_b32 s47, s47, 5
    s_add_u32 s47, s47, s46
    s_mul_i32 s47, s47, {32*1280}
    v_and_b32 v20, 31, v60
    v_mul_u32_u24 v20, 1280, v20
    v_lshrrev_b32 v21, 5, v60
    s_lshl_b32 s48, s31, 1
    s_add_u32 s48, s48, s32
    s_add_u32 s48, s48, 2
    v_add_u32 v21, s48, v21
    """)
    for j in range(2):
        a(f"""
        v_add_u32 v22, {4*j}, v21
        v_subrev_u32 v23, 10, v22
        v_min_u32 v22, v22, v23
        v_lshl_add_u32 v22, v22, 7, v20
        buffer_load_dword v{16+j}, v22, s[4:7], s47 offen
        """)
    a(f"""
    buffer_load_dword v18, v22, s[4:7], s47 offen
    s_branch PF_x
    PF_w:
    s_lshr_b32 s47, s29, 1              ; pair
    s_add_u32 s48, s32, 2
    s_cmp_eq_u32 s31, 3
    s_cbranch_scc1 PF_w1
    s_mul_i32 s47, s47, 320
    s_and_b32 s47, s47, 0xffffff80
    s_mul_i32 s46, s46, {2*3840}
    s_add_u32 s47, s47, s46
    """)
    for j in range(3):
        a(f"""
        v_add_u32 v20, {64*j}, v60
        v_min_u32 v20, 143, v20
        v_mul_u32_u24 v21, 57, v20
        v_lshrrev_b32 v21, 9, v21           ; r = n / 9
        v_mul_u32_u24 v22, 9, v21
        v_sub_u32 v20, v20, v22             ; l
        v_mul_u32_u24 v22, 11, v20
        v_lshrrev_b32 v22, 5, v22           ; seg = l / 3
        v_mul_u32_u24 v22, {1280 - 384}, v22
        v_lshl_add_u32 v20, v20, 7, v22
        v_lshrrev_b32 v22, 1, v21
        v_add_u32 v22, s48, v22
        v_subrev_u32 v23, 10, v22
        v_min_u32 v22, v22, v23             ; chunk
        v_and_b32 v21, 1, v21
        v_lshl_add_u32 v21, v22, 6, v21
        v_mad_u32_u24 v20, v21, v24, v20
        buffer_load_dword v{16+j}, v20, s[8:11], s47 offen
        """.replace("v_add_u32 v20, 0, v60", "v_mov_b32 v24, 3840\nv_mov_b32 v20, v60"))
    a(f"""
    s_branch PF_x
    PF_w1:
    s_mul_i32 s46, s46, {2*3072}
    s_lshl_b32 s49, s47, 9
    s_add_u32 s46, s46, s49
    s_lshl_b32 s47, s47, 8
    s_sub_u32 s47, {2048 - 512}, s47
    v_mov_b32 v24, 3072
    """)
    for j in range(2):
        a(f"""
        v_add_u32 v20, {64*j}, v60
        v_min_u32 v20, 95, v20
        v_mul_u32_u24 v21, 43, v20
        v_lshrrev_b32 v21, 8, v21           ; r = n / 6
        v_mul_u32_u24 v22, 6, v21
        v_sub_u32 v20, v20, v22             ; l
        v_lshrrev_b32 v22, 2, v20
        v_mul_u32_u24 v22, s47, v22
        v_lshl_add_u32 v20, v20, 7, v22
        v_lshrrev_b32 v22, 1, v21
        v_add_u32 v22, s48, v22
        v_subrev_u32 v23, 10, v22
        v_min_u32 v22, v22, v23             ; chunk
        v_and_b32 v21, 1, v21
        v_lshl_add_u32 v21, v22, 6, v21
        v_mad_u32_u24 v20, v21, v24, v20
        buffer_load_dword v{16+j}, v20, s[12:15], s46 offen
        """)
    a("buffer_load_dword v18, v20, s[12:15], s46 offen\nPF_x:")

def code_touch(a, L):
    a(f"""
    s_getpc_b64 s[46:47]
    {L}_pc:
    s_sub_u32 s46, s46, {L}_pc-{NAME}_kernel
    s_subb_u32 s47, s47, 0
    s_lshr_b32 s44, s2, 3
    s_lshl_b32 s44, s44, 2
    s_add_u32 s44, s44, s31
    s_lshl_b32 s44, s44, 9
    v_and_b32 v21, 3, v60
    v_lshl_add_u32 v21, v21, 7, s44
    v_min_u32 v21, F_end-{NAME}_kernel, v21
    global_load_dword v20, v21, s[46:47]
    """)

def flag_addrs(a):
    a(f"""
    s_lshl_b32 s50, s28, 11
    s_lshl_b32 s55, s30, 3
    s_add_u32 s55, s55, s29
    s_lshl_b32 s55, s55, 7
    s_add_u32 s50, s50, s55
    s_add_u32 s50, s50, {FL_H}
    s_lshl_b32 s51, s29, 11
    s_lshl_b32 s55, s28, 7
    s_add_u32 s51, s51, s55
    s_add_u32 s51, s51, {FL_KV}
    s_lshl_b32 s52, s28, 10
    s_lshl_b32 s55, s29, 7
    s_add_u32 s52, s52, s55
    s_add_u32 s52, s52, {FL_O}
    s_cmp_eq_u32 s30, 1
    s_cselect_b32 s51, s52, s51
    s_lshr_b32 s54, s2, 4
    s_lshl_b32 s54, s54, 7
    s_and_b32 s55, s2, 15
    s_lshl_b32 s55, s55, 2
    s_add_u32 s54, s54, s55
    s_add_u32 s54, s54, {FL_S}
    """)

def compute(a, typ):
    L = f"F_c{typ}"
    nh = 2 if typ == 0 else 4
    a(f"{L}:\ns_barrier")
    stamp(a, 1)
    for r in tile_reads(typ, 0, SET[0]): a(r)
    a(f"{L}_loop:")
    for s in range(4):
        if s < 3:
            a("s_waitcnt lgkmcnt(0)")
            fill = tile_reads(typ, s + 1, SET[(s + 1) % 2])
            if s == 2:
                fill += [f"s_cmp_eq_u32 s42, 2", f"s_cselect_b32 s41, {-2*SLOT}, s45", "s_add_u32 s42, s42, 1", "s_cmp_eq_u32 s42, 3", "s_cselect_b32 s42, 0, s42", "s_bitcmp1_b32 5, s40"]
        else:
            a(f"s_cbranch_scc1 {L}_it2\ns_waitcnt lgkmcnt(0)\ns_barrier\n{L}_it2r:")
            rd = tile_reads(typ, 0, SET[0])
            up = lambda r: f"v_add_u32 v{r}, s41, v{r}"
            fill = [up(XA), up(QA)] + rd[:3] + [up(HA + i) for i in range(nh)] + rd[3:6] + [up(XA + 1), up(XA + 2), up(XA + 3)] + rd[6:]
            fill += ["s_add_u32 s40, s40, 1", "s_cmp_lt_u32 s40, 10"]
        mfma_step(a, SET[s % 2], fill)
    a(f"s_cbranch_scc1 {L}_loop")
    if OPT['prio']: a("s_setprio 3")
    stamp(a, 2)
    fill = [f"ds_read_b32 v{RSTD}, v{RSTD}"]
    BD = 16
    bdr = {}
    order = [(0,0),(1,0),(0,1),(1,1),(2,2),(0,2),(1,2),(2,3),(1,3),(2,4),(1,4)]
    for n, (T, u) in enumerate(order):
        bdr[(T, u)] = BD + 4*n
        for uu in range(2): fill.append(f"ds_read_b64_tr_b16 {vr(BD+4*n+2*uu,2)}, v{BDA} offset:{(8*u+4*uu)*96 + T*32}")
    a("s_waitcnt lgkmcnt(0)")
    hfirst = typ == 1 and OPT['bf']
    k = 0
    for n, t in enumerate([3, 4, 5, 6, 0, 1, 2] if hfirst else range(7)):
        acc = vr(ACC + 16*t, 16)
        a(f"v_mfma_f32_32x32x16_bf16 {acc}, {vr(SET[0]+4+4*t,4)}, {vr(SET[0],4)}, {acc}")
        for x in fill[4*n:4*n+4]: a(x)
    BF = 112; P = 64
    cv = [f"v_cvt_pk_bf16_f32 v{BF+i}, v{ACC+2*i}, v{ACC+2*i+1}" for i in range(20)]
    if not hfirst:
        for x in cv: a(x)
        a("s_waitcnt lgkmcnt(0)\ns_barrier")
    hb = ACC + (80 if typ == 0 else 48)
    npair = 4 if typ == 0 else 8
    va = [f"v_mul_f32 v12, {LOG2E}, v{RSTD}", f"v_mul_f32 v14, v{RSTD}, v{RSTD}"]
    for m in range(npair):
        b = hb + 8*m
        for i in range(8): va.append(f"v_max_f32 v{b+i}, 0, v{b+i}")
        for i in range(4): va.append(f"v_pk_mul_f32 {vr(136+2*i,2)}, {vr(b+2*i,2)}, v[14:15] op_sel_hi:[1,0]")
        for i in range(4): va.append(f"v_pk_mul_f32 {vr(b+2*i,2)}, {vr(136+2*i,2)}, {vr(b+2*i,2)}")
        for i in range(4): va.append(f"v_cvt_pk_bf16_f32 v{b+i}, v{b+2*i}, v{b+2*i+1}")
        va.append(f"buffer_store_dwordx4 {vr(b,4)}, v15, s[16:19], s43 offen offset:{(m>>1)*1024 + (m&1)*512} sc1")
    if OPT['gh'] == 2 or (OPT['gh'] == 3 and typ == 0): va.append(f"v_mov_b32 v1, 1\nv_mov_b32 v2, {W_O}\ns_mov_b64 exec, 1\nds_add_u32 v2, v1\ns_mov_b64 exec, -1")
    if hfirst:
        a("s_waitcnt lgkmcnt(15)")
        for x in va[:23]: a(x)
        a("s_waitcnt lgkmcnt(0)\ns_barrier")
        for x in va[23:] + cv + ["s_nop 1"]: a(x)
        va = []
    if typ == 0:
        vb = ACC + 40
        for i in range(20):
            va += [f"v_pk_mul_f32 {vr(vb+2*i,2)}, {vr(vb+2*i,2)}, {vr(RSTD,2)} op_sel_hi:[1,0]", f"v_cvt_pk_bf16_f32 v{vb+i}, v{vb+2*i}, v{vb+2*i+1}"]
        for i in range(5): va.append(f"ds_write_b128 v8, {vr(vb+4*i,4)} offset:{320+16*i}")
        va += ["v_mov_b32 v2, 0x3f80", "v_mov_b32 v3, 0", "ds_write_b64 v0, v[2:3] offset:480"]
    k = 0
    seen = set()
    for n, (T, u) in enumerate(order):
        d = vr(P + 16*T, 16)
        a(f"v_mfma_f32_32x32x16_bf16 {d}, {vr(bdr[(T,u)],4)}, {vr(BF+4*u,4)}, {d if T in seen else '0'}")
        seen.add(T)
        if n >= 2:
            for _ in range(6):
                if k < len(va): a(va[k]); k += 1
    while k < len(va): a(va[k]); k += 1
    stamp(a, 3)
    def hflag():
        a("s_waitcnt vmcnt(0)")
        arrive(a, C_H)
        a(f"s_cmp_eq_u32 s47, 3\ns_cbranch_scc0 {L}_nohf")
        flag_store(a, "s50")
        if typ == 1 and OPT['bp']:
            p2_ids(a, "s33", "s34")
            a(f"s_lshr_b32 s33, s33, 1\ns_lshl_b32 s33, s33, 11\ns_add_u32 s33, s33, {FL_H}\ns_mov_b64 s[34:35], 0xff00")
            poll(a, "s33", "s[34:35]", 60)
            setword(a, W_H)
        a(f"{L}_nohf:")
    if typ == 0:
        if OPT['hfa']: hflag()
        softmax(a, P, ACC, list(range(16, 26)), list(range(26, 36)))
        if not OPT['hfa']: hflag()
        for i in range(5): a(f"ds_write_b128 v9, {vr(16+4*i,4)} offset:{16*i}")
        if OPT['ek'] == 3: early_flag(a)
        softmax(a, P + 20, ACC + 20, list(range(36, 46)), list(range(46, 56)))
        stamp(a, 4)
        if OPT['ek'] == 4: early_flag(a)
        for i in range(5, 10): a(f"ds_write_b128 v9, {vr(16+4*i,4)} offset:{16*i}")
        signal(a, C_PV)
        dstamp(a, 1)
        spin(a, C_PV, 4)
        if OPT['ek'] == 1: early_flag(a)
        dstamp(a, 2)
        for st in range(8):
            for u in range(2):
                off = u*4*PV_PITCH + st*16*PV_PITCH
                a(f"ds_read_b64_tr_b16 {vr(64+12*st+2*u,2)}, v61 offset:{off}\nds_read_b64_tr_b16 {vr(68+12*st+2*u,2)}, v61 offset:{off+40}\nds_read_b64_tr_b16 {vr(72+12*st+2*u,2)}, v62 offset:{off}")
            if st >= 2:
                a("s_waitcnt lgkmcnt(12)")
                for sg in range(2):
                    d = vr(160 + 16*sg, 16)
                    a(f"v_mfma_f32_32x32x16_bf16 {d}, {vr(64+12*(st-2)+4*sg,4)}, {vr(72+12*(st-2),4)}, {'0' if st == 2 else d}")
        for st in range(6, 8):
            a(f"s_waitcnt lgkmcnt({42-6*st})")
            for sg in range(2):
                d = vr(160 + 16*sg, 16)
                a(f"v_mfma_f32_32x32x16_bf16 {d}, {vr(64+12*st+4*sg,4)}, {vr(72+12*st,4)}, {d}")
        dstamp(a, 3)
        if OPT['ek'] == 2: early_flag(a)
        a("s_mov_b32 exec_lo, 0x1fffff\ns_mov_b32 exec_hi, 0x1fffff\ns_nop 7\ns_nop 2")
        for sg in range(2):
            for i in range(4): a(f"v_cvt_pk_bf16_f32 v{200+4*sg+i}, v{160+16*sg+2*i}, v{161+16*sg+2*i}")
            for i in range(2): a(f"v_cvt_pk_bf16_f32 v{208+2*sg+i}, v{168+16*sg+2*i}, v{169+16*sg+2*i}")
            a(f"buffer_store_dwordx4 {vr(200+4*sg,4)}, v63, s[16:19], s56 offen offset:{672*sg} sc1")
        a("s_mov_b32 exec_hi, 0")
        a(f"buffer_store_dwordx4 v[208:211], v63, s[16:19], s56 offen offset:1344 sc1")
        a("s_mov_b64 exec, -1\ns_branch F_fin")
    else:
        if OPT['hfb']: hflag()
        for hh in range(2):
            o = 16 + 20*hh
            softmax(a, P + 20*hh, ACC + 20*hh, [o+i for i in range(8)] + [o+16, o+17], [o+8+i for i in range(8)] + [o+18, o+19])
            if hh == 0 and not OPT['hfb']: hflag()
        stamp(a, 4)
        otask(a)
    a(f"""
    {L}_it2:
    s_cmp_eq_u32 s40, 0
    s_cbranch_scc1 {L}_it0
    v_mov_b32 v13, {W_N}
    ds_read_b32 v12, v13
    s_waitcnt vmcnt(0) lgkmcnt(0)
    s_barrier
    v_readfirstlane_b32 {NC}, v12
    s_cmp_eq_u32 s31, 0
    s_cbranch_scc0 {L}_it2r
    v_mov_b32 v13, 0
    s_mov_b64 exec, 1
    buffer_store_dword v12, v13, s[16:19], s54 offen sc1
    s_mov_b64 exec, -1
    s_branch {L}_it2r
    {L}_it0:
    """)
    if typ == 0:
        a("""
        v_lshlrev_b32 v13, 4, v60
        buffer_store_dwordx4 v[16:19], v13, s[16:19], s56 offen sc1
        v_cmp_gt_u32 vcc, 41, v60
        s_mov_b64 exec, vcc
        buffer_store_dwordx4 v[16:19], v13, s[16:19], s56 offen offset:1024 sc1
        s_mov_b64 exec, -1
        """)
    else:
        for p in range(0, 10, 2): a(f"buffer_store_dwordx4 v[16:19], v15, s[16:19], s56 offen offset:{256*p} sc1")
    if OPT['cpf'] == 1: code_touch(a, L)
    a(f"s_waitcnt lgkmcnt(0)\ns_barrier\ns_branch {L}_it2r")

def addr_setup(a, typ):
    nh = 2 if typ == 0 else 4
    a(f"""
    v_mul_u32_u24 v{QA}, {QP[typ]}, v61
    v_mul_u32_u24 v14, {QP[typ]//2}, v62
    v_lshlrev_b32 v15, 3, v63
    v_add3_u32 v{QA}, v{QA}, v14, v15
    v_add_u32 v{QA}, {QB + SLOT}, v{QA}
    v_lshlrev_b32 v{HA}, {7 if typ == 0 else 8}, v61
    v_and_b32 v14, 16, v60
    v_lshlrev_b32 v14, 1, v14
    v_lshl_add_u32 v14, v62, 4, v14
    v_and_b32 v15, 2, v60
    v_lshl_add_u32 v14, v15, 2, v14
    v_add_u32 v{HA}, v{HA}, v14
    v_add_u32 v{HA}, {HB[typ] + SLOT}, v{HA}
    """)
    if typ == 0: a(f"v_and_b32 v14, 8, v60\nv_lshl_add_u32 v{HA}, v14, 3, v{HA}")
    else:        a(f"v_and_b32 v14, 12, v60\nv_lshl_add_u32 v{HA}, v14, 4, v{HA}")
    for i in range(1, nh): a(f"v_xor_b32 v{HA+i}, {64*i}, v{HA}")
    a(f"""
    s_lshl_b32 s43, s28, 3
    s_lshl_b32 s44, s31, 1
    s_add_u32 s43, s43, s44
    s_mul_i32 s43, s43, {68*1024}
    s_mul_i32 s56, s29, 2560
    s_add_u32 s56, s56, s43
    s_add_u32 s56, s56, {WS_A2 + 192*256}
    s_lshl_b32 s44, s29, {11 if typ == 0 else 12}
    s_add_u32 s43, s43, s44
    s_add_u32 s43, s43, {WS_A2 + (32*1024 if typ == 0 else 0)}
    v_and_b32 v15, 16, v60
    v_mul_u32_u24 v15, {68*64}, v15
    v_and_b32 v13, 15, v60
    v_lshl_add_u32 v15, v13, 4, v15
    v_and_b32 v13, 32, v60
    v_lshl_add_u32 v15, v13, 3, v15
    v_mov_b32 v16, -1
    v_mov_b32 v17, -1
    v_mov_b32 v18, -1
    v_mov_b32 v19, -1
    """)
    if typ == 0:
        a(f"""
        v_and_b32 v0, 31, v60
        s_lshl_b32 s44, s31, 5
        v_lshrrev_b32 v13, 5, v60
        v_mul_u32_u24 v63, 336, v13
        v_lshl_add_u32 v63, v0, 4, v63
        v_add_u32 v0, s44, v0
        v_mul_u32_u24 v0, {PV_PITCH}, v0
        v_add_u32 v0, {PVB}, v0
        v_mul_u32_u24 v13, 80, v13
        v_add_u32 v8, v0, v13
        v_add_u32 v9, v8, v13
        v_mul_u32_u24 v20, {PV_PITCH}, v61
        v_add_u32 v20, {PVB}, v20
        v_bfe_u32 v21, v60, 1, 1
        v_lshl_add_u32 v21, v62, 1, v21     ; fmap for pc<4
        v_and_b32 v22, 16, v60
        v_cmp_eq_u32 vcc, 0, v22
        s_mul_i32 s44, s31, 80
        s_and_b32 s46, s31, 1
        v_cndmask_b32 v21, 4, v21, vcc
        v_lshl_add_u32 v61, v21, 3, v20
        v_add_u32 v61, s44, v61
        v_add_u32 v21, s46, v21
        v_cmp_eq_u32 vcc, 5, v21
        s_mul_i32 s44, s31, 40
        s_add_u32 s44, s44, 320
        v_cndmask_b32 v21, v21, 0, vcc
        v_lshl_add_u32 v21, v21, 3, s44
        v_and_b32 v22, 19, v60
        v_cmp_lt_u32 vcc, 16, v22
        v_mov_b32 v23, 480
        s_lshl_b32 s56, s29, 2
        s_add_u32 s56, s56, s31             ; head
        v_cndmask_b32 v21, v21, v23, vcc
        v_add_u32 v62, v21, v20             ; B address
        s_lshl_b32 s56, s56, 4
        s_add_u32 s56, s56, s28
        s_mul_i32 s56, s56, 1792
        s_add_u32 s56, s56, {WS_KVP}
        """)

def otask(a):
    for hh in range(2):
        for sg in range(2):
            for q in range(4): a(f"v_permlane32_swap_b32 v{16+20*hh+8*sg+q}, v{20+20*hh+8*sg+q}")
    a(f"""
    v_lshrrev_b32 v3, 4, v60
    v_mul_u32_u24 v4, 1792, v3
    v_and_b32 v5, 15, v60
    v_lshl_add_u32 v4, v5, 4, v4
    v_lshlrev_b32 v12, 7, v5
    s_lshl_b32 s45, s29, 11
    s_add_u32 s45, s45, {FL_KV}
    s_lshl_b32 s33, s29, 2
    s_add_u32 s33, s33, s31
    s_mul_i32 s33, s33, {16*1792}
    s_add_u32 s33, s33, {WS_KVP}
    v_and_b32 v6, 1, v60
    v_lshlrev_b32 v6, 4, v6
    v_mov_b32 v7, 0x3f80
    v_lshlrev_b32 v6, v6, v7
    v_lshrrev_b32 v7, 1, v5
    """)
    for q in range(4): a(f"v_cmp_eq_u32 vcc, {q}, v7\ns_nop 1\nv_cndmask_b32 v{56+q}, 0, v6, vcc")
    a(f"""
    s_mul_i32 s34, s31, 1792
    s_add_u32 s34, s34, {L_STG}
    v_lshlrev_b32 v5, 4, v5
    v_bfe_u32 v6, v60, 4, 1
    v_lshl_add_u32 v5, v6, 3, v5
    v_add_u32 v5, s34, v5
    v_and_b32 v6, 31, v60
    v_min_u32 v6, 20, v6
    v_lshrrev_b32 v7, 5, v60
    v_mul_u32_u24 v8, 336, v7
    v_lshlrev_b32 v6, 4, v6
    v_add_u32 v6, {L_STG}, v6
    v_add_u32 v8, v8, v6
    v_add_u32 v6, 1344, v6
    v_mov_b32 v9, {L_BD + 2*3840 + 1024}
    v_cmp_gt_u32 vcc, 32, v60
    v_add_u32 v10, {2*1792}, v6
    s_mov_b32 s38, 0x01ff01ff
    s_mov_b32 s39, 0x01ff01ff
    v_cndmask_b32 v6, v9, v6, vcc
    v_cndmask_b32 v10, v10, v9, vcc
    s_cmp_eq_u32 s31, 0
    s_cbranch_scc0 F_o1w
    s_mov_b32 s48, 0
    s_mov_b64 exec, 0xffff
    F_o1:
    buffer_load_dword v3, v12, s[16:19], s45 offen sc1
    s_add_u32 s48, s48, 1
    s_waitcnt vmcnt(0)
    v_cmp_eq_u32 vcc, {NC}, v3
    s_mov_b32 s47, 3
    s_cmp_ge_u32 s48, {TMO}
    s_cbranch_scc1 F_o1x
    s_and_b32 s36, vcc_lo, 0xff
    s_cmp_eq_u32 s36, 0xff
    s_cselect_b32 s47, 1, 0
    s_cmp_ge_u32 vcc_lo, 0xff00
    s_cselect_b32 s36, 2, 0
    s_or_b32 s47, s47, s36
    s_cbranch_scc0 F_o1
    F_o1x:
    v_mov_b32 v1, s47
    v_mov_b32 v2, {W_KV}
    ds_write_b32 v2, v1
    s_mov_b64 exec, -1
    s_branch F_o1y
    F_o1w:
    """)
    spin(a, W_KV, 1)
    a(f"""
    F_o1y:
    s_mov_b32 s34, s47
    s_cmp_eq_u32 s47, 2
    s_cselect_b32 s35, {8*1792}, 0
    s_add_u32 s36, s33, s35
    s_xor_b32 s35, s35, {8*1792}
    s_add_u32 s35, s33, s35
    s_add_u32 s37, s36, {4*1792}
    s_add_u32 s44, s35, {4*1792}
    """)
    stamp(a, 5)
    LD = 140
    def loads(h, s0, s1):
        for i in range(2):
            for g in range(7): a(f"buffer_load_dwordx4 {vr(LD+4*(14*h+7*i+g),4)}, v4, s[16:19], {(s0, s1)[i]} offen offset:{256*g} sc1")
    def verify(h, L):
        r = [LD + 4*(14*h+7*i+g) + 3 for i in range(2) for g in range(6)]
        a(f"v_max3_u32 v11, v{r[0]}, v{r[1]}, v{r[2]}\nv_max3_u32 v13, v{r[3]}, v{r[4]}, v{r[5]}")
        a(f"v_max3_u32 v11, v11, v{r[6]}, v{r[7]}\nv_max3_u32 v13, v13, v{r[8]}, v{r[9]}\nv_max3_u32 v11, v11, v{r[10]}, v{r[11]}")
        a(f"""
        v_max_u32 v14, v{LD+4*(14*h+6)+3}, v{LD+4*(14*h+13)+3}
        v_max_u32 v11, v11, v13
        v_cmp_eq_u32 s[46:47], -1, v14
        v_cmp_eq_u32 vcc, -1, v11
        s_add_u32 s49, s49, 1
        s_and_b64 s[46:47], s[46:47], s[38:39]
        s_or_b64 vcc, vcc, s[46:47]
        s_cmp_ge_u32 s49, {TMO}
        s_cselect_b64 vcc, 0, vcc
        s_cbranch_vccnz {L}
        """)
    a("s_mov_b32 s49, 0\nF_o2:")
    loads(0, "s36", "s37")
    a(f"""
    s_cmp_eq_u32 s34, 3
    s_cbranch_scc1 F_o3x
    s_cmp_eq_u32 s31, 0
    s_cbranch_scc0 F_o3w
    s_mov_b64 s[40:41], 0xffff
    """)
    if OPT['k2'] == 1:
        a("s_and_b32 s40, s34, 1\ns_lshl_b32 s40, s40, 10\ns_add_u32 s45, s45, s40")
        spoll(a, "s45", [40, 41, 42, 43, 46, 47, 57, 58])
    else: poll(a, "s45", "s[40:41]", 60)
    a(f"v_mov_b32 v1, 1\nv_mov_b32 v2, {W_K2}\nds_write_b32 v2, v1\ns_branch F_o3x\nF_o3w:")
    spin(a, W_K2, 1)
    a("F_o3x:\ns_mov_b32 s34, 3")
    dstamp(a, 1)
    loads(1, "s35", "s44")
    for h in range(2):
        a(f"s_waitcnt vmcnt({14 - 14*h})\nF_ov{h}:")
        verify(h, f"F_or{h}")
        for i in range(2):
            for g in range(7):
                d = vr(64 + 4*g, 4)
                a(f"v_mfma_f32_16x16x32_bf16 {d}, v[56:59], {vr(LD+4*(14*h+7*i+g),4)}, {'0' if h + i == 0 else d}")
    a("s_nop 0")
    dstamp(a, 2)
    if OPT['eo'] == 3: early_flag(a)
    a("s_mov_b32 exec_hi, 0")
    for g in range(7):
        a(f"v_cvt_pk_bf16_f32 v{96+2*g}, v{64+4*g}, v{65+4*g}\nv_cvt_pk_bf16_f32 v{97+2*g}, v{66+4*g}, v{67+4*g}\nds_write_b64 v5, {vr(96+2*g,2)} offset:{256*g}")
    signal(a, C_OB)
    spin(a, C_OB, 4)
    if OPT['eo'] == 1: early_flag(a)
    dstamp(a, 3)
    AF = 64
    for hd in range(4):
        for st in range(2): a(f"ds_read_b128 {vr(AF+12*hd+4*st,4)}, v8 offset:{1792*hd + 672*st}")
        a(f"ds_read_b128 {vr(AF+12*hd+8,4)}, v{6 if hd < 2 else 10} offset:{1792*(hd&1)}")
    OD = 128
    pp = [0, 3, 5, 8]
    def norm(hd):
        d = OD + 16*hd
        r = [f"v_add_f32 v{d+12}, 0x358637bd, v{d+12}", f"v_rcp_f32 v{d+12}, v{d+12}", "s_nop 0"]
        for i in range(6): r.append(f"v_pk_mul_f32 {vr(d+2*i,2)}, {vr(d+2*i,2)}, {vr(d+12,2)} op_sel_hi:[1,0]")
        for i in range(4): r.append(f"v_cvt_pk_bf16_f32 v{d+i}, v{d+2*i}, v{d+2*i+1}")
        for i in range(2): r.append(f"v_cvt_pk_bf16_f32 v{112+2*hd+i}, v{d+8+2*i}, v{d+9+2*i}")
        r.append(f"buffer_store_dwordx4 {vr(d,4)}, v15, s[16:19], s56 offen offset:{256*pp[hd]} sc1")
        return r
    q = []
    for up in range(2):
        for st in range(3):
            for hh in range(2):
                hd = 2*up + hh
                if st == 0: a(f"s_waitcnt lgkmcnt({9-3*hd})")
                b = 16 + 20*hh + (8*st + 4*up if st < 2 else 16)
                d = vr(OD + 16*hd, 16)
                a(f"v_mfma_f32_32x32x16_bf16 {d}, {vr(AF+12*hd+4*st,4)}, {vr(b,4)}, {'0' if st == 0 else d}")
                if up == 1 and st == 0 and hh == 1: q = ['s_nop 6'] + norm(0) + norm(1)
                for _ in range(7):
                    if q: a(q.pop(0))
    for x in q: a(x)
    a("s_mov_b32 exec_hi, 0")
    a(f"buffer_store_dwordx4 v[112:115], v15, s[16:19], s56 offen offset:{256*2} sc1\ns_mov_b32 exec_hi, -1\ns_nop 3")
    for x in norm(2) + norm(3): a(x)
    a("s_mov_b32 exec_hi, 0")
    a(f"buffer_store_dwordx4 v[116:119], v15, s[16:19], s56 offen offset:{256*7} sc1")
    a("s_mov_b64 exec, -1\ns_branch F_fin")
    for h in range(2):
        a(f"F_or{h}:")
        loads(h, *(("s36", "s37"), ("s35", "s44"))[h])
        a(f"s_waitcnt vmcnt(0)\ns_branch F_ov{h}")

def fin(a):
    a("F_fin:")
    stamp(a, 6)
    if OPT['eo'] == 0 or OPT['ek'] == 0:
        arrive(a, C_O)
        a("s_cmp_eq_u32 s47, 3\ns_cbranch_scc0 F_ot_end")
        if OPT['ek']: a("s_cmp_eq_u32 s30, 1\ns_cbranch_scc0 F_ot_end")
        flag_store(a, "s51")
    else:
        signal(a, C_O)
        a("s_waitcnt lgkmcnt(0)")
    a("F_ot_end:")
    stamp(a, 7)
    stamp_flush(a, 8, 1)
    a("s_endpgm")

def dma(a, base, j, v, srd_, soff):
    a(f"s_add_u32 m0, {base}, {1024*j}\ns_nop 0\nbuffer_load_dwordx4 v{v}, {srd_}, {soff} offen lds")
def issue_head(a):
    a("""
    s_lshl_b32 s34, s32, 7
    s_mul_i32 s35, s32, 245760
    s_mul_i32 s36, s32, 196608
    s_add_u32 s41, s33, s45
    s_add_u32 s42, s33, s46
    s_add_u32 s43, s33, s47
    """)
def issue_tail(a):
    a(f"""
    s_add_u32 s32, s32, 1
    s_cmp_eq_u32 s32, 10
    s_cselect_b32 s32, 0, s32
    s_add_u32 s33, s33, {SLOT}
    s_cmp_eq_u32 s33, {3*SLOT}
    s_cselect_b32 s33, 0, s33
    """)
def first_chunk(a, typ):
    nq = 5 if typ == 0 else 3
    nh = 2 if typ == 0 else 4
    for j in range(nh):
        if j == 0:
            if typ == 0:
                a(f"""
                s_lshl_b32 s37, s31, 4
                v_lshrrev_b32 v3, 3, v60
                v_add_u32 v3, s37, v3               ; row
                v_lshrrev_b32 v4, 2, v60
                v_and_b32 v4, 4, v4
                v_and_b32 v5, 7, v60
                v_xor_b32 v4, v4, v5
                v_mul_u32_u24 v3, 3072, v3
                v_lshl_add_u32 v3, v4, 4, v3
                v_add_u32 v19, s39, v3
                """)
            else:
                a(f"""
                s_lshl_b32 s37, s31, 4
                v_lshrrev_b32 v3, 4, v60
                v_lshlrev_b32 v4, 2, v3
                v_add_u32 v3, s37, v3               ; row
                v_and_b32 v5, 15, v60
                v_xor_b32 v4, v4, v5
                v_mul_u32_u24 v3, 3072, v3
                v_lshl_add_u32 v3, v4, 4, v3
                v_add_u32 v19, s39, v3
                """)
        else:
            a(f"v_add_u32 v{19+j}, {(8 if typ == 0 else 4)*3072*j}, v19")
        dma(a, "s43", j, 19 + j, "s[12:15]", "s36")
    a(f"s_mul_i32 s37, s31, {16*3840}\ns_add_u32 s38, s38, s37")
    for j in range(nq):
        a(f"v_add_u32 v2, {64*j}, v60")
        if typ == 0:
            a(f"""
            v_mul_u32_u24 v3, 3277, v2
            v_lshrrev_b32 v3, 16, v3            ; row
            v_mul_u32_u24 v4, 20, v3
            v_sub_u32 v4, v2, v4                ; pos
            v_mul_u32_u24 v5, 52, v4
            v_lshrrev_b32 v5, 8, v5             ; seg
            v_mul_u32_u24 v3, 3840, v3
            v_lshl_add_u32 v3, v4, 4, v3
            v_and_b32 v6, 1, v5
            v_mul_u32_u24 v6, 1200, v6
            v_lshrrev_b32 v5, 1, v5
            v_mul_u32_u24 v5, 80, v5
            v_add3_u32 v3, v3, v6, s38
            v_sub_u32 v{14+j}, v3, v5
            """)
        else:
            a(f"""
            v_mul_u32_u24 v3, 5462, v2
            v_lshrrev_b32 v3, 16, v3            ; row
            v_mul_u32_u24 v4, 12, v3
            v_sub_u32 v4, v2, v4                ; pos
            v_mul_u32_u24 v5, 43, v4
            v_lshrrev_b32 v5, 8, v5             ; seg
            v_sub_u32 v6, v4, v5
            v_mul_u32_u24 v3, 3840, v3
            v_lshl_add_u32 v3, v6, 4, v3
            v_add_u32 v{14+j}, s38, v3
            """)
        dma(a, "s42", j, 14 + j, "s[8:11]", "s35")

def issue_sub(a):
    a("F_issue:")
    issue_head(a)
    for j in range(4): dma(a, "s41", j, 10 + j, "s[4:7]", "s34")
    for j in range(3): dma(a, "s42", j, 14 + j, "s[8:11]", "s35")
    for j in range(2): dma(a, "s43", j, 19 + j, "s[12:15]", "s36")
    a("s_cmp_eq_u32 s30, 1\ns_cbranch_scc1 F_issue_b")
    for j in range(3, 5): dma(a, "s42", j, 14 + j, "s[8:11]", "s35")
    a("s_branch F_issue_e\nF_issue_b:")
    for j in range(2, 4): dma(a, "s43", j, 19 + j, "s[12:15]", "s36")
    a("F_issue_e:")
    issue_tail(a)
    a("s_setpc_b64 s[56:57]")
CALL = "s_call_b64 s[56:57], F_issue"

def cols_addr(a, typ):
    nql = 40 if typ == 0 else 24
    if typ == 0:
        a(f"""
        v_mul_u32_u24 v2, 26, v60
        v_lshrrev_b32 v2, 8, v2             ; seg
        v_mul_u32_u24 v3, 10, v2
        v_sub_u32 v3, v60, v3               ; w
        v_and_b32 v4, 1, v2
        v_mul_u32_u24 v4, 640, v4
        v_lshrrev_b32 v2, 1, v2
        v_mul_u32_u24 v2, 40, v2
        v_lshl_add_u32 v2, v3, 2, v2
        s_mul_i32 s37, s29, 80
        s_add_u32 s37, s37, 640
        v_add3_u32 v2, v2, v4, s37          ; colQ
        s_lshl_b32 s37, s29, 6
        s_add_u32 s37, s37, {1024 - 4*nql}
        """)
    else:
        a(f"""
        v_mul_u32_u24 v2, 22, v60
        v_lshrrev_b32 v2, 8, v2             ; seg
        v_lshlrev_b32 v2, 1, v2
        v_sub_u32 v2, v60, v2
        s_mul_i32 s37, s29, 80
        v_lshl_add_u32 v2, v2, 2, s37       ; colQ
        s_lshl_b32 s37, s29, 7
        s_sub_u32 s37, s37, {4*nql}
        """)
    a(f"""
    v_lshl_add_u32 v3, v60, 2, s37          ; w1 column
    v_add_u32 v4, 1920, v3
    v_lshlrev_b32 v3, 1, v3
    v_mov_b32 v5, 0x40000000
    v_cmp_gt_u32 vcc, {nql}, v60
    v_mov_b32 v6, {2*SLOT + HB[typ] - 8*nql}
    v_mov_b32 v7, {2*SLOT + QB}
    v_cndmask_b32 v2, v4, v2, vcc
    v_cndmask_b32 v51, v3, v5, vcc
    v_cndmask_b32 v6, v6, v7, vcc
    v_lshl_add_u32 v6, v60, 3, v6           ; A0
    v_mov_b32 v7, {HP[typ]}
    v_mov_b32 v8, {QP[typ]}
    v_cndmask_b32 v7, v7, v8, vcc           ; pitch
    v_mov_b32 v8, 64
    v_cndmask_b32 v8, v8, v56, vcc          ; X
    v_lshlrev_b32 v50, 2, v2
    """)
    for k in range(5):
        xm = ((k >> 1) & 1) if typ == 0 else (k & 3)
        a(f"v_mul_u32_u24 v{40+k}, {xm}, v8\nv_xor_b32 v{40+k}, v{40+k}, v6\nv_mad_u32_u24 v{40+k}, v7, {k}, v{40+k}")

def helper(a):
    a(f"""
    F_helper:
    s_sub_u32 s31, s31, 4
    s_lshl_b32 s37, s28, 7
    s_lshl_b32 s38, s31, 5
    s_add_u32 s37, s37, s38             ; first token row
    v_lshrrev_b32 v2, 3, v60
    v_add_u32 v2, s37, v2
    v_mul_u32_u24 v2, 1280, v2
    v_lshrrev_b32 v3, 4, v60
    v_and_b32 v4, 7, v60
    v_xor_b32 v3, v3, v4
    v_lshl_add_u32 v10, v3, 4, v2
    v_xor_b32 v3, 4, v3
    v_lshl_add_u32 v11, v3, 4, v2
    v_add_u32 v11, {8*1280}, v11
    v_add_u32 v12, {16*1280}, v10
    v_add_u32 v13, {16*1280}, v11
    s_lshl_b32 s45, s31, 12
    s_cmp_eq_u32 s30, 1
    s_cselect_b32 s46, 3072, 5120
    s_cselect_b32 s47, 4096, 2048
    s_cselect_b32 s37, {HB[1]}, 0
    s_cselect_b32 s38, 0, {HB[0]}
    s_mul_i32 s46, s46, s31
    s_add_u32 s46, s46, {QB}
    s_mul_i32 s47, s47, s31
    s_add_u32 s47, s47, s37
    s_add_u32 s47, s47, s38
    s_mov_b32 s33, {SLOT}
    """.replace("s_cselect_b32 s46, 3072, 5120", "s_cselect_b32 s46, 3, 5\ns_lshl_b32 s46, s46, 10\ns_cmp_eq_u32 s30, 1").replace("s_cselect_b32 s47, 4096, 2048", "s_cselect_b32 s47, 4, 2\ns_lshl_b32 s47, s47, 10\ns_cmp_eq_u32 s30, 1"))
    issue_head(a)
    a("s_mul_i32 s38, s29, 160\ns_waitcnt lgkmcnt(0)")
    stamp(a, 1)
    for j in range(4): dma(a, "s41", j, 10 + j, "s[4:7]", "s34")
    a("""
    s_cmp_eq_u32 s30, 1
    s_cbranch_scc1 F_hb
    s_add_u32 s38, s38, 1280
    s_lshl_b32 s39, s29, 7
    s_add_u32 s39, s39, 2048
    """)
    first_chunk(a, 0)
    a("v_mov_b32 v21, v19\nv_mov_b32 v22, v19\ns_branch F_hc\nF_hb:\ns_lshl_b32 s39, s29, 8")
    first_chunk(a, 1)
    a("v_mov_b32 v17, v14\nv_mov_b32 v18, v14\nF_hc:")
    issue_tail(a)
    a(CALL)
    a(f"""
    s_mov_b32 s40, s2
    s_mov_b32 s44, s31
    s_cmp_lt_u32 s31, 2
    s_cselect_b32 s58, 1, 0
    s_cbranch_scc1 F_wt_sel
    s_and_b32 s44, s2, 1
    s_lshr_b32 s40, s2, 1
    s_add_u32 s40, s40, {256 - 112}
    s_cmp_eq_u32 s31, 2
    s_cselect_b32 s58, 1, 0
    s_cmp_ge_u32 s2, 224
    s_cselect_b32 s58, s58, 0
    F_wt_sel:
    s_mul_i32 s49, s31, 5120
    s_add_u32 s49, s49, {L_STG}
    v_mov_b32 v62, 0
    v_mov_b32 v63, 0
    s_cmp_eq_u32 s58, 0
    s_cbranch_scc1 F_wt_skip1
    """)
    t = Asm(); t.nlabel = 900
    wt_task(t, "s40", "s44", "s49", 60, SW2, SWO, "s[16:19]", "FW")
    txt = t.text()
    import re
    remap = {20: 62, 21: 63, 22: 23, 23: 24, 24: 25, 25: 26, 26: 27}
    txt = re.sub(r"\bv(2[0-6])\b", lambda m: f"v{remap[int(m.group(1))]}", txt)
    a(txt)
    a(f"""
    F_wt_skip1:
    s_lshl_b32 s37, s29, 2
    s_add_u32 s37, s37, s31
    s_mul_i32 s37, s37, 800
    v_lshlrev_b32 v2, 3, v60
    buffer_load_dwordx2 v[30:31], v2, s[20:23], s37 offen
    buffer_load_dwordx2 v[32:33], v2, s[20:23], s37 offen offset:512
    v_mov_b32 v56, 0
    v_mov_b32 v57, 0
    v_mov_b32 v58, 0
    v_mov_b32 v59, 0
    s_mul_i32 s37, s31, 2880
    s_add_u32 s37, s37, {L_BD}
    v_lshl_add_u32 v2, v60, 4, s37
    ds_write_b128 v2, v[56:59]
    ds_write_b128 v2, v[56:59] offset:1024
    ds_write_b128 v2, v[56:59] offset:1856
    v_lshlrev_b32 v61, 2, v60
    v_min_u32 v2, 60, v61
    v_add_u32 v2, {L_CNT}, v2
    ds_write_b32 v2, v56
    v_mov_b32 v50, 0
    v_mov_b32 v51, 0
    s_cmp_eq_u32 s31, 3
    s_cbranch_scc0 F_ca2
    s_cmp_eq_u32 s30, 1
    s_cbranch_scc1 F_ca1
    """)
    cols_addr(a, 0)
    a("s_branch F_ca2\nF_ca1:")
    cols_addr(a, 1)
    a(f"""
    F_ca2:
    v_mov_b32 v49, {W_N}
    s_mov_b32 s40, {FL_S}
    s_cmp_eq_u32 s58, 1
    s_cbranch_scc1 F_wt_j1
    s_waitcnt vmcnt(13)
    F_wt_j1:
    s_waitcnt vmcnt(18) lgkmcnt(0)
    s_barrier
    {CALL}
    s_waitcnt vmcnt(13)
    s_barrier
    s_cmp_eq_u32 s58, 0
    s_cbranch_scc1 F_wt_skip2
    """)
    for nt in range(5):
        for u in range(2): a(f"ds_read_b64_tr_b16 {vr(64+4*nt+2*u,2)}, v62 offset:{u*640 + 8*nt}")
    a(f"{CALL}\ns_waitcnt lgkmcnt(0)")
    for nt in range(5):
        a(f"buffer_store_dwordx4 {vr(64+4*nt,4)}, v63, s[16:19], s{54 if nt < 4 else 55} offen offset:{(nt%4)*1024}{SC}")
    a(f"""
    s_waitcnt vmcnt(16)
    s_branch F_wt_j2
    F_wt_skip2:
    s_buffer_load_dword {NC}, {SDBG}, 0
    {CALL}
    s_cmp_eq_u32 s31, 3
    s_cbranch_scc0 F_ng_x
    s_mov_b32 s48, 0
    s_waitcnt lgkmcnt(0)
    s_cmp_eq_u32 {NC}, 0
    s_cbranch_scc0 F_ng_y
    F_ng:
    s_buffer_load_dword {NC}, {SDBG}, 0 glc
    s_add_u32 s48, s48, 1
    s_waitcnt lgkmcnt(0)
    s_cmp_ge_u32 s48, {TMO}
    s_cbranch_scc1 F_ng_y
    s_cmp_eq_u32 {NC}, 0
    s_cbranch_scc1 F_ng
    F_ng_y:
    v_mov_b32 v2, {NC}
    ds_write_b32 v49, v2
    F_ng_x:
    s_waitcnt vmcnt(11) lgkmcnt(0)
    F_wt_j2:
    s_barrier
    """)
    for k in range(3, 7):
        a(CALL)
        if k == 5: a(f"""
    s_sub_u32 s37, s31, 1
    s_lshl_b32 s37, s37, 6
    v_add_u32 v2, s37, v60
    v_and_b32 v2, 127, v2
    v_lshlrev_b32 v45, 3, v2
    v_lshlrev_b32 v46, 7, v2
    v_and_b32 v7, 14, v2
    v_lshl_add_u32 v46, v7, 3, v46
    v_add_u32 v46, {2*SLOT}, v46
    v_xor_b32 v47, 16, v46
    v_lshlrev_b32 v48, 2, v2
    v_add_u32 v48, {L_RSTD}, v48
    v_lshrrev_b32 v61, 2, v60
    v_lshlrev_b32 v61, 7, v61
    v_and_b32 v3, 3, v60
    v_lshl_add_u32 v61, v3, 4, v61
 """)
        a("s_waitcnt vmcnt(11)\ns_barrier")
    a(f"""
    s_cmp_eq_u32 s31, 3
    s_cbranch_scc1 F_pl
    {CALL}
    s_waitcnt vmcnt(11)
    s_branch F_pollx
    F_pl:
    buffer_load_dwordx4 v[36:39], v61, s[16:19], s40 offen sc1
    {CALL}
    s_mov_b32 s48, 0
    s_waitcnt vmcnt(11)
    F_poll:
    v_min3_u32 v2, v36, v37, v38
    v_max3_u32 v3, v36, v37, v38
    v_min_u32 v2, v2, v39
    v_max_u32 v3, v3, v39
    v_cmp_eq_u32 s[38:39], {NC}, v2
    v_cmp_eq_u32 vcc, {NC}, v3
    s_and_b64 vcc, vcc, s[38:39]
    s_add_u32 s48, s48, 1
    s_cmp_ge_u32 s48, {TMO}
    s_cbranch_scc1 F_pollx
    s_cmp_eq_u64 vcc, -1
    s_cbranch_scc1 F_pollx
    buffer_load_dwordx4 v[36:39], v61, s[16:19], s40 offen sc1
    s_waitcnt vmcnt(0)
    s_branch F_poll
    F_pollx:
    s_barrier
    """)
    a(CALL)
    a(f"""
    s_cmp_eq_u32 s31, 3
    s_cbranch_scc1 F_ldc
    s_lshl_b32 s38, s28, 10
    buffer_load_dwordx2 v[64:65], v45, s[16:19], s38 offen sc1
    s_waitcnt vmcnt(12)
    s_branch F_ldx
    F_ldc:
    s_mov_b32 s37, {WS_COLS}
    """)
    for i in range(8): a(f"buffer_load_dwordx4 {vr(64+4*i,4)}, v50, s[16:19], s37 offen sc1\ns_add_u32 s37, s37, {3456*4}")
    a(f"""
    buffer_load_dwordx2 v[52:53], v51, s[24:27], 0 offen
    s_waitcnt vmcnt(20)
    F_ldx:
    s_barrier
    ds_read_b32 v36, v49
    s_and_b32 s37, s31, 1
    s_mul_i32 s37, s37, {20*96 + 40}
    s_lshr_b32 s38, s31, 1
    s_mul_i32 s38, s38, 3840
    s_add_u32 s37, s37, s38
    s_add_u32 s37, s37, {L_BD}
    v_mul_u32_u24 v2, 205, v60
    v_lshrrev_b32 v2, 10, v2
    v_mul_u32_u24 v2, 56, v2
    v_lshl_add_u32 v2, v60, 3, v2
    v_add_u32 v28, s37, v2
    v_add_u32 v3, 64, v60
    v_mul_u32_u24 v2, 205, v3
    v_lshrrev_b32 v2, 10, v2
    v_mul_u32_u24 v2, 56, v2
    v_lshl_add_u32 v2, v3, 3, v2
    v_add_u32 v29, s37, v2
    ds_write_b64 v28, v[30:31]
    v_cmp_gt_u32 vcc, 36, v60
    s_and_saveexec_b64 s[48:49], vcc
    ds_write_b64 v29, v[32:33]
    s_mov_b64 exec, -1
    s_mov_b32 s39, 0xffff0000
    """)
    p2_ids(a, "s28", "s29")
    a("v_mov_b32 v14, v60")
    p2_setup(a, "s31", 14)
    n1, n2 = OPT['w8'], OPT['w8'] + OPT['w9']
    wl = [ldW(i, nt, SC) for i in range(4) for nt in range(5)] + [wdma(0, j, nt) for j in range(2) for nt in range(5)]
    for x in wl[:n1]: a(x)
    p2_epi_addr(a, "s31", 14)
    a(f"""
    s_mul_i32 s37, s31, 5120
    s_add_u32 s57, s31, 1
    s_mul_i32 s58, s57, 20480
    s_lshl_b32 s57, s57, 12
    s_lshr_b32 s55, s28, 1
    s_lshl_b32 s55, s55, 2
    s_add_u32 s55, s55, s31
    s_lshl_b32 s55, s55, 8
    s_add_u32 s55, s55, {FL_O}
    s_waitcnt lgkmcnt(0)
    v_readfirstlane_b32 {NC}, v36
    s_cmp_eq_u32 s31, 3
    s_cbranch_scc1 F_w9
    s_waitcnt vmcnt({1+n1})
    F_w9:
    s_waitcnt vmcnt({9+n1})
    s_barrier
    s_waitcnt vmcnt({n1})
    s_cbranch_scc1 F_prc
    s_cmp_eq_u32 s31, 0
    s_cbranch_scc1 F_prx
    v_rcp_f32 v66, v65
    v_sub_f32 v64, 0, v64
    v_cvt_pk_bf16_f32 v68, v64, v64
    v_and_b32 v67, s39, v68
    v_sub_f32 v64, v64, v67
    v_cvt_pk_bf16_f32 v69, v64, v66
    v_and_b32 v67, s39, v69
    v_sub_f32 v66, v66, v67
    v_cvt_pk_bf16_f32 v70, v66, v56
    v_mov_b32 v71, 0
    ds_write_b128 v46, v[68:71]
    ds_write_b128 v47, v[56:59]
    ds_write_b32 v48, v65
    s_branch F_prx
    F_prc:
    """)
    for i in range(1, 8):
        for q in range(2): a(f"v_pk_add_f32 {vr(64+2*q,2)}, {vr(64+2*q,2)}, {vr(64+4*i+2*q,2)}")
    a("""
    v_cvt_pk_bf16_f32 v70, v64, v65
    v_cvt_pk_bf16_f32 v71, v66, v67
    v_lshlrev_b32 v72, 16, v70
    v_and_b32 v73, s39, v70
    v_lshlrev_b32 v74, 16, v71
    v_and_b32 v75, s39, v71
    v_sub_f32 v64, v64, v72
    v_sub_f32 v65, v65, v73
    v_sub_f32 v66, v66, v74
    v_sub_f32 v67, v67, v75
    v_cvt_pk_bf16_f32 v72, v64, v65
    v_cvt_pk_bf16_f32 v73, v66, v67
    v_cmp_gt_u32 vcc, 56, v60
    s_and_saveexec_b64 s[48:49], vcc
    ds_write_b64 v40, v[70:71]
    ds_write_b64 v41, v[72:73]
    ds_write_b64 v42, v[70:71]
    ds_write_b64 v43, v[52:53]
    ds_write_b64 v44, v[52:53]
    s_mov_b64 exec, -1
    F_prx:
    """)
    for x in wl[n1:n2]: a(x)
    a("v_add_u32 v15, s37, v6\nv_add_u32 v13, 61440, v15\nv_add_u32 v1, 112640, v15\ns_waitcnt lgkmcnt(0)\ns_barrier\ns_barrier")
    if OPT['gh'] == 3:
        a(f"s_mul_i32 s36, s30, {C_H - W_O}\ns_add_u32 s36, s36, {W_O}")
        spin(a, "s36", 4, va=10)
    elif OPT['gh']: spin(a, C_H if OPT['gh'] == 1 else W_O, 4, va=10)
    for x in wl[n2:]: a(x)

def wslot(typ, j): return j*20480 + (128*PV_PITCH if typ == 0 and j >= 2 else 0)
def wdma(typ, j, nt):
    t = f"s_add_u32 m0, s37, {wslot(typ, j) + (4096 if nt == 4 else 0)}\ns_nop 0\n" if nt in (0, 4) else ""
    if nt < 4: return t + f"buffer_load_dwordx4 v6, s[16:19], s33 offen offset:{nt*1024}{NS[OPT['nsw']]} lds"
    return t + f"buffer_load_dwordx4 v7, s[16:19], s33 offen{NS[OPT['nsw']]} lds\ns_add_u32 s33, s33, 20480"

class VM:
    def __init__(self, a): self.a = a; self.q = []
    def issue(self, tag, text): self.a(text); self.q.append(tag)
    def wait(self, tags, extra=""):
        last = max(i for i, t in enumerate(self.q) if t in tags)
        n = len(self.q) - 1 - last
        assert n < 64
        self.a(f"s_waitcnt vmcnt({n}){extra}")
def phase2(a):
    a("F_p2:\ns_cmp_eq_u32 s30, 1\ns_cbranch_scc1 F_p2_1")
    for typ in range(2):
        a(f"F_p2_{typ}:")
        phase2_t(a, typ)
        if typ == 0: a("s_branch F_p2_e")
    a("F_p2_e:")
    stamp(a, 7)
    a("s_waitcnt lgkmcnt(0)\ns_barrier")
    for m in range(3):
        for nt in range(5): a(f"ds_read_b128 {vr(20+20*m+4*nt,4)}, v{10+m} offset:{m*20480 + nt*1024}")
    for m in range(3):
        a(f"s_waitcnt lgkmcnt({10-5*m})")
        for q in range(10): a(f"v_pk_add_f32 {vr(AC2+2*q,2)}, {vr(AC2+2*q,2)}, {vr(20+20*m+2*q,2)}")
    for q in range(10): a(f"v_cvt_pk_bf16_f32 v{AC2+q}, v{AC2+2*q}, v{AC2+2*q+1}")
    a(f"buffer_store_dwordx4 {vr(AC2,4)}, v8, {SOUT}, s34 offen\nbuffer_store_dwordx4 {vr(AC2+4,4)}, v8, {SOUT}, s34 offen offset:16\nbuffer_store_dwordx2 {vr(AC2+8,2)}, v8, {SOUT}, s34 offen offset:32")
    a("s_add_u32 s31, s31, 4")
    stamp_flush(a, 8, 1)
    a("s_endpgm")
    for x in ool: a(x)

ool = []
def phase2_t(a, typ):
    nl = OPT['nlb'] if typ else OPT['nla']
    LA = OPT['la']
    vm = VM(a)
    for i in range(4):
        for nt in range(5): vm.q.append(("W", i))
    for j in range(nl):
        for nt in range(5):
            if j < 2: vm.q.append(("WL", j))
            else: vm.issue(("WL", j), wdma(typ, j, nt))
    stamp(a, 2)
    a(f"s_lshr_b32 s54, s28, 1\ns_lshl_b32 s54, s54, 11\ns_add_u32 s54, s54, {FL_H}\ns_mov_b64 s[38:39], {'0xff00' if OPT['bf'] else '0xffff'}\ns_mov_b64 s[40:41], 0xff")
    if not (typ == 1 and OPT['bp']):
        a(f"s_cmp_eq_u32 s31, 0\ns_cbranch_scc0 F_p2_wait{typ}")
        poll(a, "s54", "s[38:39]", 14, va=10)
        setword(a, W_H, va=10)
    a(f"F_p2_wait{typ}:")
    spin(a, W_H, 1, va=10)
    stamp(a, 3)
    if typ == 0 and OPT['ga']: spin(a, C_O, 4, va=10)
    gate = 4 + nl if typ == 1 and OPT['gb'] else 99
    for i in range(LA):
        for m in range(4): vm.issue(("A", i), ldA(i, m, SC))
    xe = AR + 32
    def lds_rd(i, nt):
        o = wslot(typ, i - 4) + nt*1024
        r, o = (15, o) if o < 61440 else (13, o - 61440) if o < 112640 else (1, o - 112640)
        return f"ds_read_b128 {vr(WR+20*(i%4)+4*nt,4)}, v{r} offset:{o}"
    FS = OPT['fast']
    def xadd():
        vm.wait(["x"])
        a("s_mov_b32 s39, 0xffff0000")
        for q in range(10):
            x = xe + q; b = xe + 10 + q
            t = xe + 20
            a(f"v_lshlrev_b32 v{t}, 16, v{x}\nv_and_b32 v{t+1}, s39, v{x}\nv_lshlrev_b32 v{t+2}, 16, v{b}\nv_and_b32 v{t+3}, s39, v{b}")
            a(f"v_pk_add_f32 {vr(t,2)}, {vr(t,2)}, {vr(t+2,2)}\nv_pk_add_f32 {vr(AC2+2*q,2)}, {vr(AC2+2*q,2)}, {vr(t,2)}")
    def prep():
        a("s_mov_b32 s48, 0")
        for m in range(1, 4):
            a(f"s_sub_u32 s36, s31, {m}\ns_and_b32 s36, s36, 3\ns_mul_i32 s36, s36, 5120\nv_add_u32 v{9+m}, s36, v6")
    def fo_issue():
        a("v_and_b32 v0, 1, v14\nv_lshlrev_b32 v0, 7, v0")
        vm.issue("fo", "buffer_load_dword v0, v0, s[16:19], s55 offen sc1")
    def steps(i0, i1, fast):
      tg = f"{typ}{'f' if fast else ''}"
      for i in range(i0, i1):
        if i == 12 and not fast:
            if not FS: xadd()
            stamp(a, 5)
            if typ == 0: spin(a, C_O, 4, va=10)
            vm.wait(["fo"])
            a(f"v_cmp_eq_u32 vcc, {NC}, v0\ns_cmp_eq_u64 vcc, -1\ns_cbranch_scc1 F_fo{typ}")
            poll(a, "s55", "3", 14, va=10)
            a(f"F_fo{typ}:")
            stamp(a, 6)
            a("s_mov_b32 s56, s32")
            for k in range(12, 17):
                for m in range(4): vm.issue(("A", k), ldA(k, m, SC))
            prep()
        if i == 12 and fast:
            stamp(a, 5)
            if typ == 0: spin(a, C_O, 4, va=10)
            prep()
        if i == gate:
            spin(a, C_OB if OPT['gb'] == 1 else C_O, 4, va=10)
            for k in range(gate, gate + 4):
                for nt in range(5): vm.issue(("W", k), ldW(k, nt, SC))
        if OPT['bf'] and i == OPT['fa']:
            a("v_and_b32 v12, 7, v14\nv_lshlrev_b32 v12, 7, v12")
            vm.issue("fa", "buffer_load_dword v12, v12, s[16:19], s54 offen sc1")
        if OPT['bf'] and i == 8 - LA:
            vm.wait(["fa"])
            a(f"v_cmp_eq_u32 vcc, {NC}, v12\ns_cmp_eq_u64 vcc, -1\ns_cbranch_scc1 F_fa{typ}")
            poll(a, "s54", "s[40:41]", 14, va=10)
            a(f"F_fa{typ}:")
        ex = ""
        if i == 16: ex = " lgkmcnt(0)"
        if 4 <= i < 4 + nl: ex = f" lgkmcnt({5*(min(i + 3, 3 + nl) - i)})"
        vm.wait([("A", i), ("W", i)] + ([("W", 16)] if i == 12 else []), ex)
        if i == 0: stamp(a, 4)
        if i >= 12:
            b = AR + 16*(i % 5)
            a(f"F_v{tg}_{i}:\nv_max3_u32 v0, v{b+3}, v{b+7}, v{b+11}\nv_max_u32 v0, v0, v{b+15}\nv_cmp_eq_u32 vcc, -1, v0\ns_cbranch_vccnz F_r{tg}_{i}\nF_g{tg}_{i}:")
            t = f"F_r{tg}_{i}:\ns_add_u32 s48, s48, 1\ns_cmp_ge_u32 s48, {TMO}\ns_cbranch_scc1 F_g{tg}_{i}\ns_add_u32 s36, s56, {(i-12)*1024}\n"
            for m in range(4): t += f"buffer_load_dwordx4 {vr(b+4*m,4)}, v{2+m}, s[16:19], s36 offen sc1\n"
            ool.append(t + f"s_waitcnt vmcnt(0)\ns_branch F_v{tg}_{i}")
        if i == 16:
            for m in (1, 2, 3, 0):
                for nt in range(5):
                    d = vr(AC2 + 20*m + 4*nt, 4)
                    a(f"v_mfma_f32_16x16x32_bf16 {d}, {vr(WR+20*(i%4)+4*nt,4)}, {vr(AR+16*(i%5)+4*m,4)}, {d}")
                    pm = (m - 1) % 4
                    if pm == 1 and nt == 0: a('s_nop 2')
                    if pm: a(f"ds_write_b128 v15, {vr(AC2+20*pm+4*nt,4)} offset:{(pm-1)*20480 + nt*1024}")
            continue
        for nt in range(5):
            for m in range(4):
                d = vr(AC2 + 20*m + 4*nt, 4)
                a(f"v_mfma_f32_16x16x32_bf16 {d}, {vr(WR+20*(i%4)+4*nt,4)}, {vr(AR+16*(i%5)+4*m,4)}, {'0' if i == 0 else d}")
                if m == 1 and nt < 4:
                    if i + LA < 12: vm.issue(("A", i + LA), ldA(i + LA, nt, SC))
                    elif fast and i + 4 < 17: vm.issue(("A", i + 4), ldA(i + 4, nt, SC))
            if i + 4 < 4 + nl: a(lds_rd(i + 4, nt))
            elif i == 12: a(lds_rd(7, nt).replace(vr(WR+60+4*nt,4), vr(WR+4*nt,4)))
            elif i + 4 < 16 and not (gate <= i + 4 < gate + 4): vm.issue(("W", i + 4), ldW(i + 4, nt, SC))
        if i == 7:
            a("s_mov_b32 s52, s33\ns_add_u32 s33, s33, 20480")
            for nt in range(5): vm.issue(("W", 16), wdma(typ, 3, nt))
            a("s_mov_b32 s33, s52")
        if i == 11 and not fast: fo_issue()
        if i == 8:
            for k, (n, o) in enumerate(((4, 0), (4, 16), (2, 32))):
                vm.issue("x", f"buffer_load_dwordx{n} {vr(xe+4*k,n)}, v8, s[4:7], s34 offen offset:{o}")
            for k, (n, o) in enumerate(((4, 0), (4, 16), (2, 32))):
                vm.issue("x", f"buffer_load_dwordx{n} {vr(xe+10+4*k,n)}, v9, {SB2}, s35 offen offset:{o}")
        if FS and i == FS - 2: fo_issue()
    if not FS:
        steps(0, 17, False)
        return
    steps(0, FS, False)
    xadd()
    vm.wait(["fo"])
    a(f"v_cmp_eq_u32 vcc, {NC}, v0\ns_cmp_eq_u64 vcc, -1\ns_cbranch_scc1 F_fast{typ}")
    q0 = list(vm.q)
    steps(FS, 17, False)
    a(f"s_branch F_p2_e\nF_fast{typ}:")
    vm.q = q0
    stamp(a, 6)
    a("s_mov_b32 s56, s32")
    for k in range(12, FS + 4):
        for m in range(4): vm.issue(("A", k), ldA(k, m, SC))
    steps(FS, 17, True)

def gen_f1():
    a = Asm()
    stamp(a, 0)
    srd(a, 4, 0, NB_X); srd(a, 8, 8, NB_WQKV); srd(a, 12, 40, NB_W1); srd(a, 16, 88, WS_END); srd(a, 20, 16, NB_WPHI); srd(a, 24, 48, NB_B1)
    srd(a, 60, 56, NB_W2); srd(a, 64, 24, NB_WO); srd(a, 68, 72, NB_X); srd(a, 72, 64, NB_B2); srd(a, 76, 80, 256)
    a(f"""
    s_cmp_ge_u32 s2, 256
    s_cbranch_scc1 F_end
    v_lshrrev_b32 v1, 6, v0
    v_and_b32 v60, 63, v0
    s_and_b32 s33, s2, 7                ; xcd
    v_readfirstlane_b32 s31, v1
    s_lshr_b32 s34, s2, 3               ; idx
    s_and_b32 s28, s33, 1
    s_lshl_b32 s28, s28, 3
    s_and_b32 s35, s34, 7
    s_add_u32 s28, s28, s35             ; rb
    s_lshr_b32 s35, s34, 3              ; jj
    s_lshr_b32 s30, s35, 1              ; type
    s_and_b32 s35, s35, 1
    s_and_b32 s29, s33, 6
    s_add_u32 s29, s29, s35             ; g
    s_mov_b32 s32, s33
    s_cmp_lt_u32 s31, 4
    s_cbranch_scc1 F_comp
    """)
    helper(a)
    phase2(a)
    issue_sub(a)
    a(f"""
    F_comp:
    s_lshl_b32 s33, s2, 2
    s_add_u32 s33, s33, s31
    s_cmp_eq_u32 s33, 3
    s_cbranch_scc0 F_nonce_x
    s_mov_b32 s34, {WS_NONCE}
    s_waitcnt lgkmcnt(0)
    s_buffer_load_dword s35, s[16:19], s34 glc
    v_mov_b32 v3, 0
    s_waitcnt lgkmcnt(0)
    s_add_u32 s35, s35, 1
    s_max_u32 s35, s35, 1
    v_mov_b32 v2, s35
    s_mov_b64 exec, 1
    buffer_store_dword v2, v3, {SDBG}, 0 offen sc1
    buffer_store_dword v2, v3, s[16:19], s34 offen sc1
    s_mov_b64 exec, -1
    F_nonce_x:
    """)
    if OPT['cpf'] == 2: code_touch(a, "F_ct"); a("v_mov_b32 v24, v21")
    phase0_issue(a)
    if OPT['pf1'] == 1: a('s_waitcnt lgkmcnt(0)'); l2_prefetch(a)
    a(f"""
    v_lshrrev_b32 v61, 5, v60
    v_bfe_u32 v62, v60, 2, 2
    v_lshl_add_u32 v61, v61, 3, v62     ; 8hf + j
    v_and_b32 v62, 1, v60               ; c&1
    v_bfe_u32 v63, v60, 4, 1
    v_bfe_u32 v2, v60, 1, 1
    v_lshl_add_u32 v63, v63, 1, v2      ; 2gg + (c>>1)
    v_and_b32 v2, 31, v60
    s_lshl_b32 s43, s31, 5
    v_add_u32 v2, s43, v2
    v_lshrrev_b32 v3, 5, v60
    v_bfe_u32 v4, v2, 1, 3
    v_xor_b32 v3, v3, v4
    v_lshlrev_b32 v3, 4, v3
    v_lshl_add_u32 v{XA}, v2, 7, v3
    v_lshlrev_b32 v{RSTD}, 2, v2
    v_add_u32 v{RSTD}, {L_RSTD}, v{RSTD}
    v_add_u32 v{XA}, {SLOT}, v{XA}
    v_xor_b32 v{XA+1}, 32, v{XA}
    v_xor_b32 v{XA+2}, 64, v{XA}
    v_xor_b32 v{XA+3}, 96, v{XA}
    v_lshrrev_b32 v12, 5, v60
    v_cmp_eq_u32 vcc, v12, v62
    v_bfe_u32 v13, v60, 2, 2
    v_mul_u32_u24 v13, 96, v13
    v_cndmask_b32 v12, 2, v12, vcc
    v_mul_u32_u24 v12, 3840, v12
    v_lshl_add_u32 v13, v63, 3, v13
    v_add_u32 v{BDA}, v12, v13
    v_add_u32 v{BDA}, {L_BD}, v{BDA}
    s_cmp_eq_u32 s30, 1
    s_cbranch_scc1 F_as1
    """)
    addr_setup(a, 0)
    a("s_branch F_as2\nF_as1:")
    addr_setup(a, 1)
    a("F_as2:")
    for i in range(112): a(f"v_mov_b32 v{ACC+i}, 0")
    phase0_finish(a)
    if OPT['pf1'] == 2: a('s_waitcnt lgkmcnt(0)'); l2_prefetch(a)
    flag_addrs(a)
    a(f"""
    s_waitcnt lgkmcnt(0)
    s_mov_b32 s40, 0
    s_mov_b32 s42, 1
    s_mov_b32 s45, {SLOT}
    s_cmp_eq_u32 s30, 1
    s_cbranch_scc1 F_c1
    """)
    compute(a, 0)
    compute(a, 1)
    fin(a)
    a("F_end:\ns_endpgm")
    return a.text()

def build():
    t = gen_f1()
    for e in check_hazards(t): print(e)
    return file_text([f"; @launch grid=(256,1,1) block=(512,1,1) lds={F_LDS}"], [(NAME + "_kernel", t, 256, 102, 256)])
if __name__ == "__main__":
    for arg in list(sys.argv[1:]):
        if "=" in arg:
            k, v = arg.split("="); OPT[k] = int(v); sys.argv.remove(arg)
    out = sys.argv[1] if len(sys.argv) > 1 else f"cdna_kernels/{NAME}.s"
    open(out, "w").write(build())
```

```python
import sys
sys.path.insert(0, "gen")
import asmlib
if "--stamps" in sys.argv: asmlib.STAMPS = True; sys.argv.remove("--stamps")
from asmlib import *
from layout import *
from k0 import srd, dpp_add
from k1 import ACC, SET, XA, QA, HA, RSTD, BDA, LOG2E, tile_reads, mfma_step, softmax
from k2b import wt_task, wt_finish, p2_setup, p2_epi_addr, p2_final, AR, WR, AC2
import k2b
NS = {0: " sc1", 1: "", 2: " nt", 3: " sc0"}
def ldA(i, m, sc):
    t = k2b.ldA(i, m, NS[OPT['nsa']])
    if i == 11: t = t.replace("s32, 4096", "s32, s57")
    if i > 11: t = t.replace("s32, 4096", "s32, 1024")
    return t
def ldW(i, nt, sc):
    t = k2b.ldW(i, nt, NS[OPT['nsw']])
    if i == 11: t = t.replace("s33, 20480", "s33, s58")
    if i > 11: t = t.replace("s33, 20480", "s33, 5120")
    return t
SC = " sc1"
SW2, SWO, SOUT, SB2, SDBG = "s[60:63]", "s[64:67]", "s[68:71]", "s[72:75]", "s[76:79]"
C_H, C_PV, W_K2, W_KV, C_OB, C_O, W_H, W_O, W_N = [L_CNT + 4*i for i in range(9)]
FL_S = WS_FLAG + 0x2000
WS_NONCE = WS_FLAG + 0x4000
NC = "s53"
TMO = 1 << 18
OPT = dict(pfw=0, pfa=0, defer=1, pf1=0, w8=10, w9=20, prio=1, nla=4, nlb=7, spoll=0, hfa=0, la=4, gh=1, ga=1, gb=0, hfb=1, pd=1, ek=1, eo=0, il=1, bf=1, w16=1, fa=2, map=0, bp=0, k2=0, fast=0, cpf=1, p0=2, hb2=1, cl=8, ct=4, so=0, dg=0, nsa=0, nsw=0)
def dstamp(a, i):
    if OPT['dg']: stamp(a, i)
PVB = 40960

def arrive(a, off, va=1):
    a(f"""
    v_mov_b32 v{va}, 1
    v_mov_b32 v{va+1}, {off}
    s_mov_b64 exec, 1
    ds_add_rtn_u32 v{va+2}, v{va+1}, v{va}
    s_waitcnt lgkmcnt(0)
    s_mov_b64 exec, -1
    v_readfirstlane_b32 s47, v{va+2}
    """)
def signal(a, off, va=1):
    a(f"v_mov_b32 v{va}, 1\nv_mov_b32 v{va+1}, {off}\ns_mov_b64 exec, 1\nds_add_u32 v{va+1}, v{va}\ns_mov_b64 exec, -1")
def spin(a, off, val, va=1):
    L = a.label("spin")
    a(f"""
    v_mov_b32 v{va+1}, {off}
    s_mov_b32 s48, 0
    {L}:
    ds_read_b32 v{va+2}, v{va+1}
    s_add_u32 s48, s48, 1
    s_waitcnt lgkmcnt(0)
    v_readfirstlane_b32 s47, v{va+2}
    s_cmp_ge_u32 s48, {TMO}
    s_cbranch_scc1 {L}_x
    {f's_cmp_lt_u32 s47, {val}' if val else 's_andn2_b32 s47, s55, s47'}
    s_cbranch_scc1 {L}
    {L}_x:
    """)
def setword(a, off, va=1):
    a(f"v_mov_b32 v{va}, 1\nv_mov_b32 v{va+1}, {off}\nds_write_b32 v{va+1}, v{va}\ns_waitcnt lgkmcnt(0)")
def flag_store(a, soff, va=1):
    a(f"v_mov_b32 v{va}, {NC}\nv_mov_b32 v{va+1}, 0\ns_mov_b64 exec, 1\nbuffer_store_dword v{va}, v{va+1}, s[16:19], {soff} offen sc1\ns_mov_b64 exec, -1")
def poll(a, soff, mask, lane, va=1, pub=None):
    L = a.label("poll")
    pd = OPT['pd']
    R = [va + 1, va + 2] + [va + 4 + i for i in range(2)] if va == 1 else [va + 1, va + 2, 16, 17]
    a(f"""
    v_lshlrev_b32 v{va}, 7, v{lane}
    s_mov_b32 s48, 0
    {f'v_mov_b32 v{va+3}, {pub}' if pub else ''}
    s_mov_b64 exec, {mask}
    """)
    ld = lambda k: f"buffer_load_dword v{R[k]}, v{va}, s[16:19], {soff} offen sc1"
    for k in range(pd - 1): a(ld(k) + "\ns_nop 7\ns_nop 7" * 0)
    a(f"{L}:")
    for k in range(pd):
        a(f"""
        {ld((k + pd - 1) % pd)}
        s_add_u32 s48, s48, 1
        s_waitcnt vmcnt({pd-1})
        v_cmp_eq_u32 vcc, {NC}, v{R[k]}
        s_cmp_ge_u32 s48, {TMO}
        s_cbranch_scc1 {L}_x
        """)
        if pub: a(f"v_mov_b32 v{R[k]}, vcc_lo\nds_write_b32 v{va+3}, v{R[k]}\ns_waitcnt lgkmcnt(0)")
        a(f"s_cmp_eq_u64 vcc, {mask}")
        a(f"s_cbranch_scc0 {L}" if k == pd - 1 else f"s_cbranch_scc1 {L}_x")
    a(f"{L}_x:\ns_mov_b64 exec, -1")

def early_flag(a):
    L = a.label("ef")
    a(f"s_cmp_eq_u32 s31, 0\ns_cbranch_scc0 {L}")
    flag_store(a, "s51")
    a(f"{L}:")
def spoll(a, soff, regs):
    L = a.label("spoll")
    a(f"s_mov_b32 s48, 0\n{L}:")
    for i, r in enumerate(regs): a(f"s_buffer_load_dword s{r}, s[16:19], {soff} offset:{128*i} glc")
    a(f"s_add_u32 s48, s48, 1\ns_cmp_ge_u32 s48, {TMO}\ns_waitcnt lgkmcnt(0)\ns_cbranch_scc1 {L}_x")
    for r in regs: a(f"s_cmp_eq_u32 s{r}, {NC}\ns_cbranch_scc0 {L}")
    a(f"{L}_x:")

def p2_ids(a, rg, cg):
    if OPT['map'] == 1:
        a(f"s_and_b32 s36, s2, 7\ns_lshl_b32 s36, s36, 2\ns_bfe_u32 s37, s2, 0x20003\ns_add_u32 {rg}, s36, s37\ns_lshr_b32 {cg}, s2, 5")
        return
    if OPT['map'] == 2:
        a(f"s_bfe_u32 s36, s2, 0x10002\ns_lshl_b32 s36, s36, 4\ns_bfe_u32 s37, s2, 0x40003\ns_add_u32 {rg}, s36, s37\ns_and_b32 s36, s2, 3\ns_lshl_b32 s36, s36, 1\ns_lshr_b32 {cg}, s2, 7\ns_add_u32 {cg}, {cg}, s36")
        return
    a(f"""
    s_and_b32 s36, s2, 7
    s_lshr_b32 s37, s2, 3
    s_lshr_b32 {rg}, s36, 1
    s_lshl_b32 {rg}, {rg}, 3
    s_and_b32 s38, s37, 7
    s_add_u32 {rg}, {rg}, s38
    s_and_b32 {cg}, s36, 1
    s_lshl_b32 {cg}, {cg}, 2
    s_lshr_b32 s38, s37, 3
    s_add_u32 {cg}, {cg}, s38
    """)

def phase0_issue(a):
    a(f"""
    s_cmp_ge_u32 s31, 2
    s_cbranch_scc1 P0_cols
    s_lshl_b32 s33, s2, 3
    s_lshl_b32 s34, s31, 2
    s_add_u32 s33, s33, s34
    v_lshrrev_b32 v65, 4, v60
    v_add_u32 v65, s33, v65
    v_and_b32 v66, 15, v60
    v_mul_u32_u24 v64, 1280, v65
    v_lshl_add_u32 v64, v66, 4, v64
    s_waitcnt lgkmcnt(0)
    """)
    for i in range(5): a(f"buffer_load_dwordx4 {vr(20+4*i,4)}, v64, s[4:7], 0 offen offset:{256*i}")
    a(f"""
    s_branch P0_issued
    P0_cols:
    s_cmp_ge_u32 s2, 216
    s_cbranch_scc1 P0_issued
    s_lshr_b32 s33, s2, 2            ; line
    s_and_b32 s34, s2, 3
    s_lshl_b32 s34, s34, 1
    s_add_u32 s34, s34, s31
    s_sub_u32 s34, s34, 2            ; part 0..7
    s_mul_i32 s35, s34, 80
    v_lshrrev_b32 v76, 3, v60
    v_add_u32 v76, s35, v76
    v_and_b32 v77, 7, v60
    v_lshlrev_b32 v77, 4, v77
    s_cmp_ge_u32 s33, 30
    s_cbranch_scc1 P0_w1
    s_lshl_b32 s36, s33, 7
    v_mul_u32_u24 v76, 3840, v76
    v_add_u32 v76, v76, v77
    s_waitcnt lgkmcnt(0)
    """)
    for i in range(10): a(f"buffer_load_dwordx4 {vr(20+4*i,4)}, v76, s[8:11], s36 offen\ns_add_u32 s36, s36, {8*3840}")
    a("""
    s_branch P0_issued
    P0_w1:
    s_sub_u32 s36, s33, 30
    s_lshl_b32 s36, s36, 7
    v_mul_u32_u24 v76, 3072, v76
    v_add_u32 v76, v76, v77
    s_waitcnt lgkmcnt(0)
    """)
    for i in range(10): a(f"buffer_load_dwordx4 {vr(20+4*i,4)}, v76, s[12:15], s36 offen\ns_add_u32 s36, s36, {8*3072}")
    a("P0_issued:")

def phase0_finish(a):
    a(f"""
    s_cmp_ge_u32 s31, 2
    s_cbranch_scc1 P0_fcols
    s_mov_b32 s37, 0xffff0000
    """)
    for r in range(10): a(f"v_lshlrev_b32 v{40+2*r}, 16, v{20+r}\nv_and_b32 v{41+2*r}, s37, v{20+r}")
    def unp(r, t): a(f"v_lshlrev_b32 v{t}, 16, v{r}\nv_and_b32 v{t+1}, s37, v{r}")
    for r in range(5): unp(30 + r, 20 + 2*r)
    for r in range(4): unp(35 + r, 72 + 2*r)
    unp(39, 30)
    U = [40 + 2*i for i in range(10)] + [20 + 2*i for i in range(6)] + [72 + 2*i for i in range(4)]
    a(f"v_pk_add_f32 v[68:69], {vr(U[0],2)}, {vr(U[1],2)}\nv_pk_add_f32 v[70:71], {vr(U[2],2)}, {vr(U[3],2)}")
    for i in range(4, 20, 2):
        a(f"v_pk_add_f32 v[68:69], v[68:69], {vr(U[i],2)}\nv_pk_add_f32 v[70:71], v[70:71], {vr(U[i+1],2)}")
    a("v_pk_add_f32 v[68:69], v[68:69], v[70:71]\nv_add_f32 v68, v68, v69")
    for ror in (8, 4, 2, 1): dpp_add(a, 68, 68, ror)
    a("v_mul_f32 v68, 0x3acccccd, v68")
    for i in range(20): a(f"v_pk_add_f32 {vr(U[i],2)}, {vr(U[i],2)}, v[68:69] op_sel_hi:[1,0] neg_lo:[0,1] neg_hi:[0,1]")
    a(f"v_pk_mul_f32 v[70:71], {vr(U[0],2)}, {vr(U[0],2)}\nv_pk_mul_f32 v[32:33], {vr(U[1],2)}, {vr(U[1],2)}")
    for i in range(2, 20, 2):
        a(f"v_pk_fma_f32 v[70:71], {vr(U[i],2)}, {vr(U[i],2)}, v[70:71]\nv_pk_fma_f32 v[32:33], {vr(U[i+1],2)}, {vr(U[i+1],2)}, v[32:33]")
    a("v_pk_add_f32 v[70:71], v[70:71], v[32:33]\nv_add_f32 v69, v70, v71")
    for ror in (8, 4, 2, 1): dpp_add(a, 69, 69, ror)
    a(f"""
    v_mov_b32 v70, 0x3727c5ac
    v_fmac_f32 v70, 0x3acccccd, v69
    v_rsq_f32 v69, v70
    v_lshlrev_b32 v65, 3, v65
    v_cmp_eq_u32 vcc, 0, v66
    s_and_saveexec_b64 s[48:49], vcc
    s_nop 1
    buffer_store_dwordx2 v[68:69], v65, s[16:19], 0 offen sc1
    s_mov_b64 exec, -1
    s_branch P0_done
    P0_fcols:
    s_cmp_ge_u32 s2, 216
    s_cbranch_scc1 P0_done
    v_and_b32 v68, 15, v60
    v_and_b32 v69, 1, v60
    v_lshlrev_b32 v69, 4, v69
    v_mov_b32 v70, 0x3f80
    v_lshlrev_b32 v69, v69, v70
    v_lshrrev_b32 v68, 1, v68
    """)
    for q in range(4): a(f"v_cmp_eq_u32 vcc, {q}, v68\ns_nop 1\nv_cndmask_b32 v{64+q}, 0, v69, vcc")
    a("s_nop 1")
    for i in range(10):
        a(f"v_mfma_f32_16x16x32_bf16 v[68:71], v[64:67], {vr(20+4*i,4)}, {'0' if i == 0 else 'v[68:71]'}")
    a(f"""
    s_mul_i32 s36, s34, {3456*4}
    s_lshl_b32 s35, s33, 8
    s_add_u32 s36, s36, s35
    s_add_u32 s36, s36, {WS_COLS}
    v_and_b32 v76, 7, v60
    v_lshlrev_b32 v76, 5, v76
    v_and_b32 v77, 16, v60
    v_add_u32 v76, v76, v77
    v_and_b32 v77, 40, v60
    """)
    for q in range(4): dpp_add(a, 72+q, 68+q, 8)
    a(f"""
    v_cmp_eq_u32 vcc, 0, v77
    s_and_saveexec_b64 s[48:49], vcc
    s_nop 1
    buffer_store_dwordx4 v[72:75], v76, s[16:19], s36 offen sc1
    s_mov_b64 exec, -1
    P0_done:
    """)

def l2_prefetch(a):
    a(f"""
    s_lshr_b32 s46, s2, 3               ; idx
    s_cmp_ge_u32 s31, 2
    s_cbranch_scc1 PF_w
    s_and_b32 s47, s2, 1
    s_lshl_b32 s47, s47, 5
    s_add_u32 s47, s47, s46
    s_mul_i32 s47, s47, {32*1280}
    v_and_b32 v20, 31, v60
    v_mul_u32_u24 v20, 1280, v20
    v_lshrrev_b32 v21, 5, v60
    s_lshl_b32 s48, s31, 1
    s_add_u32 s48, s48, s32
    s_add_u32 s48, s48, 2
    v_add_u32 v21, s48, v21
    """)
    for j in range(2):
        a(f"""
        v_add_u32 v22, {4*j}, v21
        v_subrev_u32 v23, 10, v22
        v_min_u32 v22, v22, v23
        v_lshl_add_u32 v22, v22, 7, v20
        buffer_load_dword v{16+j}, v22, s[4:7], s47 offen
        """)
    a(f"""
    buffer_load_dword v18, v22, s[4:7], s47 offen
    s_branch PF_x
    PF_w:
    s_lshr_b32 s47, s29, 1              ; pair
    s_add_u32 s48, s32, 2
    s_cmp_eq_u32 s31, 3
    s_cbranch_scc1 PF_w1
    s_mul_i32 s47, s47, 320
    s_and_b32 s47, s47, 0xffffff80
    s_mul_i32 s46, s46, {2*3840}
    s_add_u32 s47, s47, s46
    """)
    for j in range(3):
        a(f"""
        v_add_u32 v20, {64*j}, v60
        v_min_u32 v20, 143, v20
        v_mul_u32_u24 v21, 57, v20
        v_lshrrev_b32 v21, 9, v21           ; r = n / 9
        v_mul_u32_u24 v22, 9, v21
        v_sub_u32 v20, v20, v22             ; l
        v_mul_u32_u24 v22, 11, v20
        v_lshrrev_b32 v22, 5, v22           ; seg = l / 3
        v_mul_u32_u24 v22, {1280 - 384}, v22
        v_lshl_add_u32 v20, v20, 7, v22
        v_lshrrev_b32 v22, 1, v21
        v_add_u32 v22, s48, v22
        v_subrev_u32 v23, 10, v22
        v_min_u32 v22, v22, v23             ; chunk
        v_and_b32 v21, 1, v21
        v_lshl_add_u32 v21, v22, 6, v21
        v_mad_u32_u24 v20, v21, v24, v20
        buffer_load_dword v{16+j}, v20, s[8:11], s47 offen
        """.replace("v_add_u32 v20, 0, v60", "v_mov_b32 v24, 3840\nv_mov_b32 v20, v60"))
    a(f"""
    s_branch PF_x
    PF_w1:
    s_mul_i32 s46, s46, {2*3072}
    s_lshl_b32 s49, s47, 9
    s_add_u32 s46, s46, s49
    s_lshl_b32 s47, s47, 8
    s_sub_u32 s47, {2048 - 512}, s47
    v_mov_b32 v24, 3072
    """)
    for j in range(2):
        a(f"""
        v_add_u32 v20, {64*j}, v60
        v_min_u32 v20, 95, v20
        v_mul_u32_u24 v21, 43, v20
        v_lshrrev_b32 v21, 8, v21           ; r = n / 6
        v_mul_u32_u24 v22, 6, v21
        v_sub_u32 v20, v20, v22             ; l
        v_lshrrev_b32 v22, 2, v20
        v_mul_u32_u24 v22, s47, v22
        v_lshl_add_u32 v20, v20, 7, v22
        v_lshrrev_b32 v22, 1, v21
        v_add_u32 v22, s48, v22
        v_subrev_u32 v23, 10, v22
        v_min_u32 v22, v22, v23             ; chunk
        v_and_b32 v21, 1, v21
        v_lshl_add_u32 v21, v22, 6, v21
        v_mad_u32_u24 v20, v21, v24, v20
        buffer_load_dword v{16+j}, v20, s[12:15], s46 offen
        """)
    a("buffer_load_dword v18, v20, s[12:15], s46 offen\nPF_x:")

def code_touch(a, L):
    a(f"""
    s_getpc_b64 s[46:47]
    {L}_pc:
    s_sub_u32 s46, s46, {L}_pc-{NAME}_kernel
    s_subb_u32 s47, s47, 0
    s_lshr_b32 s44, s2, 3
    s_lshl_b32 s44, s44, 2
    s_add_u32 s44, s44, s31
    s_lshl_b32 s44, s44, 9
    v_and_b32 v13, 3, v60
    v_lshl_add_u32 v13, v13, 7, s44
    v_min_u32 v13, F_end-{NAME}_kernel, v13
    global_load_dword v79, v13, s[46:47]
    """)

def flag_addrs(a):
    a(f"""
    s_lshl_b32 s50, s28, 11
    s_lshl_b32 s55, s30, 3
    s_add_u32 s55, s55, s29
    s_lshl_b32 s55, s55, 7
    s_add_u32 s50, s50, s55
    s_add_u32 s50, s50, {FL_H}
    s_lshl_b32 s51, s29, 11
    s_lshl_b32 s55, s28, 7
    s_add_u32 s51, s51, s55
    s_add_u32 s51, s51, {FL_KV}
    s_lshl_b32 s52, s28, 10
    s_lshl_b32 s55, s29, 7
    s_add_u32 s52, s52, s55
    s_add_u32 s52, s52, {FL_O}
    s_cmp_eq_u32 s30, 1
    s_cselect_b32 s51, s52, s51
    s_lshr_b32 s54, s2, 4
    s_lshl_b32 s54, s54, 7
    s_and_b32 s55, s2, 15
    s_lshl_b32 s55, s55, 2
    s_add_u32 s54, s54, s55
    s_add_u32 s54, s54, {FL_S}
    """)

def compute(a, typ):
    L = f"F_c{typ}"
    nh = 2 if typ == 0 else 4
    a(f"{L}:\ns_barrier")
    stamp(a, 1)
    for r in tile_reads(typ, 0, SET[0]): a(r)
    a(f"{L}_loop:")
    for s in range(4):
        if s < 3:
            a("s_waitcnt lgkmcnt(0)")
            fill = tile_reads(typ, s + 1, SET[(s + 1) % 2])
            if s == 2:
                fill += [f"s_cmp_eq_u32 s42, 2", f"s_cselect_b32 s41, {-2*SLOT}, s45", "s_add_u32 s42, s42, 1", "s_cmp_eq_u32 s42, 3", "s_cselect_b32 s42, 0, s42", "s_bitcmp1_b32 s57, s40"]
        else:
            a(f"s_cbranch_scc1 {L}_it2\ns_waitcnt lgkmcnt(0)\ns_barrier\n{L}_it2r:")
            rd = tile_reads(typ, 0, SET[0])
            up = lambda r: f"v_add_u32 v{r}, s41, v{r}"
            fill = [up(XA), up(QA)] + rd[:3] + [up(HA + i) for i in range(nh)] + rd[3:6] + [up(XA + 1), up(XA + 2), up(XA + 3)] + rd[6:]
            fill += ["s_add_u32 s40, s40, 1", "s_cmp_lt_u32 s40, 10"]
        mfma_step(a, SET[s % 2], fill)
    a(f"s_cbranch_scc1 {L}_loop")
    if OPT['prio']: a("s_setprio 3")
    stamp(a, 2)
    fill = [f"ds_read_b32 v{RSTD}, v{RSTD}"]
    BD = 16
    bdr = {}
    order = [(0,0),(1,0),(0,1),(1,1),(2,2),(0,2),(1,2),(2,3),(1,3),(2,4),(1,4)]
    for n, (T, u) in enumerate(order):
        bdr[(T, u)] = BD + 4*n
        for uu in range(2): fill.append(f"ds_read_b64_tr_b16 {vr(BD+4*n+2*uu,2)}, v{BDA} offset:{(8*u+4*uu)*96 + T*32}")
    a("s_waitcnt lgkmcnt(0)")
    def hflag():
        a("s_waitcnt vmcnt(0)")
        arrive(a, C_H)
        a(f"s_cmp_eq_u32 s47, 3\ns_cbranch_scc0 {L}_nohf")
        flag_store(a, "s50")
        if typ == 1 and OPT['bp']:
            p2_ids(a, "s33", "s34")
            a(f"s_lshr_b32 s33, s33, 1\ns_lshl_b32 s33, s33, 11\ns_add_u32 s33, s33, {FL_H}\ns_mov_b64 s[34:35], 0xff00")
            poll(a, "s33", "s[34:35]", 60)
            setword(a, W_H)
        a(f"{L}_nohf:")
    hfirst = typ == 1 and OPT['bf']
    k = 0
    for n, t in enumerate([3, 4, 5, 6, 0, 1, 2] if hfirst else range(7)):
        acc = vr(ACC + 16*t, 16)
        a(f"v_mfma_f32_32x32x16_bf16 {acc}, {vr(SET[0]+4+4*t,4)}, {vr(SET[0],4)}, {acc}")
        for x in fill[4*n:4*n+4]: a(x)
    BF = 112; P = 64
    cv = [f"v_cvt_pk_bf16_f32 v{BF+i}, v{ACC+2*i}, v{ACC+2*i+1}" for i in range(20)]
    if not hfirst:
        for x in cv: a(x)
        a("s_waitcnt lgkmcnt(0)\ns_barrier")
    hb = ACC + (80 if typ == 0 else 48)
    npair = 4 if typ == 0 else 8
    va = [f"v_mul_f32 v12, {LOG2E}, v{RSTD}", f"v_mul_f32 v14, v{RSTD}, v{RSTD}"]
    for m in range(npair):
        b = hb + 8*m
        for i in range(8): va.append(f"v_max_f32 v{b+i}, 0, v{b+i}")
        for i in range(4): va.append(f"v_pk_mul_f32 {vr(136+2*i,2)}, {vr(b+2*i,2)}, v[14:15] op_sel_hi:[1,0]")
        for i in range(4): va.append(f"v_pk_mul_f32 {vr(b+2*i,2)}, {vr(136+2*i,2)}, {vr(b+2*i,2)}")
        for i in range(4): va.append(f"v_cvt_pk_bf16_f32 v{b+i}, v{b+2*i}, v{b+2*i+1}")
        va.append(f"buffer_store_dwordx4 {vr(b,4)}, v15, s[16:19], s43 offen offset:{(m>>1)*1024 + (m&1)*512} sc1")
    if OPT['gh'] == 2 or (OPT['gh'] == 3 and typ == 0): va.append(f"v_mov_b32 v1, 1\nv_mov_b32 v2, {W_O}\ns_mov_b64 exec, 1\nds_add_u32 v2, v1\ns_mov_b64 exec, -1")
    if hfirst:
        a("s_waitcnt lgkmcnt(15)")
        for x in va[:23]: a(x)
        a("s_waitcnt lgkmcnt(0)\ns_barrier")
        for x in va[23:] + cv + ["s_nop 1"]: a(x)
        va = []
        if OPT['hb2']: hflag()
    if typ == 0:
        vb = ACC + 40
        for i in range(20):
            va += [f"v_pk_mul_f32 {vr(vb+2*i,2)}, {vr(vb+2*i,2)}, {vr(RSTD,2)} op_sel_hi:[1,0]", f"v_cvt_pk_bf16_f32 v{vb+i}, v{vb+2*i}, v{vb+2*i+1}"]
        for i in range(5): va.append(f"ds_write_b128 v8, {vr(vb+4*i,4)} offset:{320+16*i}")
        va += ["v_mov_b32 v2, 0x3f80", "v_mov_b32 v3, 0", "ds_write_b64 v0, v[2:3] offset:480"]
    k = 0
    seen = set()
    for n, (T, u) in enumerate(order):
        d = vr(P + 16*T, 16)
        a(f"v_mfma_f32_32x32x16_bf16 {d}, {vr(bdr[(T,u)],4)}, {vr(BF+4*u,4)}, {d if T in seen else '0'}")
        seen.add(T)
        if n >= 2:
            for _ in range(6):
                if k < len(va): a(va[k]); k += 1
    while k < len(va): a(va[k]); k += 1
    stamp(a, 3)
    if typ == 0:
        if OPT['hfa']: hflag()
        softmax(a, P, ACC, list(range(16, 26)), list(range(26, 36)))
        if not OPT['hfa']: hflag()
        for i in range(5): a(f"ds_write_b128 v9, {vr(16+4*i,4)} offset:{16*i}")
        if OPT['ek'] == 3: early_flag(a)
        softmax(a, P + 20, ACC + 20, list(range(36, 46)), list(range(46, 56)))
        stamp(a, 4)
        if OPT['ek'] == 4: early_flag(a)
        for i in range(5, 10): a(f"ds_write_b128 v9, {vr(16+4*i,4)} offset:{16*i}")
        signal(a, C_PV)
        dstamp(a, 1)
        spin(a, C_PV, 4)
        if OPT['ek'] == 1: early_flag(a)
        dstamp(a, 2)
        for st in range(8):
            for u in range(2):
                off = u*4*PV_PITCH + st*16*PV_PITCH
                a(f"ds_read_b64_tr_b16 {vr(64+12*st+2*u,2)}, v61 offset:{off}\nds_read_b64_tr_b16 {vr(68+12*st+2*u,2)}, v61 offset:{off+40}\nds_read_b64_tr_b16 {vr(72+12*st+2*u,2)}, v62 offset:{off}")
            if st >= 2:
                a("s_waitcnt lgkmcnt(12)")
                for sg in range(2):
                    d = vr(160 + 16*sg, 16)
                    a(f"v_mfma_f32_32x32x16_bf16 {d}, {vr(64+12*(st-2)+4*sg,4)}, {vr(72+12*(st-2),4)}, {'0' if st == 2 else d}")
        for st in range(6, 8):
            a(f"s_waitcnt lgkmcnt({42-6*st})")
            for sg in range(2):
                d = vr(160 + 16*sg, 16)
                a(f"v_mfma_f32_32x32x16_bf16 {d}, {vr(64+12*st+4*sg,4)}, {vr(72+12*st,4)}, {d}")
        dstamp(a, 3)
        if OPT['ek'] == 2: early_flag(a)
        a("s_mov_b32 exec_lo, 0x1fffff\ns_mov_b32 exec_hi, 0x1fffff\ns_nop 7\ns_nop 2")
        for sg in range(2):
            for i in range(4): a(f"v_cvt_pk_bf16_f32 v{200+4*sg+i}, v{160+16*sg+2*i}, v{161+16*sg+2*i}")
            for i in range(2): a(f"v_cvt_pk_bf16_f32 v{208+2*sg+i}, v{168+16*sg+2*i}, v{169+16*sg+2*i}")
            a(f"buffer_store_dwordx4 {vr(200+4*sg,4)}, v63, s[16:19], s56 offen offset:{672*sg} sc1")
        a("s_mov_b32 exec_hi, 0")
        a(f"buffer_store_dwordx4 v[208:211], v63, s[16:19], s56 offen offset:1344 sc1")
        a("s_mov_b64 exec, -1\ns_branch F_fin")
    else:
        if OPT['hfb'] and not OPT['hb2']: hflag()
        else: a('s_nop 7\ns_nop 3')
        for hh in range(2):
            o = 16 + 20*hh
            softmax(a, P + 20*hh, ACC + 20*hh, [o+i for i in range(8)] + [o+16, o+17], [o+8+i for i in range(8)] + [o+18, o+19])
            if hh == 0 and not OPT['hfb']: hflag()
        stamp(a, 4)
        otask(a)
    a(f"""
    {L}_it2:
    s_cmp_eq_u32 s40, {OPT['cl']}
    s_cbranch_scc1 {L}_it0
    s_cmp_eq_u32 s40, {OPT['ct']}
    s_cbranch_scc1 {L}_itc
    s_cmp_eq_u32 s40, 1
    s_cbranch_scc1 {L}_it1
    v_mov_b32 v13, {W_N}
    ds_read_b32 v12, v13
    s_waitcnt vmcnt(0) lgkmcnt(0)
    s_barrier
    v_readfirstlane_b32 {NC}, v12
    s_cmp_eq_u32 s31, 0
    s_cbranch_scc0 {L}_it2r
    v_mov_b32 v13, 0
    s_mov_b64 exec, 1
    buffer_store_dword v12, v13, s[16:19], s54 offen sc1
    s_mov_b64 exec, -1
    s_branch {L}_it2r
    {L}_it0:
    s_waitcnt vmcnt(0)
    """)
    assert OPT['cl'] > OPT['ct'] > 2
    if typ == 0:
        a("""
        v_lshlrev_b32 v13, 4, v60
        buffer_store_dwordx4 v[16:19], v13, s[16:19], s56 offen sc1
        v_cmp_gt_u32 vcc, 41, v60
        s_mov_b64 exec, vcc
        buffer_store_dwordx4 v[16:19], v13, s[16:19], s56 offen offset:1024 sc1
        s_mov_b64 exec, -1
        """)
    a(f"{L}_itx:\ns_waitcnt lgkmcnt(0)\ns_barrier\ns_branch {L}_it2r\n{L}_it1:")
    a(f"s_waitcnt vmcnt({1 if OPT['ct'] == 0 else 0})\ns_call_b64 s[58:59], P0_fin\ns_branch {L}_itx\n{L}_itc:")
    code_touch(a, L)
    a(f"s_branch {L}_itx")

def addr_setup(a, typ):
    nh = 2 if typ == 0 else 4
    a(f"""
    v_mul_u32_u24 v{QA}, {QP[typ]}, v61
    v_mul_u32_u24 v14, {QP[typ]//2}, v62
    v_lshlrev_b32 v15, 3, v63
    v_add3_u32 v{QA}, v{QA}, v14, v15
    v_add_u32 v{QA}, {QB + SLOT}, v{QA}
    v_lshlrev_b32 v{HA}, {7 if typ == 0 else 8}, v61
    v_and_b32 v14, 16, v60
    v_lshlrev_b32 v14, 1, v14
    v_lshl_add_u32 v14, v62, 4, v14
    v_and_b32 v15, 2, v60
    v_lshl_add_u32 v14, v15, 2, v14
    v_add_u32 v{HA}, v{HA}, v14
    v_add_u32 v{HA}, {HB[typ] + SLOT}, v{HA}
    """)
    if typ == 0: a(f"v_and_b32 v14, 8, v60\nv_lshl_add_u32 v{HA}, v14, 3, v{HA}")
    else:        a(f"v_and_b32 v14, 12, v60\nv_lshl_add_u32 v{HA}, v14, 4, v{HA}")
    for i in range(1, nh): a(f"v_xor_b32 v{HA+i}, {64*i}, v{HA}")
    a(f"""
    s_lshl_b32 s43, s28, 3
    s_lshl_b32 s44, s31, 1
    s_add_u32 s43, s43, s44
    s_mul_i32 s43, s43, {68*1024}
    s_mul_i32 s56, s29, 2560
    s_add_u32 s56, s56, s43
    s_add_u32 s56, s56, {WS_A2 + 192*256}
    s_lshl_b32 s44, s29, {11 if typ == 0 else 12}
    s_add_u32 s43, s43, s44
    s_add_u32 s43, s43, {WS_A2 + (32*1024 if typ == 0 else 0)}
    v_and_b32 v15, 16, v60
    v_mul_u32_u24 v15, {68*64}, v15
    v_and_b32 v13, 15, v60
    v_lshl_add_u32 v15, v13, 4, v15
    v_and_b32 v13, 32, v60
    v_lshl_add_u32 v15, v13, 3, v15
    v_mov_b32 v16, -1
    v_mov_b32 v17, -1
    v_mov_b32 v18, -1
    v_mov_b32 v19, -1
    """)
    if typ == 0:
        a(f"""
        v_and_b32 v0, 31, v60
        s_lshl_b32 s44, s31, 5
        v_lshrrev_b32 v13, 5, v60
        v_mul_u32_u24 v63, 336, v13
        v_lshl_add_u32 v63, v0, 4, v63
        v_add_u32 v0, s44, v0
        v_mul_u32_u24 v0, {PV_PITCH}, v0
        v_add_u32 v0, {PVB}, v0
        v_mul_u32_u24 v13, 80, v13
        v_add_u32 v8, v0, v13
        v_add_u32 v9, v8, v13
        v_mul_u32_u24 v72, {PV_PITCH}, v61
        v_add_u32 v72, {PVB}, v72
        v_bfe_u32 v73, v60, 1, 1
        v_lshl_add_u32 v73, v62, 1, v73     ; fmap for pc<4
        v_and_b32 v74, 16, v60
        v_cmp_eq_u32 vcc, 0, v74
        s_mul_i32 s44, s31, 80
        s_and_b32 s46, s31, 1
        v_cndmask_b32 v73, 4, v73, vcc
        v_lshl_add_u32 v61, v73, 3, v72
        v_add_u32 v61, s44, v61
        v_add_u32 v73, s46, v73
        v_cmp_eq_u32 vcc, 5, v73
        s_mul_i32 s44, s31, 40
        s_add_u32 s44, s44, 320
        v_cndmask_b32 v73, v73, 0, vcc
        v_lshl_add_u32 v73, v73, 3, s44
        v_and_b32 v74, 19, v60
        v_cmp_lt_u32 vcc, 16, v74
        v_mov_b32 v75, 480
        s_lshl_b32 s56, s29, 2
        s_add_u32 s56, s56, s31             ; head
        v_cndmask_b32 v73, v73, v75, vcc
        v_add_u32 v62, v73, v72             ; B address
        s_lshl_b32 s56, s56, 4
        s_add_u32 s56, s56, s28
        s_mul_i32 s56, s56, 1792
        s_add_u32 s56, s56, {WS_KVP}
        """)

def otask(a):
    for i in range(4*OPT['so']): a(f"v_mov_b32 v{64+i}, -1")
    for p in range(0, 10*OPT['so'], 2): a(f"buffer_store_dwordx4 v[64:67], v15, s[16:19], s56 offen offset:{256*p} sc1")
    for hh in range(2):
        for sg in range(2):
            for q in range(4): a(f"v_permlane32_swap_b32 v{16+20*hh+8*sg+q}, v{20+20*hh+8*sg+q}")
    a(f"""
    v_lshrrev_b32 v3, 4, v60
    v_mul_u32_u24 v4, 1792, v3
    v_and_b32 v5, 15, v60
    v_lshl_add_u32 v4, v5, 4, v4
    v_lshlrev_b32 v12, 7, v5
    s_lshl_b32 s45, s29, 11
    s_add_u32 s45, s45, {FL_KV}
    s_lshl_b32 s33, s29, 2
    s_add_u32 s33, s33, s31
    s_mul_i32 s33, s33, {16*1792}
    s_add_u32 s33, s33, {WS_KVP}
    v_and_b32 v6, 1, v60
    v_lshlrev_b32 v6, 4, v6
    v_mov_b32 v7, 0x3f80
    v_lshlrev_b32 v6, v6, v7
    v_lshrrev_b32 v7, 1, v5
    """)
    for q in range(4): a(f"v_cmp_eq_u32 vcc, {q}, v7\ns_nop 1\nv_cndmask_b32 v{56+q}, 0, v6, vcc")
    a(f"""
    s_mul_i32 s34, s31, 1792
    s_add_u32 s34, s34, {L_STG}
    v_lshlrev_b32 v5, 4, v5
    v_bfe_u32 v6, v60, 4, 1
    v_lshl_add_u32 v5, v6, 3, v5
    v_add_u32 v5, s34, v5
    v_and_b32 v6, 31, v60
    v_min_u32 v6, 20, v6
    v_lshrrev_b32 v7, 5, v60
    v_mul_u32_u24 v8, 336, v7
    v_lshlrev_b32 v6, 4, v6
    v_add_u32 v6, {L_STG}, v6
    v_add_u32 v8, v8, v6
    v_add_u32 v6, 1344, v6
    v_mov_b32 v9, {L_BD + 2*3840 + 1024}
    v_cmp_gt_u32 vcc, 32, v60
    v_add_u32 v10, {2*1792}, v6
    s_mov_b32 s38, 0x01ff01ff
    s_mov_b32 s39, 0x01ff01ff
    v_cndmask_b32 v6, v9, v6, vcc
    v_cndmask_b32 v10, v10, v9, vcc
    s_cmp_eq_u32 s31, 0
    s_cbranch_scc0 F_o1w
    s_mov_b32 s48, 0
    s_mov_b64 exec, 0xffff
    F_o1:
    buffer_load_dword v3, v12, s[16:19], s45 offen sc1
    s_add_u32 s48, s48, 1
    s_waitcnt vmcnt(0)
    v_cmp_eq_u32 vcc, {NC}, v3
    s_mov_b32 s47, 3
    s_cmp_ge_u32 s48, {TMO}
    s_cbranch_scc1 F_o1x
    s_and_b32 s36, vcc_lo, 0xff
    s_cmp_eq_u32 s36, 0xff
    s_cselect_b32 s47, 1, 0
    s_cmp_ge_u32 vcc_lo, 0xff00
    s_cselect_b32 s36, 2, 0
    s_or_b32 s47, s47, s36
    s_cbranch_scc0 F_o1
    F_o1x:
    v_mov_b32 v1, s47
    v_mov_b32 v2, {W_KV}
    ds_write_b32 v2, v1
    s_mov_b64 exec, -1
    s_branch F_o1y
    F_o1w:
    """)
    spin(a, W_KV, 1)
    a(f"""
    F_o1y:
    s_mov_b32 s34, s47
    s_cmp_eq_u32 s47, 2
    s_cselect_b32 s35, {8*1792}, 0
    s_add_u32 s36, s33, s35
    s_xor_b32 s35, s35, {8*1792}
    s_add_u32 s35, s33, s35
    s_add_u32 s37, s36, {4*1792}
    s_add_u32 s44, s35, {4*1792}
    """)
    stamp(a, 5)
    LD = 140
    def loads(h, s0, s1):
        for i in range(2):
            for g in range(7): a(f"buffer_load_dwordx4 {vr(LD+4*(14*h+7*i+g),4)}, v4, s[16:19], {(s0, s1)[i]} offen offset:{256*g} sc1")
    def verify(h, L):
        r = [LD + 4*(14*h+7*i+g) + 3 for i in range(2) for g in range(6)]
        a(f"v_max3_u32 v11, v{r[0]}, v{r[1]}, v{r[2]}\nv_max3_u32 v13, v{r[3]}, v{r[4]}, v{r[5]}")
        a(f"v_max3_u32 v11, v11, v{r[6]}, v{r[7]}\nv_max3_u32 v13, v13, v{r[8]}, v{r[9]}\nv_max3_u32 v11, v11, v{r[10]}, v{r[11]}")
        a(f"""
        v_max_u32 v14, v{LD+4*(14*h+6)+3}, v{LD+4*(14*h+13)+3}
        v_max_u32 v11, v11, v13
        v_cmp_eq_u32 s[46:47], -1, v14
        v_cmp_eq_u32 vcc, -1, v11
        s_add_u32 s49, s49, 1
        s_and_b64 s[46:47], s[46:47], s[38:39]
        s_or_b64 vcc, vcc, s[46:47]
        s_cmp_ge_u32 s49, {TMO}
        s_cselect_b64 vcc, 0, vcc
        s_cbranch_vccnz {L}
        """)
    a("s_mov_b32 s49, 0\nF_o2:")
    loads(0, "s36", "s37")
    a(f"""
    s_cmp_eq_u32 s34, 3
    s_cbranch_scc1 F_o3x
    s_cmp_eq_u32 s31, 0
    s_cbranch_scc0 F_o3w
    s_mov_b64 s[40:41], 0xffff
    """)
    if OPT['k2'] == 1:
        a("s_and_b32 s40, s34, 1\ns_lshl_b32 s40, s40, 10\ns_add_u32 s45, s45, s40")
        spoll(a, "s45", [40, 41, 42, 43, 46, 47, 57, 58])
    else: poll(a, "s45", "s[40:41]", 60)
    a(f"v_mov_b32 v1, 1\nv_mov_b32 v2, {W_K2}\nds_write_b32 v2, v1\ns_branch F_o3x\nF_o3w:")
    spin(a, W_K2, 1)
    a("F_o3x:\ns_mov_b32 s34, 3")
    dstamp(a, 1)
    loads(1, "s35", "s44")
    for h in range(2):
        a(f"s_waitcnt vmcnt({14 - 14*h})\nF_ov{h}:")
        verify(h, f"F_or{h}")
        for i in range(2):
            for g in range(7):
                d = vr(64 + 4*g, 4)
                a(f"v_mfma_f32_16x16x32_bf16 {d}, v[56:59], {vr(LD+4*(14*h+7*i+g),4)}, {'0' if h + i == 0 else d}")
    a("s_nop 0")
    dstamp(a, 2)
    if OPT['eo'] == 3: early_flag(a)
    a("s_mov_b32 exec_hi, 0")
    for g in range(7):
        a(f"v_cvt_pk_bf16_f32 v{96+2*g}, v{64+4*g}, v{65+4*g}\nv_cvt_pk_bf16_f32 v{97+2*g}, v{66+4*g}, v{67+4*g}\nds_write_b64 v5, {vr(96+2*g,2)} offset:{256*g}")
    signal(a, C_OB)
    spin(a, C_OB, 4)
    if OPT['eo'] == 1: early_flag(a)
    dstamp(a, 3)
    AF = 64
    for hd in range(4):
        for st in range(2): a(f"ds_read_b128 {vr(AF+12*hd+4*st,4)}, v8 offset:{1792*hd + 672*st}")
        a(f"ds_read_b128 {vr(AF+12*hd+8,4)}, v{6 if hd < 2 else 10} offset:{1792*(hd&1)}")
    OD = 128
    pp = [0, 3, 5, 8]
    def norm(hd):
        d = OD + 16*hd
        r = [f"v_add_f32 v{d+12}, 0x358637bd, v{d+12}", f"v_rcp_f32 v{d+12}, v{d+12}", "s_nop 0"]
        for i in range(6): r.append(f"v_pk_mul_f32 {vr(d+2*i,2)}, {vr(d+2*i,2)}, {vr(d+12,2)} op_sel_hi:[1,0]")
        for i in range(4): r.append(f"v_cvt_pk_bf16_f32 v{d+i}, v{d+2*i}, v{d+2*i+1}")
        for i in range(2): r.append(f"v_cvt_pk_bf16_f32 v{112+2*hd+i}, v{d+8+2*i}, v{d+9+2*i}")
        r.append(f"buffer_store_dwordx4 {vr(d,4)}, v15, s[16:19], s56 offen offset:{256*pp[hd]} sc1")
        return r
    q = []
    for up in range(2):
        for st in range(3):
            for hh in range(2):
                hd = 2*up + hh
                if st == 0: a(f"s_waitcnt lgkmcnt({9-3*hd})")
                b = 16 + 20*hh + (8*st + 4*up if st < 2 else 16)
                d = vr(OD + 16*hd, 16)
                a(f"v_mfma_f32_32x32x16_bf16 {d}, {vr(AF+12*hd+4*st,4)}, {vr(b,4)}, {'0' if st == 0 else d}")
                if up == 1 and st == 0 and hh == 1: q = ['s_nop 6'] + norm(0) + norm(1)
                for _ in range(7):
                    if q: a(q.pop(0))
    for x in q: a(x)
    a("s_mov_b32 exec_hi, 0")
    a(f"buffer_store_dwordx4 v[112:115], v15, s[16:19], s56 offen offset:{256*2} sc1\ns_mov_b32 exec_hi, -1\ns_nop 3")
    for x in norm(2) + norm(3): a(x)
    a("s_mov_b32 exec_hi, 0")
    a(f"buffer_store_dwordx4 v[116:119], v15, s[16:19], s56 offen offset:{256*7} sc1")
    if OPT['gb'] == 3: signal(a, W_O)
    if not OPT['so']: a("s_waitcnt vmcnt(0)")
    a("s_mov_b64 exec, -1\ns_branch F_fin")
    for h in range(2):
        a(f"F_or{h}:")
        loads(h, *(("s36", "s37"), ("s35", "s44"))[h])
        a(f"s_waitcnt vmcnt(0)\ns_branch F_ov{h}")

def fin(a):
    a("F_fin:")
    stamp(a, 6)
    if OPT['eo'] == 0 or OPT['ek'] == 0:
        arrive(a, C_O)
        a("s_cmp_eq_u32 s47, 3\ns_cbranch_scc0 F_ot_end")
        if OPT['ek']: a("s_cmp_eq_u32 s30, 1\ns_cbranch_scc0 F_ot_end")
        flag_store(a, "s51")
    else:
        signal(a, C_O)
        a("s_waitcnt lgkmcnt(0)")
    a("F_ot_end:")
    stamp(a, 7)
    stamp_flush(a, 8, 1)
    a("s_endpgm")

def dma(a, base, j, v, srd_, soff):
    a(f"s_add_u32 m0, {base}, {1024*j}\ns_nop 0\nbuffer_load_dwordx4 v{v}, {srd_}, {soff} offen lds")
def issue_head(a):
    a("""
    s_lshl_b32 s34, s32, 7
    s_mul_i32 s35, s32, 245760
    s_mul_i32 s36, s32, 196608
    s_add_u32 s41, s33, s45
    s_add_u32 s42, s33, s46
    s_add_u32 s43, s33, s47
    """)
def issue_tail(a):
    a(f"""
    s_add_u32 s32, s32, 1
    s_cmp_eq_u32 s32, 10
    s_cselect_b32 s32, 0, s32
    s_add_u32 s33, s33, {SLOT}
    s_cmp_eq_u32 s33, {3*SLOT}
    s_cselect_b32 s33, 0, s33
    """)
def first_chunk(a, typ):
    nq = 5 if typ == 0 else 3
    nh = 2 if typ == 0 else 4
    for j in range(nh):
        if j == 0:
            if typ == 0:
                a(f"""
                s_lshl_b32 s37, s31, 4
                v_lshrrev_b32 v3, 3, v60
                v_add_u32 v3, s37, v3               ; row
                v_lshrrev_b32 v4, 2, v60
                v_and_b32 v4, 4, v4
                v_and_b32 v5, 7, v60
                v_xor_b32 v4, v4, v5
                v_mul_u32_u24 v3, 3072, v3
                v_lshl_add_u32 v3, v4, 4, v3
                v_add_u32 v19, s39, v3
                """)
            else:
                a(f"""
                s_lshl_b32 s37, s31, 4
                v_lshrrev_b32 v3, 4, v60
                v_lshlrev_b32 v4, 2, v3
                v_add_u32 v3, s37, v3               ; row
                v_and_b32 v5, 15, v60
                v_xor_b32 v4, v4, v5
                v_mul_u32_u24 v3, 3072, v3
                v_lshl_add_u32 v3, v4, 4, v3
                v_add_u32 v19, s39, v3
                """)
        else:
            a(f"v_add_u32 v{19+j}, {(8 if typ == 0 else 4)*3072*j}, v19")
        dma(a, "s43", j, 19 + j, "s[12:15]", "s36")
    a(f"s_mul_i32 s37, s31, {16*3840}\ns_add_u32 s38, s38, s37")
    for j in range(nq):
        a(f"v_add_u32 v2, {64*j}, v60")
        if typ == 0:
            a(f"""
            v_mul_u32_u24 v3, 3277, v2
            v_lshrrev_b32 v3, 16, v3            ; row
            v_mul_u32_u24 v4, 20, v3
            v_sub_u32 v4, v2, v4                ; pos
            v_mul_u32_u24 v5, 52, v4
            v_lshrrev_b32 v5, 8, v5             ; seg
            v_mul_u32_u24 v3, 3840, v3
            v_lshl_add_u32 v3, v4, 4, v3
            v_and_b32 v6, 1, v5
            v_mul_u32_u24 v6, 1200, v6
            v_lshrrev_b32 v5, 1, v5
            v_mul_u32_u24 v5, 80, v5
            v_add3_u32 v3, v3, v6, s38
            v_sub_u32 v{14+j}, v3, v5
            """)
        else:
            a(f"""
            v_mul_u32_u24 v3, 5462, v2
            v_lshrrev_b32 v3, 16, v3            ; row
            v_mul_u32_u24 v4, 12, v3
            v_sub_u32 v4, v2, v4                ; pos
            v_mul_u32_u24 v5, 43, v4
            v_lshrrev_b32 v5, 8, v5             ; seg
            v_sub_u32 v6, v4, v5
            v_mul_u32_u24 v3, 3840, v3
            v_lshl_add_u32 v3, v6, 4, v3
            v_add_u32 v{14+j}, s38, v3
            """)
        dma(a, "s42", j, 14 + j, "s[8:11]", "s35")

def issue_sub(a):
    a("F_issue:")
    issue_head(a)
    for j in range(4): dma(a, "s41", j, 10 + j, "s[4:7]", "s34")
    for j in range(3): dma(a, "s42", j, 14 + j, "s[8:11]", "s35")
    for j in range(2): dma(a, "s43", j, 19 + j, "s[12:15]", "s36")
    a("s_cmp_eq_u32 s30, 1\ns_cbranch_scc1 F_issue_b")
    for j in range(3, 5): dma(a, "s42", j, 14 + j, "s[8:11]", "s35")
    a("s_branch F_issue_e\nF_issue_b:")
    for j in range(2, 4): dma(a, "s43", j, 19 + j, "s[12:15]", "s36")
    a("F_issue_e:")
    issue_tail(a)
    a("s_setpc_b64 s[56:57]")
CALL = "s_call_b64 s[56:57], F_issue"

def cols_addr(a, typ):
    nql = 40 if typ == 0 else 24
    if typ == 0:
        a(f"""
        v_mul_u32_u24 v2, 26, v60
        v_lshrrev_b32 v2, 8, v2             ; seg
        v_mul_u32_u24 v3, 10, v2
        v_sub_u32 v3, v60, v3               ; w
        v_and_b32 v4, 1, v2
        v_mul_u32_u24 v4, 640, v4
        v_lshrrev_b32 v2, 1, v2
        v_mul_u32_u24 v2, 40, v2
        v_lshl_add_u32 v2, v3, 2, v2
        s_mul_i32 s37, s29, 80
        s_add_u32 s37, s37, 640
        v_add3_u32 v2, v2, v4, s37          ; colQ
        s_lshl_b32 s37, s29, 6
        s_add_u32 s37, s37, {1024 - 4*nql}
        """)
    else:
        a(f"""
        v_mul_u32_u24 v2, 22, v60
        v_lshrrev_b32 v2, 8, v2             ; seg
        v_lshlrev_b32 v2, 1, v2
        v_sub_u32 v2, v60, v2
        s_mul_i32 s37, s29, 80
        v_lshl_add_u32 v2, v2, 2, s37       ; colQ
        s_lshl_b32 s37, s29, 7
        s_sub_u32 s37, s37, {4*nql}
        """)
    a(f"""
    v_lshl_add_u32 v3, v60, 2, s37          ; w1 column
    v_add_u32 v4, 1920, v3
    v_lshlrev_b32 v3, 1, v3
    v_mov_b32 v5, 0x40000000
    v_cmp_gt_u32 vcc, {nql}, v60
    v_mov_b32 v6, {2*SLOT + HB[typ] - 8*nql}
    v_mov_b32 v7, {2*SLOT + QB}
    v_cndmask_b32 v2, v4, v2, vcc
    v_cndmask_b32 v51, v3, v5, vcc
    v_cndmask_b32 v6, v6, v7, vcc
    v_lshl_add_u32 v6, v60, 3, v6           ; A0
    v_mov_b32 v7, {HP[typ]}
    v_mov_b32 v8, {QP[typ]}
    v_cndmask_b32 v7, v7, v8, vcc           ; pitch
    v_mov_b32 v8, 64
    v_cndmask_b32 v8, v8, v56, vcc          ; X
    v_lshlrev_b32 v50, 2, v2
    """)
    for k in range(5):
        xm = ((k >> 1) & 1) if typ == 0 else (k & 3)
        a(f"v_mul_u32_u24 v{40+k}, {xm}, v8\nv_xor_b32 v{40+k}, v{40+k}, v6\nv_mad_u32_u24 v{40+k}, v7, {k}, v{40+k}")

def helper(a):
    a(f"""
    F_helper:
    s_sub_u32 s31, s31, 4
    s_lshl_b32 s37, s28, 7
    s_lshl_b32 s38, s31, 5
    s_add_u32 s37, s37, s38             ; first token row
    v_lshrrev_b32 v2, 3, v60
    v_add_u32 v2, s37, v2
    v_mul_u32_u24 v2, 1280, v2
    v_lshrrev_b32 v3, 4, v60
    v_and_b32 v4, 7, v60
    v_xor_b32 v3, v3, v4
    v_lshl_add_u32 v10, v3, 4, v2
    v_xor_b32 v3, 4, v3
    v_lshl_add_u32 v11, v3, 4, v2
    v_add_u32 v11, {8*1280}, v11
    v_add_u32 v12, {16*1280}, v10
    v_add_u32 v13, {16*1280}, v11
    s_lshl_b32 s45, s31, 12
    s_cmp_eq_u32 s30, 1
    s_cselect_b32 s46, 3072, 5120
    s_cselect_b32 s47, 4096, 2048
    s_cselect_b32 s37, {HB[1]}, 0
    s_cselect_b32 s38, 0, {HB[0]}
    s_mul_i32 s46, s46, s31
    s_add_u32 s46, s46, {QB}
    s_mul_i32 s47, s47, s31
    s_add_u32 s47, s47, s37
    s_add_u32 s47, s47, s38
    s_mov_b32 s33, {SLOT}
    """.replace("s_cselect_b32 s46, 3072, 5120", "s_cselect_b32 s46, 3, 5\ns_lshl_b32 s46, s46, 10\ns_cmp_eq_u32 s30, 1").replace("s_cselect_b32 s47, 4096, 2048", "s_cselect_b32 s47, 4, 2\ns_lshl_b32 s47, s47, 10\ns_cmp_eq_u32 s30, 1"))
    issue_head(a)
    a("s_mul_i32 s38, s29, 160\ns_waitcnt lgkmcnt(0)")
    stamp(a, 1)
    for j in range(4): dma(a, "s41", j, 10 + j, "s[4:7]", "s34")
    a("""
    s_cmp_eq_u32 s30, 1
    s_cbranch_scc1 F_hb
    s_add_u32 s38, s38, 1280
    s_lshl_b32 s39, s29, 7
    s_add_u32 s39, s39, 2048
    """)
    first_chunk(a, 0)
    a("v_mov_b32 v21, v19\nv_mov_b32 v22, v19\ns_branch F_hc\nF_hb:\ns_lshl_b32 s39, s29, 8")
    first_chunk(a, 1)
    a("v_mov_b32 v17, v14\nv_mov_b32 v18, v14\nF_hc:")
    issue_tail(a)
    a(CALL)
    a(f"""
    s_mov_b32 s40, s2
    s_mov_b32 s44, s31
    s_cmp_lt_u32 s31, 2
    s_cselect_b32 s58, 1, 0
    s_cbranch_scc1 F_wt_sel
    s_and_b32 s44, s2, 1
    s_lshr_b32 s40, s2, 1
    s_add_u32 s40, s40, {256 - 112}
    s_cmp_eq_u32 s31, 2
    s_cselect_b32 s58, 1, 0
    s_cmp_ge_u32 s2, 224
    s_cselect_b32 s58, s58, 0
    F_wt_sel:
    s_mul_i32 s49, s31, 5120
    s_add_u32 s49, s49, {L_STG}
    v_mov_b32 v62, 0
    v_mov_b32 v63, 0
    s_cmp_eq_u32 s58, 0
    s_cbranch_scc1 F_wt_skip1
    """)
    t = Asm(); t.nlabel = 900
    wt_task(t, "s40", "s44", "s49", 60, SW2, SWO, "s[16:19]", "FW")
    txt = t.text()
    import re
    remap = {20: 62, 21: 63, 22: 23, 23: 24, 24: 25, 25: 26, 26: 27}
    txt = re.sub(r"\bv(2[0-6])\b", lambda m: f"v{remap[int(m.group(1))]}", txt)
    a(txt)
    a(f"""
    F_wt_skip1:
    s_lshl_b32 s37, s29, 2
    s_add_u32 s37, s37, s31
    s_mul_i32 s37, s37, 800
    v_lshlrev_b32 v2, 3, v60
    buffer_load_dwordx2 v[30:31], v2, s[20:23], s37 offen
    buffer_load_dwordx2 v[32:33], v2, s[20:23], s37 offen offset:512
    v_mov_b32 v56, 0
    v_mov_b32 v57, 0
    v_mov_b32 v58, 0
    v_mov_b32 v59, 0
    s_mul_i32 s37, s31, 2880
    s_add_u32 s37, s37, {L_BD}
    v_lshl_add_u32 v2, v60, 4, s37
    ds_write_b128 v2, v[56:59]
    ds_write_b128 v2, v[56:59] offset:1024
    ds_write_b128 v2, v[56:59] offset:1856
    v_lshlrev_b32 v61, 2, v60
    v_min_u32 v2, 60, v61
    v_add_u32 v2, {L_CNT}, v2
    ds_write_b32 v2, v56
    v_mov_b32 v50, 0
    v_mov_b32 v51, 0
    s_cmp_eq_u32 s31, 3
    s_cbranch_scc0 F_ca2
    s_cmp_eq_u32 s30, 1
    s_cbranch_scc1 F_ca1
    """)
    cols_addr(a, 0)
    a("s_branch F_ca2\nF_ca1:")
    cols_addr(a, 1)
    a(f"""
    F_ca2:
    v_mov_b32 v49, {W_N}
    s_mov_b32 s40, {FL_S}
    s_cmp_eq_u32 s58, 1
    s_cbranch_scc1 F_wt_j1
    s_waitcnt vmcnt(13)
    F_wt_j1:
    s_waitcnt vmcnt(18) lgkmcnt(0)
    s_barrier
    {CALL}
    s_waitcnt vmcnt(13)
    s_barrier
    s_cmp_eq_u32 s58, 0
    s_cbranch_scc1 F_wt_skip2
    """)
    for nt in range(5):
        for u in range(2): a(f"ds_read_b64_tr_b16 {vr(64+4*nt+2*u,2)}, v62 offset:{u*640 + 8*nt}")
    a(f"{CALL}\ns_waitcnt lgkmcnt(0)")
    for nt in range(5):
        a(f"buffer_store_dwordx4 {vr(64+4*nt,4)}, v63, s[16:19], s{54 if nt < 4 else 55} offen offset:{(nt%4)*1024}{SC}")
    a(f"""
    s_waitcnt vmcnt(16)
    s_branch F_wt_j2
    F_wt_skip2:
    s_buffer_load_dword {NC}, {SDBG}, 0
    {CALL}
    s_cmp_eq_u32 s31, 3
    s_cbranch_scc0 F_ng_x
    s_mov_b32 s48, 0
    s_waitcnt lgkmcnt(0)
    s_cmp_eq_u32 {NC}, 0
    s_cbranch_scc0 F_ng_y
    F_ng:
    s_buffer_load_dword {NC}, {SDBG}, 0 glc
    s_add_u32 s48, s48, 1
    s_waitcnt lgkmcnt(0)
    s_cmp_ge_u32 s48, {TMO}
    s_cbranch_scc1 F_ng_y
    s_cmp_eq_u32 {NC}, 0
    s_cbranch_scc1 F_ng
    F_ng_y:
    v_mov_b32 v2, {NC}
    ds_write_b32 v49, v2
    F_ng_x:
    s_waitcnt vmcnt(11) lgkmcnt(0)
    F_wt_j2:
    s_barrier
    """)
    for k in range(3, 7):
        a(CALL)
        if k == 5: a(f"""
    s_sub_u32 s37, s31, 1
    s_lshl_b32 s37, s37, 6
    v_add_u32 v2, s37, v60
    v_and_b32 v2, 127, v2
    v_lshlrev_b32 v45, 3, v2
    v_lshlrev_b32 v46, 7, v2
    v_and_b32 v7, 14, v2
    v_lshl_add_u32 v46, v7, 3, v46
    v_add_u32 v46, {2*SLOT}, v46
    v_xor_b32 v47, 16, v46
    v_lshlrev_b32 v48, 2, v2
    v_add_u32 v48, {L_RSTD}, v48
    v_lshrrev_b32 v61, 2, v60
    v_lshlrev_b32 v61, 7, v61
    v_and_b32 v3, 3, v60
    v_lshl_add_u32 v61, v3, 4, v61
 """)
        a("s_waitcnt vmcnt(11)\ns_barrier")
    a(f"""
    s_cmp_eq_u32 s31, 3
    s_cbranch_scc1 F_pl
    {CALL}
    s_waitcnt vmcnt(11)
    s_branch F_pollx
    F_pl:
    buffer_load_dwordx4 v[36:39], v61, s[16:19], s40 offen sc1
    {CALL}
    s_mov_b32 s48, 0
    s_waitcnt vmcnt(11)
    F_poll:
    v_min3_u32 v2, v36, v37, v38
    v_max3_u32 v3, v36, v37, v38
    v_min_u32 v2, v2, v39
    v_max_u32 v3, v3, v39
    v_cmp_eq_u32 s[38:39], {NC}, v2
    v_cmp_eq_u32 vcc, {NC}, v3
    s_and_b64 vcc, vcc, s[38:39]
    s_add_u32 s48, s48, 1
    s_cmp_ge_u32 s48, {TMO}
    s_cbranch_scc1 F_pollx
    s_cmp_eq_u64 vcc, -1
    s_cbranch_scc1 F_pollx
    buffer_load_dwordx4 v[36:39], v61, s[16:19], s40 offen sc1
    s_waitcnt vmcnt(0)
    s_branch F_poll
    F_pollx:
    s_barrier
    """)
    a(CALL)
    a(f"""
    s_cmp_eq_u32 s31, 3
    s_cbranch_scc1 F_ldc
    s_lshl_b32 s38, s28, 10
    buffer_load_dwordx2 v[64:65], v45, s[16:19], s38 offen sc1
    s_waitcnt vmcnt(12)
    s_branch F_ldx
    F_ldc:
    s_mov_b32 s37, {WS_COLS}
    """)
    for i in range(8): a(f"buffer_load_dwordx4 {vr(64+4*i,4)}, v50, s[16:19], s37 offen sc1\ns_add_u32 s37, s37, {3456*4}")
    a(f"""
    buffer_load_dwordx2 v[52:53], v51, s[24:27], 0 offen
    s_waitcnt vmcnt(20)
    F_ldx:
    s_barrier
    ds_read_b32 v36, v49
    s_and_b32 s37, s31, 1
    s_mul_i32 s37, s37, {20*96 + 40}
    s_lshr_b32 s38, s31, 1
    s_mul_i32 s38, s38, 3840
    s_add_u32 s37, s37, s38
    s_add_u32 s37, s37, {L_BD}
    v_mul_u32_u24 v2, 205, v60
    v_lshrrev_b32 v2, 10, v2
    v_mul_u32_u24 v2, 56, v2
    v_lshl_add_u32 v2, v60, 3, v2
    v_add_u32 v28, s37, v2
    v_add_u32 v3, 64, v60
    v_mul_u32_u24 v2, 205, v3
    v_lshrrev_b32 v2, 10, v2
    v_mul_u32_u24 v2, 56, v2
    v_lshl_add_u32 v2, v3, 3, v2
    v_add_u32 v29, s37, v2
    ds_write_b64 v28, v[30:31]
    v_cmp_gt_u32 vcc, 36, v60
    s_and_saveexec_b64 s[48:49], vcc
    ds_write_b64 v29, v[32:33]
    s_mov_b64 exec, -1
    s_mov_b32 s39, 0xffff0000
    """)
    p2_ids(a, "s28", "s29")
    a("v_mov_b32 v14, v60")
    p2_setup(a, "s31", 14)
    n1, n2 = OPT['w8'], OPT['w8'] + OPT['w9']
    wl = [ldW(i, nt, SC) for i in range(4) for nt in range(5)] + [wdma(0, j, nt) for j in range(2) for nt in range(5)]
    for x in wl[:n1]: a(x)
    p2_epi_addr(a, "s31", 14)
    a(f"""
    s_mul_i32 s37, s31, 5120
    s_add_u32 s57, s31, 1
    s_mul_i32 s58, s57, 20480
    s_lshl_b32 s57, s57, 12
    s_lshr_b32 s55, s28, 1
    s_lshl_b32 s55, s55, 2
    s_add_u32 s55, s55, s31
    s_lshl_b32 s55, s55, 8
    s_add_u32 s55, s55, {FL_O}
    s_waitcnt lgkmcnt(0)
    v_readfirstlane_b32 {NC}, v36
    s_cmp_eq_u32 s31, 3
    s_cbranch_scc1 F_w9
    s_waitcnt vmcnt({1+n1})
    F_w9:
    s_waitcnt vmcnt({9+n1})
    s_barrier
    s_waitcnt vmcnt({n1})
    s_cbranch_scc1 F_prc
    s_cmp_eq_u32 s31, 0
    s_cbranch_scc1 F_prx
    v_rcp_f32 v66, v65
    v_sub_f32 v64, 0, v64
    v_cvt_pk_bf16_f32 v68, v64, v64
    v_and_b32 v67, s39, v68
    v_sub_f32 v64, v64, v67
    v_cvt_pk_bf16_f32 v69, v64, v66
    v_and_b32 v67, s39, v69
    v_sub_f32 v66, v66, v67
    v_cvt_pk_bf16_f32 v70, v66, v56
    v_mov_b32 v71, 0
    ds_write_b128 v46, v[68:71]
    ds_write_b128 v47, v[56:59]
    ds_write_b32 v48, v65
    s_branch F_prx
    F_prc:
    """)
    for i in range(1, 8):
        for q in range(2): a(f"v_pk_add_f32 {vr(64+2*q,2)}, {vr(64+2*q,2)}, {vr(64+4*i+2*q,2)}")
    a("""
    v_cvt_pk_bf16_f32 v70, v64, v65
    v_cvt_pk_bf16_f32 v71, v66, v67
    v_lshlrev_b32 v72, 16, v70
    v_and_b32 v73, s39, v70
    v_lshlrev_b32 v74, 16, v71
    v_and_b32 v75, s39, v71
    v_sub_f32 v64, v64, v72
    v_sub_f32 v65, v65, v73
    v_sub_f32 v66, v66, v74
    v_sub_f32 v67, v67, v75
    v_cvt_pk_bf16_f32 v72, v64, v65
    v_cvt_pk_bf16_f32 v73, v66, v67
    v_cmp_gt_u32 vcc, 56, v60
    s_and_saveexec_b64 s[48:49], vcc
    ds_write_b64 v40, v[70:71]
    ds_write_b64 v41, v[72:73]
    ds_write_b64 v42, v[70:71]
    ds_write_b64 v43, v[52:53]
    ds_write_b64 v44, v[52:53]
    s_mov_b64 exec, -1
    F_prx:
    """)
    for x in wl[n1:n2]: a(x)
    a("v_add_u32 v15, s37, v6\nv_add_u32 v13, 61440, v15\nv_add_u32 v1, 112640, v15\ns_waitcnt lgkmcnt(0)\ns_barrier\ns_barrier")
    if OPT['gh'] == 3:
        a(f"s_mul_i32 s36, s30, {C_H - W_O}\ns_add_u32 s36, s36, {W_O}")
        spin(a, "s36", 4, va=10)
    elif OPT['gh']: spin(a, C_H if OPT['gh'] == 1 else W_O, 4, va=10)
    for x in wl[n2:]: a(x)

def wslot(typ, j): return j*20480 + (128*PV_PITCH if typ == 0 and j >= 2 else 0)
def wdma(typ, j, nt):
    t = f"s_add_u32 m0, s37, {wslot(typ, j) + (4096 if nt == 4 else 0)}\ns_nop 0\n" if nt in (0, 4) else ""
    if nt < 4: return t + f"buffer_load_dwordx4 v6, s[16:19], s33 offen offset:{nt*1024}{NS[OPT['nsw']]} lds"
    return t + f"buffer_load_dwordx4 v7, s[16:19], s33 offen{NS[OPT['nsw']]} lds\ns_add_u32 s33, s33, 20480"

class VM:
    def __init__(self, a): self.a = a; self.q = []
    def issue(self, tag, text): self.a(text); self.q.append(tag)
    def wait(self, tags, extra=""):
        last = max(i for i, t in enumerate(self.q) if t in tags)
        n = len(self.q) - 1 - last
        assert n < 64
        self.a(f"s_waitcnt vmcnt({n}){extra}")
def phase2(a):
    a("F_p2:\ns_cmp_eq_u32 s30, 1\ns_cbranch_scc1 F_p2_1")
    for typ in range(2):
        a(f"F_p2_{typ}:")
        phase2_t(a, typ)
        if typ == 0: a("s_branch F_p2_e")
    a("F_p2_e:")
    stamp(a, 7)
    a("s_waitcnt lgkmcnt(0)\ns_barrier")
    for m in range(3):
        for nt in range(5): a(f"ds_read_b128 {vr(20+20*m+4*nt,4)}, v{10+m} offset:{m*20480 + nt*1024}")
    for m in range(3):
        a(f"s_waitcnt lgkmcnt({10-5*m})")
        for q in range(10): a(f"v_pk_add_f32 {vr(AC2+2*q,2)}, {vr(AC2+2*q,2)}, {vr(20+20*m+2*q,2)}")
    for q in range(10): a(f"v_cvt_pk_bf16_f32 v{AC2+q}, v{AC2+2*q}, v{AC2+2*q+1}")
    a(f"buffer_store_dwordx4 {vr(AC2,4)}, v8, {SOUT}, s34 offen\nbuffer_store_dwordx4 {vr(AC2+4,4)}, v8, {SOUT}, s34 offen offset:16\nbuffer_store_dwordx2 {vr(AC2+8,2)}, v8, {SOUT}, s34 offen offset:32")
    a("s_add_u32 s31, s31, 4")
    stamp_flush(a, 8, 1)
    a("s_endpgm")
    for x in ool: a(x)

ool = []
def phase2_t(a, typ):
    nl = OPT['nlb'] if typ else OPT['nla']
    LA = OPT['la']
    vm = VM(a)
    for i in range(4):
        for nt in range(5): vm.q.append(("W", i))
    for j in range(nl):
        for nt in range(5):
            if j < 2: vm.q.append(("WL", j))
            else: vm.issue(("WL", j), wdma(typ, j, nt))
    stamp(a, 2)
    a(f"s_lshr_b32 s54, s28, 1\ns_lshl_b32 s54, s54, 11\ns_add_u32 s54, s54, {FL_H}\ns_mov_b64 s[38:39], {'0xff00' if OPT['bf'] else '0xffff'}\ns_mov_b64 s[40:41], 0xff")
    if not (typ == 1 and OPT['bp']):
        a(f"s_cmp_eq_u32 s31, 0\ns_cbranch_scc0 F_p2_wait{typ}")
        poll(a, "s54", "s[38:39]", 14, va=10)
        setword(a, W_H, va=10)
    a(f"F_p2_wait{typ}:")
    spin(a, W_H, 1, va=10)
    stamp(a, 3)
    if typ == 0 and OPT['ga']: spin(a, C_O, 4, va=10)
    gate = 4 + nl if typ == 1 and OPT['gb'] else 99
    for i in range(LA):
        for m in range(4): vm.issue(("A", i), ldA(i, m, SC))
    xe = AR + 32
    def lds_rd(i, nt):
        o = wslot(typ, i - 4) + nt*1024
        r, o = (15, o) if o < 61440 else (13, o - 61440) if o < 112640 else (1, o - 112640)
        return f"ds_read_b128 {vr(WR+20*(i%4)+4*nt,4)}, v{r} offset:{o}"
    FS = OPT['fast']
    def xadd():
        vm.wait(["x"])
        a("s_mov_b32 s39, 0xffff0000")
        for q in range(10):
            x = xe + q; b = xe + 10 + q
            t = xe + 20
            a(f"v_lshlrev_b32 v{t}, 16, v{x}\nv_and_b32 v{t+1}, s39, v{x}\nv_lshlrev_b32 v{t+2}, 16, v{b}\nv_and_b32 v{t+3}, s39, v{b}")
            a(f"v_pk_add_f32 {vr(t,2)}, {vr(t,2)}, {vr(t+2,2)}\nv_pk_add_f32 {vr(AC2+2*q,2)}, {vr(AC2+2*q,2)}, {vr(t,2)}")
    def prep():
        a("s_mov_b32 s48, 0")
        for m in range(1, 4):
            a(f"s_sub_u32 s36, s31, {m}\ns_and_b32 s36, s36, 3\ns_mul_i32 s36, s36, 5120\nv_add_u32 v{9+m}, s36, v6")
    def fo_issue():
        a("v_and_b32 v0, 1, v14\nv_lshlrev_b32 v0, 7, v0")
        vm.issue("fo", "buffer_load_dword v0, v0, s[16:19], s55 offen sc1")
    def steps(i0, i1, fast):
      tg = f"{typ}{'f' if fast else ''}"
      for i in range(i0, i1):
        if i == 12 and not fast:
            if not FS: xadd()
            stamp(a, 5)
            if typ == 0: spin(a, C_O, 4, va=10)
            vm.wait(["fo"])
            a(f"v_cmp_eq_u32 vcc, {NC}, v0\ns_cmp_eq_u64 vcc, -1\ns_cbranch_scc1 F_fo{typ}")
            poll(a, "s55", "3", 14, va=10)
            a(f"F_fo{typ}:")
            stamp(a, 6)
            a("s_mov_b32 s56, s32")
            for k in range(12, 17):
                for m in range(4): vm.issue(("A", k), ldA(k, m, SC))
            prep()
        if i == 12 and fast:
            stamp(a, 5)
            if typ == 0: spin(a, C_O, 4, va=10)
            prep()
        if i == gate:
            spin(a, C_O if OPT['gb'] == 2 else W_O, 4, va=10)
            for k in range(gate, gate + 4):
                for nt in range(5): vm.issue(("W", k), ldW(k, nt, SC))
            a("s_mov_b32 s52, s33\ns_add_u32 s33, s33, 5120")
            for nt in range(5): vm.issue(("W", 16), wdma(typ, 3, nt))
            a("s_mov_b32 s33, s52")
        if OPT['bf'] and i == OPT['fa']:
            a("v_and_b32 v12, 7, v14\nv_lshlrev_b32 v12, 7, v12")
            vm.issue("fa", "buffer_load_dword v12, v12, s[16:19], s54 offen sc1")
        if OPT['bf'] and i == 8 - LA:
            vm.wait(["fa"])
            a(f"v_cmp_eq_u32 vcc, {NC}, v12\ns_cmp_eq_u64 vcc, -1\ns_cbranch_scc1 F_fa{typ}")
            poll(a, "s54", "s[40:41]", 14, va=10)
            a(f"F_fa{typ}:")
        ex = ""
        if i == 16: ex = " lgkmcnt(0)"
        if 4 <= i < 4 + nl: ex = f" lgkmcnt({5*(min(i + 3, 3 + nl) - i)})"
        vm.wait([("A", i), ("W", i)] + ([("W", 16)] if i == 12 else []), ex)
        if i == 0: stamp(a, 4)
        if i >= 12 and OPT['so']:
            b = AR + 16*(i % 5)
            a(f"F_v{tg}_{i}:\nv_max3_u32 v0, v{b+3}, v{b+7}, v{b+11}\nv_max_u32 v0, v0, v{b+15}\nv_cmp_eq_u32 vcc, -1, v0\ns_cbranch_vccnz F_r{tg}_{i}\nF_g{tg}_{i}:")
            t = f"F_r{tg}_{i}:\ns_add_u32 s48, s48, 1\ns_cmp_ge_u32 s48, {TMO}\ns_cbranch_scc1 F_g{tg}_{i}\ns_add_u32 s36, s56, {(i-12)*1024}\n"
            for m in range(4): t += f"buffer_load_dwordx4 {vr(b+4*m,4)}, v{2+m}, s[16:19], s36 offen sc1\n"
            ool.append(t + f"s_waitcnt vmcnt(0)\ns_branch F_v{tg}_{i}")
        if i == 16:
            for m in (1, 2, 3, 0):
                for nt in range(5):
                    d = vr(AC2 + 20*m + 4*nt, 4)
                    a(f"v_mfma_f32_16x16x32_bf16 {d}, {vr(WR+20*(i%4)+4*nt,4)}, {vr(AR+16*(i%5)+4*m,4)}, {d}")
                    pm = (m - 1) % 4
                    if pm == 1 and nt == 0: a('s_nop 2')
                    if pm: a(f"ds_write_b128 v15, {vr(AC2+20*pm+4*nt,4)} offset:{(pm-1)*20480 + nt*1024}")
            continue
        for nt in range(5):
            for m in range(4):
                d = vr(AC2 + 20*m + 4*nt, 4)
                a(f"v_mfma_f32_16x16x32_bf16 {d}, {vr(WR+20*(i%4)+4*nt,4)}, {vr(AR+16*(i%5)+4*m,4)}, {'0' if i == 0 else d}")
                if m == 1 and nt < 4:
                    if i + LA < 12: vm.issue(("A", i + LA), ldA(i + LA, nt, SC))
                    elif fast and i + 4 < 17: vm.issue(("A", i + 4), ldA(i + 4, nt, SC))
            if i + 4 < 4 + nl: a(lds_rd(i + 4, nt))
            elif i == 12: a(lds_rd(7, nt).replace(vr(WR+60+4*nt,4), vr(WR+4*nt,4)))
            elif i + 4 < 16 and not (gate <= i + 4 < gate + 4): vm.issue(("W", i + 4), ldW(i + 4, nt, SC))
        if i == 7 and gate == 99:
            a("s_mov_b32 s52, s33\ns_add_u32 s33, s33, 20480")
            for nt in range(5): vm.issue(("W", 16), wdma(typ, 3, nt))
            a("s_mov_b32 s33, s52")
        if i == 11 and not fast: fo_issue()
        if i == 8:
            for k, (n, o) in enumerate(((4, 0), (4, 16), (2, 32))):
                vm.issue("x", f"buffer_load_dwordx{n} {vr(xe+4*k,n)}, v8, s[4:7], s34 offen offset:{o}")
            for k, (n, o) in enumerate(((4, 0), (4, 16), (2, 32))):
                vm.issue("x", f"buffer_load_dwordx{n} {vr(xe+10+4*k,n)}, v9, {SB2}, s35 offen offset:{o}")
        if FS and i == FS - 2: fo_issue()
    if not FS:
        steps(0, 17, False)
        return
    steps(0, FS, False)
    xadd()
    vm.wait(["fo"])
    a(f"v_cmp_eq_u32 vcc, {NC}, v0\ns_cmp_eq_u64 vcc, -1\ns_cbranch_scc1 F_fast{typ}")
    q0 = list(vm.q)
    steps(FS, 17, False)
    a(f"s_branch F_p2_e\nF_fast{typ}:")
    vm.q = q0
    stamp(a, 6)
    a("s_mov_b32 s56, s32")
    for k in range(12, FS + 4):
        for m in range(4): vm.issue(("A", k), ldA(k, m, SC))
    steps(FS, 17, True)

def gen_f1():
    a = Asm()
    stamp(a, 0)
    srd(a, 4, 0, NB_X); srd(a, 8, 8, NB_WQKV); srd(a, 12, 40, NB_W1); srd(a, 16, 88, WS_END); srd(a, 20, 16, NB_WPHI); srd(a, 24, 48, NB_B1)
    srd(a, 60, 56, NB_W2); srd(a, 64, 24, NB_WO); srd(a, 68, 72, NB_X); srd(a, 72, 64, NB_B2); srd(a, 76, 80, 256)
    a(f"""
    s_cmp_ge_u32 s2, 256
    s_cbranch_scc1 F_end
    v_lshrrev_b32 v1, 6, v0
    v_and_b32 v60, 63, v0
    s_and_b32 s33, s2, 7                ; xcd
    v_readfirstlane_b32 s31, v1
    s_lshr_b32 s34, s2, 3               ; idx
    s_and_b32 s28, s33, 1
    s_lshl_b32 s28, s28, 3
    s_and_b32 s35, s34, 7
    s_add_u32 s28, s28, s35             ; rb
    s_lshr_b32 s35, s34, 3              ; jj
    s_lshr_b32 s30, s35, 1              ; type
    s_and_b32 s35, s35, 1
    s_and_b32 s29, s33, 6
    s_add_u32 s29, s29, s35             ; g
    s_mov_b32 s32, s33
    s_cmp_lt_u32 s31, 4
    s_cbranch_scc1 F_comp
    """)
    helper(a)
    phase2(a)
    issue_sub(a)
    a(f"""
    F_comp:
    s_lshl_b32 s33, s2, 2
    s_add_u32 s33, s33, s31
    s_cmp_eq_u32 s33, 3
    s_cbranch_scc0 F_nonce_x
    s_mov_b32 s34, {WS_NONCE}
    s_waitcnt lgkmcnt(0)
    s_buffer_load_dword s35, s[16:19], s34 glc
    v_mov_b32 v3, 0
    s_waitcnt lgkmcnt(0)
    s_add_u32 s35, s35, 1
    s_max_u32 s35, s35, 1
    v_mov_b32 v2, s35
    s_mov_b64 exec, 1
    buffer_store_dword v2, v3, {SDBG}, 0 offen sc1
    buffer_store_dword v2, v3, s[16:19], s34 offen sc1
    s_mov_b64 exec, -1
    F_nonce_x:
    """)
    if OPT['cpf'] == 2: code_touch(a, "F_ct"); a("v_mov_b32 v24, v21")
    phase0_issue(a)
    if OPT['pf1'] == 1: a('s_waitcnt lgkmcnt(0)'); l2_prefetch(a)
    a(f"""
    v_lshrrev_b32 v61, 5, v60
    v_bfe_u32 v62, v60, 2, 2
    v_lshl_add_u32 v61, v61, 3, v62     ; 8hf + j
    v_and_b32 v62, 1, v60               ; c&1
    v_bfe_u32 v63, v60, 4, 1
    v_bfe_u32 v2, v60, 1, 1
    v_lshl_add_u32 v63, v63, 1, v2      ; 2gg + (c>>1)
    v_and_b32 v2, 31, v60
    s_lshl_b32 s43, s31, 5
    v_add_u32 v2, s43, v2
    v_lshrrev_b32 v3, 5, v60
    v_bfe_u32 v4, v2, 1, 3
    v_xor_b32 v3, v3, v4
    v_lshlrev_b32 v3, 4, v3
    v_lshl_add_u32 v{XA}, v2, 7, v3
    v_lshlrev_b32 v{RSTD}, 2, v2
    v_add_u32 v{RSTD}, {L_RSTD}, v{RSTD}
    v_add_u32 v{XA}, {SLOT}, v{XA}
    v_xor_b32 v{XA+1}, 32, v{XA}
    v_xor_b32 v{XA+2}, 64, v{XA}
    v_xor_b32 v{XA+3}, 96, v{XA}
    v_lshrrev_b32 v12, 5, v60
    v_cmp_eq_u32 vcc, v12, v62
    v_bfe_u32 v13, v60, 2, 2
    v_mul_u32_u24 v13, 96, v13
    v_cndmask_b32 v12, 2, v12, vcc
    v_mul_u32_u24 v12, 3840, v12
    v_lshl_add_u32 v13, v63, 3, v13
    v_add_u32 v{BDA}, v12, v13
    v_add_u32 v{BDA}, {L_BD}, v{BDA}
    s_cmp_eq_u32 s30, 1
    s_cbranch_scc1 F_as1
    """)
    addr_setup(a, 0)
    a("s_branch F_as2\nF_as1:")
    addr_setup(a, 1)
    a("F_as2:")
    for i in range(112): a(f"v_mov_b32 v{ACC+i}, 0")
    if OPT['p0'] == 2: a("s_waitcnt vmcnt(0)\ns_call_b64 s[58:59], P0_fin")
    if OPT['pf1'] == 2: a('s_waitcnt lgkmcnt(0)'); l2_prefetch(a)
    flag_addrs(a)
    a(f"""
    s_waitcnt lgkmcnt(0)
    s_mov_b32 s40, 0
    s_mov_b32 s57, {4 | (1 << OPT['cl']) | (1 << OPT['ct']) | (2 if OPT['p0'] == 1 else 0)}
    s_mov_b32 s42, 1
    s_mov_b32 s45, {SLOT}
    s_cmp_eq_u32 s30, 1
    s_cbranch_scc1 F_c1
    """)
    compute(a, 0)
    compute(a, 1)
    fin(a)
    a("P0_fin:")
    phase0_finish(a)
    a("s_setpc_b64 s[58:59]")
    a("F_end:\ns_endpgm")
    return a.text()

def build():
    t = gen_f1()
    for e in check_hazards(t): print(e)
    return file_text([f"; @launch grid=(256,1,1) block=(512,1,1) lds={F_LDS}"], [(NAME + "_kernel", t, 256, 102, 256)])
if __name__ == "__main__":
    for arg in list(sys.argv[1:]):
        if "=" in arg:
            k, v = arg.split("="); OPT[k] = int(v); sys.argv.remove(arg)
    out = sys.argv[1] if len(sys.argv) > 1 else f"cdna_kernels/{NAME}.s"
    open(out, "w").write(build())
```

```python
import sys
sys.path.insert(0, "gen")
import asmlib
if "--stamps" in sys.argv: asmlib.STAMPS = True; sys.argv.remove("--stamps")
from asmlib import *
from layout import *
from k0 import srd, dpp_add
from k1 import ACC, SET, XA, QA, HA, RSTD, BDA, LOG2E, tile_reads, mfma_step, softmax
from k2b import wt_task, wt_finish, p2_setup, p2_epi_addr, p2_final, AR, WR, AC2
import k2b
NS = {0: " sc1", 1: "", 2: " nt", 3: " sc0"}
def ldA(i, m, sc):
    t = k2b.ldA(i, m, NS[OPT['nsa']])
    if i == 11: t = t.replace("s32, 4096", "s32, s57")
    if i > 11: t = t.replace("s32, 4096", "s32, 1024")
    return t
def ldW(i, nt, sc):
    t = k2b.ldW(i, nt, NS[OPT['nsw']])
    if i == 11: t = t.replace("s33, 20480", "s33, s58")
    if i > 11: t = t.replace("s33, 20480", "s33, 5120")
    return t
SC = " sc1"
SW2, SWO, SOUT, SB2, SDBG = "s[60:63]", "s[64:67]", "s[68:71]", "s[72:75]", "s[76:79]"
C_H, C_PV, W_K2, W_KV, C_OB, C_O, W_H, W_O, W_N = [L_CNT + 4*i for i in range(9)]
FL_S = WS_FLAG + 0x2000
WS_NONCE = WS_FLAG + 0x4000
NC = "s53"
TMO = 1 << 18
OPT = dict(pfw=0, pfa=0, defer=1, pf1=0, w8=10, w9=20, prio=1, nla=4, nlb=7, spoll=0, hfa=0, la=4, gh=1, ga=1, gb=0, hfb=1, pd=1, ek=1, eo=0, il=1, bf=1, w16=1, fa=2, map=0, bp=0, k2=0, fast=0, cpf=1, p0=2, hb2=1, cl=8, ct=4, so=0, tw=0, al=0, pe=1, dg=0, nsa=0, nsw=0)
def dstamp(a, i):
    if OPT['dg']: stamp(a, i)
PVB = 40960

def arrive(a, off, va=1):
    a(f"""
    v_mov_b32 v{va}, 1
    v_mov_b32 v{va+1}, {off}
    s_mov_b64 exec, 1
    ds_add_rtn_u32 v{va+2}, v{va+1}, v{va}
    s_waitcnt lgkmcnt(0)
    s_mov_b64 exec, -1
    v_readfirstlane_b32 s47, v{va+2}
    """)
def signal(a, off, va=1):
    a(f"v_mov_b32 v{va}, 1\nv_mov_b32 v{va+1}, {off}\ns_mov_b64 exec, 1\nds_add_u32 v{va+1}, v{va}\ns_mov_b64 exec, -1")
def spin(a, off, val, va=1):
    L = a.label("spin")
    a(f"""
    v_mov_b32 v{va+1}, {off}
    s_mov_b32 s48, 0
    {L}:
    ds_read_b32 v{va+2}, v{va+1}
    s_add_u32 s48, s48, 1
    s_waitcnt lgkmcnt(0)
    v_readfirstlane_b32 s47, v{va+2}
    s_cmp_ge_u32 s48, {TMO}
    s_cbranch_scc1 {L}_x
    {f's_cmp_lt_u32 s47, {val}' if val else 's_andn2_b32 s47, s55, s47'}
    s_cbranch_scc1 {L}
    {L}_x:
    """)
def setword(a, off, va=1):
    a(f"v_mov_b32 v{va}, 1\nv_mov_b32 v{va+1}, {off}\nds_write_b32 v{va+1}, v{va}\ns_waitcnt lgkmcnt(0)")
def flag_store(a, soff, va=1):
    a(f"v_mov_b32 v{va}, {NC}\nv_mov_b32 v{va+1}, 0\ns_mov_b64 exec, 1\nbuffer_store_dword v{va}, v{va+1}, s[16:19], {soff} offen sc1\ns_mov_b64 exec, -1")
def poll(a, soff, mask, lane, va=1, pub=None):
    L = a.label("poll")
    pd = OPT['pd']
    R = [va + 1, va + 2] + [va + 4 + i for i in range(2)] if va == 1 else [va + 1, va + 2, 16, 17]
    a(f"""
    v_lshlrev_b32 v{va}, 7, v{lane}
    s_mov_b32 s48, 0
    {f'v_mov_b32 v{va+3}, {pub}' if pub else ''}
    s_mov_b64 exec, {mask}
    """)
    ld = lambda k: f"buffer_load_dword v{R[k]}, v{va}, s[16:19], {soff} offen sc1"
    for k in range(pd - 1): a(ld(k) + "\ns_nop 7\ns_nop 7" * 0)
    a(f"{L}:")
    for k in range(pd):
        a(f"""
        {ld((k + pd - 1) % pd)}
        s_add_u32 s48, s48, 1
        s_waitcnt vmcnt({pd-1})
        v_cmp_eq_u32 vcc, {NC}, v{R[k]}
        s_cmp_ge_u32 s48, {TMO}
        s_cbranch_scc1 {L}_x
        """)
        if pub: a(f"v_mov_b32 v{R[k]}, vcc_lo\nds_write_b32 v{va+3}, v{R[k]}\ns_waitcnt lgkmcnt(0)")
        a(f"s_cmp_eq_u64 vcc, {mask}")
        a(f"s_cbranch_scc0 {L}" if k == pd - 1 else f"s_cbranch_scc1 {L}_x")
    a(f"{L}_x:\ns_mov_b64 exec, -1")

def early_flag(a):
    L = a.label("ef")
    a(f"s_cmp_eq_u32 s31, 0\ns_cbranch_scc0 {L}")
    flag_store(a, "s51")
    a(f"{L}:")
def spoll(a, soff, regs):
    L = a.label("spoll")
    a(f"s_mov_b32 s48, 0\n{L}:")
    for i, r in enumerate(regs): a(f"s_buffer_load_dword s{r}, s[16:19], {soff} offset:{128*i} glc")
    a(f"s_add_u32 s48, s48, 1\ns_cmp_ge_u32 s48, {TMO}\ns_waitcnt lgkmcnt(0)\ns_cbranch_scc1 {L}_x")
    for r in regs: a(f"s_cmp_eq_u32 s{r}, {NC}\ns_cbranch_scc0 {L}")
    a(f"{L}_x:")

def p2_ids(a, rg, cg):
    if OPT['map'] == 1:
        a(f"s_and_b32 s36, s2, 7\ns_lshl_b32 s36, s36, 2\ns_bfe_u32 s37, s2, 0x20003\ns_add_u32 {rg}, s36, s37\ns_lshr_b32 {cg}, s2, 5")
        return
    if OPT['map'] == 2:
        a(f"s_bfe_u32 s36, s2, 0x10002\ns_lshl_b32 s36, s36, 4\ns_bfe_u32 s37, s2, 0x40003\ns_add_u32 {rg}, s36, s37\ns_and_b32 s36, s2, 3\ns_lshl_b32 s36, s36, 1\ns_lshr_b32 {cg}, s2, 7\ns_add_u32 {cg}, {cg}, s36")
        return
    a(f"""
    s_and_b32 s36, s2, 7
    s_lshr_b32 s37, s2, 3
    s_lshr_b32 {rg}, s36, 1
    s_lshl_b32 {rg}, {rg}, 3
    s_and_b32 s38, s37, 7
    s_add_u32 {rg}, {rg}, s38
    s_and_b32 {cg}, s36, 1
    s_lshl_b32 {cg}, {cg}, 2
    s_lshr_b32 s38, s37, 3
    s_add_u32 {cg}, {cg}, s38
    """)

def phase0_issue(a):
    a(f"""
    s_cmp_ge_u32 s31, 2
    s_cbranch_scc1 P0_cols
    s_lshl_b32 s33, s2, 3
    s_lshl_b32 s34, s31, 2
    s_add_u32 s33, s33, s34
    v_lshrrev_b32 v65, 4, v60
    v_add_u32 v65, s33, v65
    v_and_b32 v66, 15, v60
    v_mul_u32_u24 v64, 1280, v65
    v_lshl_add_u32 v64, v66, 4, v64
    s_waitcnt lgkmcnt(0)
    """)
    for i in range(5): a(f"buffer_load_dwordx4 {vr(20+4*i,4)}, v64, s[4:7], 0 offen offset:{256*i}")
    a(f"""
    s_branch P0_issued
    P0_cols:
    s_cmp_ge_u32 s2, 216
    s_cbranch_scc1 P0_issued
    s_lshr_b32 s33, s2, 2            ; line
    s_and_b32 s34, s2, 3
    s_lshl_b32 s34, s34, 1
    s_add_u32 s34, s34, s31
    s_sub_u32 s34, s34, 2            ; part 0..7
    s_mul_i32 s35, s34, 80
    v_lshrrev_b32 v76, 3, v60
    v_add_u32 v76, s35, v76
    v_and_b32 v77, 7, v60
    v_lshlrev_b32 v77, 4, v77
    s_cmp_ge_u32 s33, 30
    s_cbranch_scc1 P0_w1
    s_lshl_b32 s36, s33, 7
    v_mul_u32_u24 v76, 3840, v76
    v_add_u32 v76, v76, v77
    s_waitcnt lgkmcnt(0)
    """)
    for i in range(10): a(f"buffer_load_dwordx4 {vr(20+4*i,4)}, v76, s[8:11], s36 offen\ns_add_u32 s36, s36, {8*3840}")
    a("""
    s_branch P0_issued
    P0_w1:
    s_sub_u32 s36, s33, 30
    s_lshl_b32 s36, s36, 7
    v_mul_u32_u24 v76, 3072, v76
    v_add_u32 v76, v76, v77
    s_waitcnt lgkmcnt(0)
    """)
    for i in range(10): a(f"buffer_load_dwordx4 {vr(20+4*i,4)}, v76, s[12:15], s36 offen\ns_add_u32 s36, s36, {8*3072}")
    a("P0_issued:")

def phase0_finish(a):
    a(f"""
    s_cmp_ge_u32 s31, 2
    s_cbranch_scc1 P0_fcols
    s_mov_b32 s37, 0xffff0000
    """)
    for r in range(10): a(f"v_lshlrev_b32 v{40+2*r}, 16, v{20+r}\nv_and_b32 v{41+2*r}, s37, v{20+r}")
    def unp(r, t): a(f"v_lshlrev_b32 v{t}, 16, v{r}\nv_and_b32 v{t+1}, s37, v{r}")
    for r in range(5): unp(30 + r, 20 + 2*r)
    for r in range(4): unp(35 + r, 72 + 2*r)
    unp(39, 30)
    U = [40 + 2*i for i in range(10)] + [20 + 2*i for i in range(6)] + [72 + 2*i for i in range(4)]
    a(f"v_pk_add_f32 v[68:69], {vr(U[0],2)}, {vr(U[1],2)}\nv_pk_add_f32 v[70:71], {vr(U[2],2)}, {vr(U[3],2)}")
    for i in range(4, 20, 2):
        a(f"v_pk_add_f32 v[68:69], v[68:69], {vr(U[i],2)}\nv_pk_add_f32 v[70:71], v[70:71], {vr(U[i+1],2)}")
    a("v_pk_add_f32 v[68:69], v[68:69], v[70:71]\nv_add_f32 v68, v68, v69")
    for ror in (8, 4, 2, 1): dpp_add(a, 68, 68, ror)
    a("v_mul_f32 v68, 0x3acccccd, v68")
    for i in range(20): a(f"v_pk_add_f32 {vr(U[i],2)}, {vr(U[i],2)}, v[68:69] op_sel_hi:[1,0] neg_lo:[0,1] neg_hi:[0,1]")
    a(f"v_pk_mul_f32 v[70:71], {vr(U[0],2)}, {vr(U[0],2)}\nv_pk_mul_f32 v[32:33], {vr(U[1],2)}, {vr(U[1],2)}")
    for i in range(2, 20, 2):
        a(f"v_pk_fma_f32 v[70:71], {vr(U[i],2)}, {vr(U[i],2)}, v[70:71]\nv_pk_fma_f32 v[32:33], {vr(U[i+1],2)}, {vr(U[i+1],2)}, v[32:33]")
    a("v_pk_add_f32 v[70:71], v[70:71], v[32:33]\nv_add_f32 v69, v70, v71")
    for ror in (8, 4, 2, 1): dpp_add(a, 69, 69, ror)
    a(f"""
    v_mov_b32 v70, 0x3727c5ac
    v_fmac_f32 v70, 0x3acccccd, v69
    v_rsq_f32 v69, v70
    v_lshlrev_b32 v65, 3, v65
    v_cmp_eq_u32 vcc, 0, v66
    s_and_saveexec_b64 s[48:49], vcc
    s_nop 1
    buffer_store_dwordx2 v[68:69], v65, s[16:19], 0 offen sc1
    s_mov_b64 exec, -1
    s_branch P0_done
    P0_fcols:
    s_cmp_ge_u32 s2, 216
    s_cbranch_scc1 P0_done
    v_and_b32 v68, 15, v60
    v_and_b32 v69, 1, v60
    v_lshlrev_b32 v69, 4, v69
    v_mov_b32 v70, 0x3f80
    v_lshlrev_b32 v69, v69, v70
    v_lshrrev_b32 v68, 1, v68
    """)
    for q in range(4): a(f"v_cmp_eq_u32 vcc, {q}, v68\ns_nop 1\nv_cndmask_b32 v{64+q}, 0, v69, vcc")
    a("s_nop 1")
    for i in range(10):
        a(f"v_mfma_f32_16x16x32_bf16 v[68:71], v[64:67], {vr(20+4*i,4)}, {'0' if i == 0 else 'v[68:71]'}")
    a(f"""
    s_mul_i32 s36, s34, {3456*4}
    s_lshl_b32 s35, s33, 8
    s_add_u32 s36, s36, s35
    s_add_u32 s36, s36, {WS_COLS}
    v_and_b32 v76, 7, v60
    v_lshlrev_b32 v76, 5, v76
    v_and_b32 v77, 16, v60
    v_add_u32 v76, v76, v77
    v_and_b32 v77, 40, v60
    """)
    for q in range(4): dpp_add(a, 72+q, 68+q, 8)
    a(f"""
    v_cmp_eq_u32 vcc, 0, v77
    s_and_saveexec_b64 s[48:49], vcc
    s_nop 1
    buffer_store_dwordx4 v[72:75], v76, s[16:19], s36 offen sc1
    s_mov_b64 exec, -1
    P0_done:
    """)

def l2_prefetch(a):
    a(f"""
    s_lshr_b32 s46, s2, 3               ; idx
    s_cmp_ge_u32 s31, 2
    s_cbranch_scc1 PF_w
    s_and_b32 s47, s2, 1
    s_lshl_b32 s47, s47, 5
    s_add_u32 s47, s47, s46
    s_mul_i32 s47, s47, {32*1280}
    v_and_b32 v20, 31, v60
    v_mul_u32_u24 v20, 1280, v20
    v_lshrrev_b32 v21, 5, v60
    s_lshl_b32 s48, s31, 1
    s_add_u32 s48, s48, s32
    s_add_u32 s48, s48, 2
    v_add_u32 v21, s48, v21
    """)
    for j in range(2):
        a(f"""
        v_add_u32 v22, {4*j}, v21
        v_subrev_u32 v23, 10, v22
        v_min_u32 v22, v22, v23
        v_lshl_add_u32 v22, v22, 7, v20
        buffer_load_dword v{16+j}, v22, s[4:7], s47 offen
        """)
    a(f"""
    buffer_load_dword v18, v22, s[4:7], s47 offen
    s_branch PF_x
    PF_w:
    s_lshr_b32 s47, s29, 1              ; pair
    s_add_u32 s48, s32, 2
    s_cmp_eq_u32 s31, 3
    s_cbranch_scc1 PF_w1
    s_mul_i32 s47, s47, 320
    s_and_b32 s47, s47, 0xffffff80
    s_mul_i32 s46, s46, {2*3840}
    s_add_u32 s47, s47, s46
    """)
    for j in range(3):
        a(f"""
        v_add_u32 v20, {64*j}, v60
        v_min_u32 v20, 143, v20
        v_mul_u32_u24 v21, 57, v20
        v_lshrrev_b32 v21, 9, v21           ; r = n / 9
        v_mul_u32_u24 v22, 9, v21
        v_sub_u32 v20, v20, v22             ; l
        v_mul_u32_u24 v22, 11, v20
        v_lshrrev_b32 v22, 5, v22           ; seg = l / 3
        v_mul_u32_u24 v22, {1280 - 384}, v22
        v_lshl_add_u32 v20, v20, 7, v22
        v_lshrrev_b32 v22, 1, v21
        v_add_u32 v22, s48, v22
        v_subrev_u32 v23, 10, v22
        v_min_u32 v22, v22, v23             ; chunk
        v_and_b32 v21, 1, v21
        v_lshl_add_u32 v21, v22, 6, v21
        v_mad_u32_u24 v20, v21, v24, v20
        buffer_load_dword v{16+j}, v20, s[8:11], s47 offen
        """.replace("v_add_u32 v20, 0, v60", "v_mov_b32 v24, 3840\nv_mov_b32 v20, v60"))
    a(f"""
    s_branch PF_x
    PF_w1:
    s_mul_i32 s46, s46, {2*3072}
    s_lshl_b32 s49, s47, 9
    s_add_u32 s46, s46, s49
    s_lshl_b32 s47, s47, 8
    s_sub_u32 s47, {2048 - 512}, s47
    v_mov_b32 v24, 3072
    """)
    for j in range(2):
        a(f"""
        v_add_u32 v20, {64*j}, v60
        v_min_u32 v20, 95, v20
        v_mul_u32_u24 v21, 43, v20
        v_lshrrev_b32 v21, 8, v21           ; r = n / 6
        v_mul_u32_u24 v22, 6, v21
        v_sub_u32 v20, v20, v22             ; l
        v_lshrrev_b32 v22, 2, v20
        v_mul_u32_u24 v22, s47, v22
        v_lshl_add_u32 v20, v20, 7, v22
        v_lshrrev_b32 v22, 1, v21
        v_add_u32 v22, s48, v22
        v_subrev_u32 v23, 10, v22
        v_min_u32 v22, v22, v23             ; chunk
        v_and_b32 v21, 1, v21
        v_lshl_add_u32 v21, v22, 6, v21
        v_mad_u32_u24 v20, v21, v24, v20
        buffer_load_dword v{16+j}, v20, s[12:15], s46 offen
        """)
    a("buffer_load_dword v18, v20, s[12:15], s46 offen\nPF_x:")

def code_touch(a, L):
    a(f"""
    s_getpc_b64 s[46:47]
    {L}_pc:
    s_sub_u32 s46, s46, {L}_pc-{NAME}_kernel
    s_subb_u32 s47, s47, 0
    s_lshr_b32 s44, s2, 3
    s_lshl_b32 s44, s44, 2
    s_add_u32 s44, s44, s31
    s_lshl_b32 s44, s44, 9
    v_and_b32 v13, 3, v60
    v_lshl_add_u32 v13, v13, 7, s44
    v_min_u32 v13, F_end-{NAME}_kernel, v13
    global_load_dword v79, v13, s[46:47]
    """)
    if OPT['tw']:
        a(f"""
        v_and_b32 v13, 3, v60
        v_lshlrev_b32 v13, 16, v13
        s_lshl_b32 s46, s44, 9
        buffer_load_dword v78, v13, s[16:19], s46 offen offset:3968
        s_lshl_b32 s46, s44, 7
        v_mov_b32 v13, 0
        buffer_load_dword v77, v13, {SOUT}, s46 offen
        """)

def flag_addrs(a):
    a(f"""
    s_lshl_b32 s50, s28, 11
    s_lshl_b32 s55, s30, 3
    s_add_u32 s55, s55, s29
    s_lshl_b32 s55, s55, 7
    s_add_u32 s50, s50, s55
    s_add_u32 s50, s50, {FL_H}
    s_lshl_b32 s51, s29, 11
    s_lshl_b32 s55, s28, 7
    s_add_u32 s51, s51, s55
    s_add_u32 s51, s51, {FL_KV}
    s_lshl_b32 s52, s28, 10
    s_lshl_b32 s55, s29, 7
    s_add_u32 s52, s52, s55
    s_add_u32 s52, s52, {FL_O}
    s_cmp_eq_u32 s30, 1
    s_cselect_b32 s51, s52, s51
    s_lshr_b32 s54, s2, 4
    s_lshl_b32 s54, s54, 7
    s_and_b32 s55, s2, 15
    s_lshl_b32 s55, s55, 2
    s_add_u32 s54, s54, s55
    s_add_u32 s54, s54, {FL_S}
    """)

def compute(a, typ):
    L = f"F_c{typ}"
    nh = 2 if typ == 0 else 4
    a(f"{L}:\ns_barrier")
    stamp(a, 1)
    for r in tile_reads(typ, 0, SET[0]): a(r)
    if OPT['al']: a(f"s_branch {L}_loop\n.p2align {OPT['al']}")
    a(f"{L}_loop:")
    for s in range(4):
        if s < 3:
            a("s_waitcnt lgkmcnt(0)")
            fill = tile_reads(typ, s + 1, SET[(s + 1) % 2])
            if s == 2:
                fill += [f"s_cmp_eq_u32 s42, 2", f"s_cselect_b32 s41, {-2*SLOT}, s45", "s_add_u32 s42, s42, 1", "s_cmp_eq_u32 s42, 3", "s_cselect_b32 s42, 0, s42", "s_bitcmp1_b32 s57, s40"]
        else:
            a(f"s_cbranch_scc1 {L}_it2\ns_waitcnt lgkmcnt(0)\ns_barrier\n{L}_it2r:")
            rd = tile_reads(typ, 0, SET[0])
            up = lambda r: f"v_add_u32 v{r}, s41, v{r}"
            fill = [up(XA), up(QA)] + rd[:3] + [up(HA + i) for i in range(nh)] + rd[3:6] + [up(XA + 1), up(XA + 2), up(XA + 3)] + rd[6:]
            fill += ["s_add_u32 s40, s40, 1", "s_cmp_lt_u32 s40, 10"]
        mfma_step(a, SET[s % 2], fill)
    a(f"s_cbranch_scc1 {L}_loop")
    if OPT['prio']: a("s_setprio 3")
    stamp(a, 2)
    fill = [f"ds_read_b32 v{RSTD}, v{RSTD}"]
    BD = 16
    bdr = {}
    order = [(0,0),(1,0),(0,1),(1,1),(2,2),(0,2),(1,2),(2,3),(1,3),(2,4),(1,4)]
    for n, (T, u) in enumerate(order):
        bdr[(T, u)] = BD + 4*n
        for uu in range(2): fill.append(f"ds_read_b64_tr_b16 {vr(BD+4*n+2*uu,2)}, v{BDA} offset:{(8*u+4*uu)*96 + T*32}")
    a("s_waitcnt lgkmcnt(0)")
    def hflag():
        a("s_waitcnt vmcnt(0)")
        arrive(a, C_H)
        a(f"s_cmp_eq_u32 s47, 3\ns_cbranch_scc0 {L}_nohf")
        flag_store(a, "s50")
        if typ == 1 and OPT['bp']:
            p2_ids(a, "s33", "s34")
            a(f"s_lshr_b32 s33, s33, 1\ns_lshl_b32 s33, s33, 11\ns_add_u32 s33, s33, {FL_H}\ns_mov_b64 s[34:35], 0xff00")
            poll(a, "s33", "s[34:35]", 60)
            setword(a, W_H)
        a(f"{L}_nohf:")
    hfirst = typ == 1 and OPT['bf']
    k = 0
    for n, t in enumerate([3, 4, 5, 6, 0, 1, 2] if hfirst else range(7)):
        acc = vr(ACC + 16*t, 16)
        a(f"v_mfma_f32_32x32x16_bf16 {acc}, {vr(SET[0]+4+4*t,4)}, {vr(SET[0],4)}, {acc}")
        for x in fill[4*n:4*n+4]: a(x)
    BF = 112; P = 64
    cv = [f"v_cvt_pk_bf16_f32 v{BF+i}, v{ACC+2*i}, v{ACC+2*i+1}" for i in range(20)]
    if not hfirst:
        for x in cv: a(x)
        a("s_waitcnt lgkmcnt(0)\ns_barrier")
    hb = ACC + (80 if typ == 0 else 48)
    npair = 4 if typ == 0 else 8
    va = [f"v_mul_f32 v12, {LOG2E}, v{RSTD}", f"v_mul_f32 v14, v{RSTD}, v{RSTD}"]
    for m in range(npair):
        b = hb + 8*m
        for i in range(8): va.append(f"v_max_f32 v{b+i}, 0, v{b+i}")
        for i in range(4): va.append(f"v_pk_mul_f32 {vr(136+2*i,2)}, {vr(b+2*i,2)}, v[14:15] op_sel_hi:[1,0]")
        for i in range(4): va.append(f"v_pk_mul_f32 {vr(b+2*i,2)}, {vr(136+2*i,2)}, {vr(b+2*i,2)}")
        for i in range(4): va.append(f"v_cvt_pk_bf16_f32 v{b+i}, v{b+2*i}, v{b+2*i+1}")
        va.append(f"buffer_store_dwordx4 {vr(b,4)}, v15, s[16:19], s43 offen offset:{(m>>1)*1024 + (m&1)*512} sc1")
    if OPT['gh'] == 2 or (OPT['gh'] == 3 and typ == 0): va.append(f"v_mov_b32 v1, 1\nv_mov_b32 v2, {W_O}\ns_mov_b64 exec, 1\nds_add_u32 v2, v1\ns_mov_b64 exec, -1")
    if hfirst:
        a("s_waitcnt lgkmcnt(15)")
        for x in va[:23]: a(x)
        a("s_waitcnt lgkmcnt(0)\ns_barrier")
        for x in va[23:] + cv + ["s_nop 1"]: a(x)
        va = []
        if OPT['hb2']: hflag()
    if typ == 0:
        vb = ACC + 40
        for i in range(20):
            va += [f"v_pk_mul_f32 {vr(vb+2*i,2)}, {vr(vb+2*i,2)}, {vr(RSTD,2)} op_sel_hi:[1,0]", f"v_cvt_pk_bf16_f32 v{vb+i}, v{vb+2*i}, v{vb+2*i+1}"]
        for i in range(5): va.append(f"ds_write_b128 v8, {vr(vb+4*i,4)} offset:{320+16*i}")
        va += ["v_mov_b32 v2, 0x3f80", "v_mov_b32 v3, 0", "ds_write_b64 v0, v[2:3] offset:480"]
    k = 0
    seen = set()
    for n, (T, u) in enumerate(order):
        d = vr(P + 16*T, 16)
        a(f"v_mfma_f32_32x32x16_bf16 {d}, {vr(bdr[(T,u)],4)}, {vr(BF+4*u,4)}, {d if T in seen else '0'}")
        seen.add(T)
        if n >= 2:
            for _ in range(6):
                if k < len(va): a(va[k]); k += 1
    while k < len(va): a(va[k]); k += 1
    stamp(a, 3)
    if typ == 0:
        if OPT['hfa']: hflag()
        softmax(a, P, ACC, list(range(16, 26)), list(range(26, 36)))
        if not OPT['hfa']: hflag()
        for i in range(5): a(f"ds_write_b128 v9, {vr(16+4*i,4)} offset:{16*i}")
        if OPT['ek'] == 3: early_flag(a)
        softmax(a, P + 20, ACC + 20, list(range(36, 46)), list(range(46, 56)))
        stamp(a, 4)
        if OPT['ek'] == 4: early_flag(a)
        for i in range(5, 10): a(f"ds_write_b128 v9, {vr(16+4*i,4)} offset:{16*i}")
        signal(a, C_PV)
        dstamp(a, 1)
        spin(a, C_PV, 4)
        if OPT['ek'] == 1: early_flag(a)
        dstamp(a, 2)
        for st in range(8):
            for u in range(2):
                off = u*4*PV_PITCH + st*16*PV_PITCH
                a(f"ds_read_b64_tr_b16 {vr(64+12*st+2*u,2)}, v61 offset:{off}\nds_read_b64_tr_b16 {vr(68+12*st+2*u,2)}, v61 offset:{off+40}\nds_read_b64_tr_b16 {vr(72+12*st+2*u,2)}, v62 offset:{off}")
            if st >= 2:
                a("s_waitcnt lgkmcnt(12)")
                for sg in range(2):
                    d = vr(160 + 16*sg, 16)
                    a(f"v_mfma_f32_32x32x16_bf16 {d}, {vr(64+12*(st-2)+4*sg,4)}, {vr(72+12*(st-2),4)}, {'0' if st == 2 else d}")
        for st in range(6, 8):
            a(f"s_waitcnt lgkmcnt({42-6*st})")
            for sg in range(2):
                d = vr(160 + 16*sg, 16)
                a(f"v_mfma_f32_32x32x16_bf16 {d}, {vr(64+12*st+4*sg,4)}, {vr(72+12*st,4)}, {d}")
        dstamp(a, 3)
        if OPT['ek'] == 2: early_flag(a)
        a("s_mov_b32 exec_lo, 0x1fffff\ns_mov_b32 exec_hi, 0x1fffff\ns_nop 7\ns_nop 2")
        for sg in range(2):
            for i in range(4): a(f"v_cvt_pk_bf16_f32 v{200+4*sg+i}, v{160+16*sg+2*i}, v{161+16*sg+2*i}")
            for i in range(2): a(f"v_cvt_pk_bf16_f32 v{208+2*sg+i}, v{168+16*sg+2*i}, v{169+16*sg+2*i}")
            a(f"buffer_store_dwordx4 {vr(200+4*sg,4)}, v63, s[16:19], s56 offen offset:{672*sg} sc1")
        a("s_mov_b32 exec_hi, 0")
        a(f"buffer_store_dwordx4 v[208:211], v63, s[16:19], s56 offen offset:1344 sc1")
        a("s_mov_b64 exec, -1\ns_branch F_fin")
    else:
        if OPT['hfb'] and not OPT['hb2']: hflag()
        else: a('s_nop 7\ns_nop 3')
        for hh in range(2):
            o = 16 + 20*hh
            softmax(a, P + 20*hh, ACC + 20*hh, [o+i for i in range(8)] + [o+16, o+17], [o+8+i for i in range(8)] + [o+18, o+19])
            if hh == 0 and not OPT['hfb']: hflag()
        stamp(a, 4)
        otask(a)
    a(f"""
    {L}_it2:
    s_cmp_eq_u32 s40, {OPT['cl']}
    s_cbranch_scc1 {L}_it0
    s_cmp_eq_u32 s40, {OPT['ct']}
    s_cbranch_scc1 {L}_itc
    s_cmp_eq_u32 s40, 1
    s_cbranch_scc1 {L}_it1
    v_mov_b32 v13, {W_N}
    ds_read_b32 v12, v13
    s_waitcnt vmcnt(0) lgkmcnt(0)
    s_barrier
    v_readfirstlane_b32 {NC}, v12
    s_cmp_eq_u32 s31, 0
    s_cbranch_scc0 {L}_it2r
    v_mov_b32 v13, 0
    s_mov_b64 exec, 1
    buffer_store_dword v12, v13, s[16:19], s54 offen sc1
    s_mov_b64 exec, -1
    s_branch {L}_it2r
    {L}_it0:
    s_waitcnt vmcnt(0)
    """)
    assert OPT['cl'] > OPT['ct'] > 2
    if typ == 0:
        a("""
        v_lshlrev_b32 v13, 4, v60
        buffer_store_dwordx4 v[16:19], v13, s[16:19], s56 offen sc1
        v_cmp_gt_u32 vcc, 41, v60
        s_mov_b64 exec, vcc
        buffer_store_dwordx4 v[16:19], v13, s[16:19], s56 offen offset:1024 sc1
        s_mov_b64 exec, -1
        """)
    a(f"{L}_itx:\ns_waitcnt lgkmcnt(0)\ns_barrier\ns_branch {L}_it2r\n{L}_it1:")
    if OPT['p0'] == 1: a(f"s_waitcnt vmcnt(0)\ns_call_b64 s[58:59], P0_fin")
    a(f"s_branch {L}_itx\n{L}_itc:")
    code_touch(a, L)
    a(f"s_branch {L}_itx")

def addr_setup(a, typ):
    nh = 2 if typ == 0 else 4
    a(f"""
    v_mul_u32_u24 v{QA}, {QP[typ]}, v61
    v_mul_u32_u24 v14, {QP[typ]//2}, v62
    v_lshlrev_b32 v15, 3, v63
    v_add3_u32 v{QA}, v{QA}, v14, v15
    v_add_u32 v{QA}, {QB + SLOT}, v{QA}
    v_lshlrev_b32 v{HA}, {7 if typ == 0 else 8}, v61
    v_and_b32 v14, 16, v60
    v_lshlrev_b32 v14, 1, v14
    v_lshl_add_u32 v14, v62, 4, v14
    v_and_b32 v15, 2, v60
    v_lshl_add_u32 v14, v15, 2, v14
    v_add_u32 v{HA}, v{HA}, v14
    v_add_u32 v{HA}, {HB[typ] + SLOT}, v{HA}
    """)
    if typ == 0: a(f"v_and_b32 v14, 8, v60\nv_lshl_add_u32 v{HA}, v14, 3, v{HA}")
    else:        a(f"v_and_b32 v14, 12, v60\nv_lshl_add_u32 v{HA}, v14, 4, v{HA}")
    for i in range(1, nh): a(f"v_xor_b32 v{HA+i}, {64*i}, v{HA}")
    a(f"""
    s_lshl_b32 s43, s28, 3
    s_lshl_b32 s44, s31, 1
    s_add_u32 s43, s43, s44
    s_mul_i32 s43, s43, {68*1024}
    s_mul_i32 s56, s29, 2560
    s_add_u32 s56, s56, s43
    s_add_u32 s56, s56, {WS_A2 + 192*256}
    s_lshl_b32 s44, s29, {11 if typ == 0 else 12}
    s_add_u32 s43, s43, s44
    s_add_u32 s43, s43, {WS_A2 + (32*1024 if typ == 0 else 0)}
    v_and_b32 v15, 16, v60
    v_mul_u32_u24 v15, {68*64}, v15
    v_and_b32 v13, 15, v60
    v_lshl_add_u32 v15, v13, 4, v15
    v_and_b32 v13, 32, v60
    v_lshl_add_u32 v15, v13, 3, v15
    v_mov_b32 v16, -1
    v_mov_b32 v17, -1
    v_mov_b32 v18, -1
    v_mov_b32 v19, -1
    """)
    if typ == 0:
        a(f"""
        v_and_b32 v0, 31, v60
        s_lshl_b32 s44, s31, 5
        v_lshrrev_b32 v13, 5, v60
        v_mul_u32_u24 v63, 336, v13
        v_lshl_add_u32 v63, v0, 4, v63
        v_add_u32 v0, s44, v0
        v_mul_u32_u24 v0, {PV_PITCH}, v0
        v_add_u32 v0, {PVB}, v0
        v_mul_u32_u24 v13, 80, v13
        v_add_u32 v8, v0, v13
        v_add_u32 v9, v8, v13
        v_mul_u32_u24 v72, {PV_PITCH}, v61
        v_add_u32 v72, {PVB}, v72
        v_bfe_u32 v73, v60, 1, 1
        v_lshl_add_u32 v73, v62, 1, v73     ; fmap for pc<4
        v_and_b32 v74, 16, v60
        v_cmp_eq_u32 vcc, 0, v74
        s_mul_i32 s44, s31, 80
        s_and_b32 s46, s31, 1
        v_cndmask_b32 v73, 4, v73, vcc
        v_lshl_add_u32 v61, v73, 3, v72
        v_add_u32 v61, s44, v61
        v_add_u32 v73, s46, v73
        v_cmp_eq_u32 vcc, 5, v73
        s_mul_i32 s44, s31, 40
        s_add_u32 s44, s44, 320
        v_cndmask_b32 v73, v73, 0, vcc
        v_lshl_add_u32 v73, v73, 3, s44
        v_and_b32 v74, 19, v60
        v_cmp_lt_u32 vcc, 16, v74
        v_mov_b32 v75, 480
        s_lshl_b32 s56, s29, 2
        s_add_u32 s56, s56, s31             ; head
        v_cndmask_b32 v73, v73, v75, vcc
        v_add_u32 v62, v73, v72             ; B address
        s_lshl_b32 s56, s56, 4
        s_add_u32 s56, s56, s28
        s_mul_i32 s56, s56, 1792
        s_add_u32 s56, s56, {WS_KVP}
        """)

def otask(a):
    for i in range(4*OPT['so']): a(f"v_mov_b32 v{64+i}, -1")
    for p in range(0, 10*OPT['so'], 2): a(f"buffer_store_dwordx4 v[64:67], v15, s[16:19], s56 offen offset:{256*p} sc1")
    for hh in range(2):
        for sg in range(2):
            for q in range(4): a(f"v_permlane32_swap_b32 v{16+20*hh+8*sg+q}, v{20+20*hh+8*sg+q}")
    a(f"""
    v_lshrrev_b32 v3, 4, v60
    v_mul_u32_u24 v4, 1792, v3
    v_and_b32 v5, 15, v60
    v_lshl_add_u32 v4, v5, 4, v4
    v_lshlrev_b32 v12, 7, v5
    s_lshl_b32 s45, s29, 11
    s_add_u32 s45, s45, {FL_KV}
    s_lshl_b32 s33, s29, 2
    s_add_u32 s33, s33, s31
    s_mul_i32 s33, s33, {16*1792}
    s_add_u32 s33, s33, {WS_KVP}
    v_and_b32 v6, 1, v60
    v_lshlrev_b32 v6, 4, v6
    v_mov_b32 v7, 0x3f80
    v_lshlrev_b32 v6, v6, v7
    v_lshrrev_b32 v7, 1, v5
    """)
    for q in range(4): a(f"v_cmp_eq_u32 vcc, {q}, v7\ns_nop 1\nv_cndmask_b32 v{56+q}, 0, v6, vcc")
    a(f"""
    s_mul_i32 s34, s31, 1792
    s_add_u32 s34, s34, {L_STG}
    v_lshlrev_b32 v5, 4, v5
    v_bfe_u32 v6, v60, 4, 1
    v_lshl_add_u32 v5, v6, 3, v5
    v_add_u32 v5, s34, v5
    v_and_b32 v6, 31, v60
    v_min_u32 v6, 20, v6
    v_lshrrev_b32 v7, 5, v60
    v_mul_u32_u24 v8, 336, v7
    v_lshlrev_b32 v6, 4, v6
    v_add_u32 v6, {L_STG}, v6
    v_add_u32 v8, v8, v6
    v_add_u32 v6, 1344, v6
    v_mov_b32 v9, {L_BD + 2*3840 + 1024}
    v_cmp_gt_u32 vcc, 32, v60
    v_add_u32 v10, {2*1792}, v6
    s_mov_b32 s38, 0x01ff01ff
    s_mov_b32 s39, 0x01ff01ff
    v_cndmask_b32 v6, v9, v6, vcc
    v_cndmask_b32 v10, v10, v9, vcc
    s_cmp_eq_u32 s31, 0
    s_cbranch_scc0 F_o1w
    s_mov_b32 s48, 0
    s_mov_b64 exec, 0xffff
    F_o1:
    buffer_load_dword v3, v12, s[16:19], s45 offen sc1
    s_add_u32 s48, s48, 1
    s_waitcnt vmcnt(0)
    v_cmp_eq_u32 vcc, {NC}, v3
    s_mov_b32 s47, 3
    s_cmp_ge_u32 s48, {TMO}
    s_cbranch_scc1 F_o1x
    s_and_b32 s36, vcc_lo, 0xff
    s_cmp_eq_u32 s36, 0xff
    s_cselect_b32 s47, 1, 0
    s_cmp_ge_u32 vcc_lo, 0xff00
    s_cselect_b32 s36, 2, 0
    s_or_b32 s47, s47, s36
    s_cbranch_scc0 F_o1
    F_o1x:
    v_mov_b32 v1, s47
    v_mov_b32 v2, {W_KV}
    ds_write_b32 v2, v1
    s_mov_b64 exec, -1
    s_branch F_o1y
    F_o1w:
    """)
    spin(a, W_KV, 1)
    a(f"""
    F_o1y:
    s_mov_b32 s34, s47
    s_cmp_eq_u32 s47, 2
    s_cselect_b32 s35, {8*1792}, 0
    s_add_u32 s36, s33, s35
    s_xor_b32 s35, s35, {8*1792}
    s_add_u32 s35, s33, s35
    s_add_u32 s37, s36, {4*1792}
    s_add_u32 s44, s35, {4*1792}
    """)
    stamp(a, 5)
    LD = 140
    def loads(h, s0, s1):
        for i in range(2):
            for g in range(7): a(f"buffer_load_dwordx4 {vr(LD+4*(14*h+7*i+g),4)}, v4, s[16:19], {(s0, s1)[i]} offen offset:{256*g} sc1")
    def verify(h, L):
        r = [LD + 4*(14*h+7*i+g) + 3 for i in range(2) for g in range(6)]
        a(f"v_max3_u32 v11, v{r[0]}, v{r[1]}, v{r[2]}\nv_max3_u32 v13, v{r[3]}, v{r[4]}, v{r[5]}")
        a(f"v_max3_u32 v11, v11, v{r[6]}, v{r[7]}\nv_max3_u32 v13, v13, v{r[8]}, v{r[9]}\nv_max3_u32 v11, v11, v{r[10]}, v{r[11]}")
        a(f"""
        v_max_u32 v14, v{LD+4*(14*h+6)+3}, v{LD+4*(14*h+13)+3}
        v_max_u32 v11, v11, v13
        v_cmp_eq_u32 s[46:47], -1, v14
        v_cmp_eq_u32 vcc, -1, v11
        s_add_u32 s49, s49, 1
        s_and_b64 s[46:47], s[46:47], s[38:39]
        s_or_b64 vcc, vcc, s[46:47]
        s_cmp_ge_u32 s49, {TMO}
        s_cselect_b64 vcc, 0, vcc
        s_cbranch_vccnz {L}
        """)
    a("s_mov_b32 s49, 0\nF_o2:")
    loads(0, "s36", "s37")
    a(f"""
    s_cmp_eq_u32 s34, 3
    s_cbranch_scc1 F_o3x
    s_cmp_eq_u32 s31, 0
    s_cbranch_scc0 F_o3w
    s_mov_b64 s[40:41], 0xffff
    """)
    if OPT['k2'] == 1:
        a("s_and_b32 s40, s34, 1\ns_lshl_b32 s40, s40, 10\ns_add_u32 s45, s45, s40")
        spoll(a, "s45", [40, 41, 42, 43, 46, 47, 57, 58])
    else: poll(a, "s45", "s[40:41]", 60)
    a(f"v_mov_b32 v1, 1\nv_mov_b32 v2, {W_K2}\nds_write_b32 v2, v1\ns_branch F_o3x\nF_o3w:")
    spin(a, W_K2, 1)
    a("F_o3x:\ns_mov_b32 s34, 3")
    dstamp(a, 1)
    loads(1, "s35", "s44")
    for h in range(2):
        a(f"s_waitcnt vmcnt({14 - 14*h})\nF_ov{h}:")
        verify(h, f"F_or{h}")
        for i in range(2):
            for g in range(7):
                d = vr(64 + 4*g, 4)
                a(f"v_mfma_f32_16x16x32_bf16 {d}, v[56:59], {vr(LD+4*(14*h+7*i+g),4)}, {'0' if h + i == 0 else d}")
    a("s_nop 0")
    dstamp(a, 2)
    if OPT['eo'] == 3: early_flag(a)
    a("s_mov_b32 exec_hi, 0")
    for g in range(7):
        a(f"v_cvt_pk_bf16_f32 v{96+2*g}, v{64+4*g}, v{65+4*g}\nv_cvt_pk_bf16_f32 v{97+2*g}, v{66+4*g}, v{67+4*g}\nds_write_b64 v5, {vr(96+2*g,2)} offset:{256*g}")
    signal(a, C_OB)
    spin(a, C_OB, 4)
    if OPT['eo'] == 1: early_flag(a)
    dstamp(a, 3)
    AF = 64
    for hd in range(4):
        for st in range(2): a(f"ds_read_b128 {vr(AF+12*hd+4*st,4)}, v8 offset:{1792*hd + 672*st}")
        a(f"ds_read_b128 {vr(AF+12*hd+8,4)}, v{6 if hd < 2 else 10} offset:{1792*(hd&1)}")
    OD = 128
    pp = [0, 3, 5, 8]
    def norm(hd):
        d = OD + 16*hd
        r = [f"v_add_f32 v{d+12}, 0x358637bd, v{d+12}", f"v_rcp_f32 v{d+12}, v{d+12}", "s_nop 0"]
        for i in range(6): r.append(f"v_pk_mul_f32 {vr(d+2*i,2)}, {vr(d+2*i,2)}, {vr(d+12,2)} op_sel_hi:[1,0]")
        for i in range(4): r.append(f"v_cvt_pk_bf16_f32 v{d+i}, v{d+2*i}, v{d+2*i+1}")
        for i in range(2): r.append(f"v_cvt_pk_bf16_f32 v{112+2*hd+i}, v{d+8+2*i}, v{d+9+2*i}")
        r.append(f"buffer_store_dwordx4 {vr(d,4)}, v15, s[16:19], s56 offen offset:{256*pp[hd]} sc1")
        return r
    q = []
    for up in range(2):
        for st in range(3):
            for hh in range(2):
                hd = 2*up + hh
                if st == 0: a(f"s_waitcnt lgkmcnt({9-3*hd})")
                b = 16 + 20*hh + (8*st + 4*up if st < 2 else 16)
                d = vr(OD + 16*hd, 16)
                a(f"v_mfma_f32_32x32x16_bf16 {d}, {vr(AF+12*hd+4*st,4)}, {vr(b,4)}, {'0' if st == 0 else d}")
                if up == 1 and st == 0 and hh == 1: q = ['s_nop 6'] + norm(0) + norm(1)
                for _ in range(7):
                    if q: a(q.pop(0))
    for x in q: a(x)
    a("s_mov_b32 exec_hi, 0")
    a(f"buffer_store_dwordx4 v[112:115], v15, s[16:19], s56 offen offset:{256*2} sc1\ns_mov_b32 exec_hi, -1\ns_nop 3")
    for x in norm(2) + norm(3): a(x)
    a("s_mov_b32 exec_hi, 0")
    a(f"buffer_store_dwordx4 v[116:119], v15, s[16:19], s56 offen offset:{256*7} sc1")
    if OPT['gb'] == 3: signal(a, W_O)
    if not OPT['so']: a("s_waitcnt vmcnt(0)")
    a("s_mov_b64 exec, -1\ns_branch F_fin")
    for h in range(2):
        a(f"F_or{h}:")
        loads(h, *(("s36", "s37"), ("s35", "s44"))[h])
        a(f"s_waitcnt vmcnt(0)\ns_branch F_ov{h}")

def fin(a):
    a("F_fin:")
    stamp(a, 6)
    if OPT['eo'] == 0 or OPT['ek'] == 0:
        arrive(a, C_O)
        a("s_cmp_eq_u32 s47, 3\ns_cbranch_scc0 F_ot_end")
        if OPT['ek']: a("s_cmp_eq_u32 s30, 1\ns_cbranch_scc0 F_ot_end")
        flag_store(a, "s51")
    else:
        signal(a, C_O)
        a("s_waitcnt lgkmcnt(0)")
    a("F_ot_end:")
    stamp(a, 7)
    stamp_flush(a, 8, 1)
    a("s_endpgm")

def dma(a, base, j, v, srd_, soff):
    a(f"s_add_u32 m0, {base}, {1024*j}\ns_nop 0\nbuffer_load_dwordx4 v{v}, {srd_}, {soff} offen lds")
def issue_head(a):
    a("""
    s_lshl_b32 s34, s32, 7
    s_mul_i32 s35, s32, 245760
    s_mul_i32 s36, s32, 196608
    s_add_u32 s41, s33, s45
    s_add_u32 s42, s33, s46
    s_add_u32 s43, s33, s47
    """)
def issue_tail(a):
    a(f"""
    s_add_u32 s32, s32, 1
    s_cmp_eq_u32 s32, 10
    s_cselect_b32 s32, 0, s32
    s_add_u32 s33, s33, {SLOT}
    s_cmp_eq_u32 s33, {3*SLOT}
    s_cselect_b32 s33, 0, s33
    """)
def first_chunk(a, typ):
    nq = 5 if typ == 0 else 3
    nh = 2 if typ == 0 else 4
    for j in range(nh):
        if j == 0:
            if typ == 0:
                a(f"""
                s_lshl_b32 s37, s31, 4
                v_lshrrev_b32 v3, 3, v60
                v_add_u32 v3, s37, v3               ; row
                v_lshrrev_b32 v4, 2, v60
                v_and_b32 v4, 4, v4
                v_and_b32 v5, 7, v60
                v_xor_b32 v4, v4, v5
                v_mul_u32_u24 v3, 3072, v3
                v_lshl_add_u32 v3, v4, 4, v3
                v_add_u32 v19, s39, v3
                """)
            else:
                a(f"""
                s_lshl_b32 s37, s31, 4
                v_lshrrev_b32 v3, 4, v60
                v_lshlrev_b32 v4, 2, v3
                v_add_u32 v3, s37, v3               ; row
                v_and_b32 v5, 15, v60
                v_xor_b32 v4, v4, v5
                v_mul_u32_u24 v3, 3072, v3
                v_lshl_add_u32 v3, v4, 4, v3
                v_add_u32 v19, s39, v3
                """)
        else:
            a(f"v_add_u32 v{19+j}, {(8 if typ == 0 else 4)*3072*j}, v19")
        dma(a, "s43", j, 19 + j, "s[12:15]", "s36")
    a(f"s_mul_i32 s37, s31, {16*3840}\ns_add_u32 s38, s38, s37")
    for j in range(nq):
        a(f"v_add_u32 v2, {64*j}, v60")
        if typ == 0:
            a(f"""
            v_mul_u32_u24 v3, 3277, v2
            v_lshrrev_b32 v3, 16, v3            ; row
            v_mul_u32_u24 v4, 20, v3
            v_sub_u32 v4, v2, v4                ; pos
            v_mul_u32_u24 v5, 52, v4
            v_lshrrev_b32 v5, 8, v5             ; seg
            v_mul_u32_u24 v3, 3840, v3
            v_lshl_add_u32 v3, v4, 4, v3
            v_and_b32 v6, 1, v5
            v_mul_u32_u24 v6, 1200, v6
            v_lshrrev_b32 v5, 1, v5
            v_mul_u32_u24 v5, 80, v5
            v_add3_u32 v3, v3, v6, s38
            v_sub_u32 v{14+j}, v3, v5
            """)
        else:
            a(f"""
            v_mul_u32_u24 v3, 5462, v2
            v_lshrrev_b32 v3, 16, v3            ; row
            v_mul_u32_u24 v4, 12, v3
            v_sub_u32 v4, v2, v4                ; pos
            v_mul_u32_u24 v5, 43, v4
            v_lshrrev_b32 v5, 8, v5             ; seg
            v_sub_u32 v6, v4, v5
            v_mul_u32_u24 v3, 3840, v3
            v_lshl_add_u32 v3, v6, 4, v3
            v_add_u32 v{14+j}, s38, v3
            """)
        dma(a, "s42", j, 14 + j, "s[8:11]", "s35")

def issue_sub(a):
    if OPT['al']: a(f".p2align {OPT['al']}")
    a("F_issue:")
    issue_head(a)
    for j in range(4): dma(a, "s41", j, 10 + j, "s[4:7]", "s34")
    for j in range(3): dma(a, "s42", j, 14 + j, "s[8:11]", "s35")
    for j in range(2): dma(a, "s43", j, 19 + j, "s[12:15]", "s36")
    a("s_cmp_eq_u32 s30, 1\ns_cbranch_scc1 F_issue_b")
    for j in range(3, 5): dma(a, "s42", j, 14 + j, "s[8:11]", "s35")
    a("s_branch F_issue_e\nF_issue_b:")
    for j in range(2, 4): dma(a, "s43", j, 19 + j, "s[12:15]", "s36")
    a("F_issue_e:")
    issue_tail(a)
    a("s_setpc_b64 s[56:57]")
CALL = "s_call_b64 s[56:57], F_issue"

def cols_addr(a, typ):
    nql = 40 if typ == 0 else 24
    if typ == 0:
        a(f"""
        v_mul_u32_u24 v2, 26, v60
        v_lshrrev_b32 v2, 8, v2             ; seg
        v_mul_u32_u24 v3, 10, v2
        v_sub_u32 v3, v60, v3               ; w
        v_and_b32 v4, 1, v2
        v_mul_u32_u24 v4, 640, v4
        v_lshrrev_b32 v2, 1, v2
        v_mul_u32_u24 v2, 40, v2
        v_lshl_add_u32 v2, v3, 2, v2
        s_mul_i32 s37, s29, 80
        s_add_u32 s37, s37, 640
        v_add3_u32 v2, v2, v4, s37          ; colQ
        s_lshl_b32 s37, s29, 6
        s_add_u32 s37, s37, {1024 - 4*nql}
        """)
    else:
        a(f"""
        v_mul_u32_u24 v2, 22, v60
        v_lshrrev_b32 v2, 8, v2             ; seg
        v_lshlrev_b32 v2, 1, v2
        v_sub_u32 v2, v60, v2
        s_mul_i32 s37, s29, 80
        v_lshl_add_u32 v2, v2, 2, s37       ; colQ
        s_lshl_b32 s37, s29, 7
        s_sub_u32 s37, s37, {4*nql}
        """)
    a(f"""
    v_lshl_add_u32 v3, v60, 2, s37          ; w1 column
    v_add_u32 v4, 1920, v3
    v_lshlrev_b32 v3, 1, v3
    v_mov_b32 v5, 0x40000000
    v_cmp_gt_u32 vcc, {nql}, v60
    v_mov_b32 v6, {2*SLOT + HB[typ] - 8*nql}
    v_mov_b32 v7, {2*SLOT + QB}
    v_cndmask_b32 v2, v4, v2, vcc
    v_cndmask_b32 v51, v3, v5, vcc
    v_cndmask_b32 v6, v6, v7, vcc
    v_lshl_add_u32 v6, v60, 3, v6           ; A0
    v_mov_b32 v7, {HP[typ]}
    v_mov_b32 v8, {QP[typ]}
    v_cndmask_b32 v7, v7, v8, vcc           ; pitch
    v_mov_b32 v8, 64
    v_cndmask_b32 v8, v8, v56, vcc          ; X
    v_lshlrev_b32 v50, 2, v2
    """)
    for k in range(5):
        xm = ((k >> 1) & 1) if typ == 0 else (k & 3)
        a(f"v_mul_u32_u24 v{40+k}, {xm}, v8\nv_xor_b32 v{40+k}, v{40+k}, v6\nv_mad_u32_u24 v{40+k}, v7, {k}, v{40+k}")

def helper(a):
    a(f"""
    F_helper:
    s_sub_u32 s31, s31, 4
    s_lshl_b32 s37, s28, 7
    s_lshl_b32 s38, s31, 5
    s_add_u32 s37, s37, s38             ; first token row
    v_lshrrev_b32 v2, 3, v60
    v_add_u32 v2, s37, v2
    v_mul_u32_u24 v2, 1280, v2
    v_lshrrev_b32 v3, 4, v60
    v_and_b32 v4, 7, v60
    v_xor_b32 v3, v3, v4
    v_lshl_add_u32 v10, v3, 4, v2
    v_xor_b32 v3, 4, v3
    v_lshl_add_u32 v11, v3, 4, v2
    v_add_u32 v11, {8*1280}, v11
    v_add_u32 v12, {16*1280}, v10
    v_add_u32 v13, {16*1280}, v11
    s_lshl_b32 s45, s31, 12
    s_cmp_eq_u32 s30, 1
    s_cselect_b32 s46, 3072, 5120
    s_cselect_b32 s47, 4096, 2048
    s_cselect_b32 s37, {HB[1]}, 0
    s_cselect_b32 s38, 0, {HB[0]}
    s_mul_i32 s46, s46, s31
    s_add_u32 s46, s46, {QB}
    s_mul_i32 s47, s47, s31
    s_add_u32 s47, s47, s37
    s_add_u32 s47, s47, s38
    s_mov_b32 s33, {SLOT}
    """.replace("s_cselect_b32 s46, 3072, 5120", "s_cselect_b32 s46, 3, 5\ns_lshl_b32 s46, s46, 10\ns_cmp_eq_u32 s30, 1").replace("s_cselect_b32 s47, 4096, 2048", "s_cselect_b32 s47, 4, 2\ns_lshl_b32 s47, s47, 10\ns_cmp_eq_u32 s30, 1"))
    issue_head(a)
    a("s_mul_i32 s38, s29, 160\ns_waitcnt lgkmcnt(0)")
    stamp(a, 1)
    for j in range(4): dma(a, "s41", j, 10 + j, "s[4:7]", "s34")
    a("""
    s_cmp_eq_u32 s30, 1
    s_cbranch_scc1 F_hb
    s_add_u32 s38, s38, 1280
    s_lshl_b32 s39, s29, 7
    s_add_u32 s39, s39, 2048
    """)
    first_chunk(a, 0)
    a("v_mov_b32 v21, v19\nv_mov_b32 v22, v19\ns_branch F_hc\nF_hb:\ns_lshl_b32 s39, s29, 8")
    first_chunk(a, 1)
    a("v_mov_b32 v17, v14\nv_mov_b32 v18, v14\nF_hc:")
    issue_tail(a)
    a(CALL)
    a(f"""
    s_mov_b32 s40, s2
    s_mov_b32 s44, s31
    s_cmp_lt_u32 s31, 2
    s_cselect_b32 s58, 1, 0
    s_cbranch_scc1 F_wt_sel
    s_and_b32 s44, s2, 1
    s_lshr_b32 s40, s2, 1
    s_add_u32 s40, s40, {256 - 112}
    s_cmp_eq_u32 s31, 2
    s_cselect_b32 s58, 1, 0
    s_cmp_ge_u32 s2, 224
    s_cselect_b32 s58, s58, 0
    F_wt_sel:
    s_mul_i32 s49, s31, 5120
    s_add_u32 s49, s49, {L_STG}
    v_mov_b32 v62, 0
    v_mov_b32 v63, 0
    s_cmp_eq_u32 s58, 0
    s_cbranch_scc1 F_wt_skip1
    """)
    t = Asm(); t.nlabel = 900
    wt_task(t, "s40", "s44", "s49", 60, SW2, SWO, "s[16:19]", "FW")
    txt = t.text()
    import re
    remap = {20: 62, 21: 63, 22: 23, 23: 24, 24: 25, 25: 26, 26: 27}
    txt = re.sub(r"\bv(2[0-6])\b", lambda m: f"v{remap[int(m.group(1))]}", txt)
    a(txt)
    a(f"""
    F_wt_skip1:
    s_lshl_b32 s37, s29, 2
    s_add_u32 s37, s37, s31
    s_mul_i32 s37, s37, 800
    v_lshlrev_b32 v2, 3, v60
    buffer_load_dwordx2 v[30:31], v2, s[20:23], s37 offen
    buffer_load_dwordx2 v[32:33], v2, s[20:23], s37 offen offset:512
    v_mov_b32 v56, 0
    v_mov_b32 v57, 0
    v_mov_b32 v58, 0
    v_mov_b32 v59, 0
    s_mul_i32 s37, s31, 2880
    s_add_u32 s37, s37, {L_BD}
    v_lshl_add_u32 v2, v60, 4, s37
    ds_write_b128 v2, v[56:59]
    ds_write_b128 v2, v[56:59] offset:1024
    ds_write_b128 v2, v[56:59] offset:1856
    v_lshlrev_b32 v61, 2, v60
    v_min_u32 v2, 60, v61
    v_add_u32 v2, {L_CNT}, v2
    ds_write_b32 v2, v56
    v_mov_b32 v50, 0
    v_mov_b32 v51, 0
    s_cmp_eq_u32 s31, 3
    s_cbranch_scc0 F_ca2
    s_cmp_eq_u32 s30, 1
    s_cbranch_scc1 F_ca1
    """)
    cols_addr(a, 0)
    a("s_branch F_ca2\nF_ca1:")
    cols_addr(a, 1)
    a(f"""
    F_ca2:
    v_mov_b32 v49, {W_N}
    s_mov_b32 s40, {FL_S}
    s_cmp_eq_u32 s58, 1
    s_cbranch_scc1 F_wt_j1
    s_waitcnt vmcnt(13)
    F_wt_j1:
    s_waitcnt vmcnt(18) lgkmcnt(0)
    s_barrier
    {CALL}
    s_waitcnt vmcnt(13)
    s_barrier
    s_cmp_eq_u32 s58, 0
    s_cbranch_scc1 F_wt_skip2
    """)
    for nt in range(5):
        for u in range(2): a(f"ds_read_b64_tr_b16 {vr(64+4*nt+2*u,2)}, v62 offset:{u*640 + 8*nt}")
    a(f"{CALL}\ns_waitcnt lgkmcnt(0)")
    for nt in range(5):
        a(f"buffer_store_dwordx4 {vr(64+4*nt,4)}, v63, s[16:19], s{54 if nt < 4 else 55} offen offset:{(nt%4)*1024}{SC}")
    a(f"""
    s_waitcnt vmcnt(16)
    s_branch F_wt_j2
    F_wt_skip2:
    s_buffer_load_dword {NC}, {SDBG}, 0
    {CALL}
    s_cmp_eq_u32 s31, 3
    s_cbranch_scc0 F_ng_x
    s_mov_b32 s48, 0
    s_waitcnt lgkmcnt(0)
    s_cmp_eq_u32 {NC}, 0
    s_cbranch_scc0 F_ng_y
    F_ng:
    s_buffer_load_dword {NC}, {SDBG}, 0 glc
    s_add_u32 s48, s48, 1
    s_waitcnt lgkmcnt(0)
    s_cmp_ge_u32 s48, {TMO}
    s_cbranch_scc1 F_ng_y
    s_cmp_eq_u32 {NC}, 0
    s_cbranch_scc1 F_ng
    F_ng_y:
    v_mov_b32 v2, {NC}
    ds_write_b32 v49, v2
    F_ng_x:
    s_waitcnt vmcnt(11) lgkmcnt(0)
    F_wt_j2:
    s_barrier
    """)
    for k in range(3, 7):
        a(CALL)
        if k == 5: a(f"""
    s_sub_u32 s37, s31, 1
    s_lshl_b32 s37, s37, 6
    v_add_u32 v2, s37, v60
    v_and_b32 v2, 127, v2
    v_lshlrev_b32 v45, 3, v2
    v_lshlrev_b32 v46, 7, v2
    v_and_b32 v7, 14, v2
    v_lshl_add_u32 v46, v7, 3, v46
    v_add_u32 v46, {2*SLOT}, v46
    v_xor_b32 v47, 16, v46
    v_lshlrev_b32 v48, 2, v2
    v_add_u32 v48, {L_RSTD}, v48
    v_lshrrev_b32 v61, 2, v60
    v_lshlrev_b32 v61, 7, v61
    v_and_b32 v3, 3, v60
    v_lshl_add_u32 v61, v3, 4, v61
 """)
        a("s_waitcnt vmcnt(11)\ns_barrier")
    a(f"""
    s_cmp_eq_u32 s31, 3
    s_cbranch_scc1 F_pl
    {CALL}
    s_waitcnt vmcnt(11)
    s_branch F_pollx
    F_pl:
    buffer_load_dwordx4 v[36:39], v61, s[16:19], s40 offen sc1
    {CALL}
    s_mov_b32 s48, 0
    s_waitcnt vmcnt(11)
    F_poll:
    v_min3_u32 v2, v36, v37, v38
    v_max3_u32 v3, v36, v37, v38
    v_min_u32 v2, v2, v39
    v_max_u32 v3, v3, v39
    v_cmp_eq_u32 s[38:39], {NC}, v2
    v_cmp_eq_u32 vcc, {NC}, v3
    s_and_b64 vcc, vcc, s[38:39]
    s_add_u32 s48, s48, 1
    s_cmp_ge_u32 s48, {TMO}
    s_cbranch_scc1 F_pollx
    s_cmp_eq_u64 vcc, -1
    s_cbranch_scc1 F_pollx
    buffer_load_dwordx4 v[36:39], v61, s[16:19], s40 offen sc1
    s_waitcnt vmcnt(0)
    s_branch F_poll
    F_pollx:
    s_barrier
    """)
    a(CALL)
    a(f"""
    s_cmp_eq_u32 s31, 3
    s_cbranch_scc1 F_ldc
    s_lshl_b32 s38, s28, 10
    buffer_load_dwordx2 v[64:65], v45, s[16:19], s38 offen sc1
    s_waitcnt vmcnt(12)
    s_branch F_ldx
    F_ldc:
    s_mov_b32 s37, {WS_COLS}
    """)
    for i in range(8): a(f"buffer_load_dwordx4 {vr(64+4*i,4)}, v50, s[16:19], s37 offen sc1\ns_add_u32 s37, s37, {3456*4}")
    a(f"""
    buffer_load_dwordx2 v[52:53], v51, s[24:27], 0 offen
    s_waitcnt vmcnt(20)
    F_ldx:
    s_barrier
    ds_read_b32 v36, v49
    s_and_b32 s37, s31, 1
    s_mul_i32 s37, s37, {20*96 + 40}
    s_lshr_b32 s38, s31, 1
    s_mul_i32 s38, s38, 3840
    s_add_u32 s37, s37, s38
    s_add_u32 s37, s37, {L_BD}
    v_mul_u32_u24 v2, 205, v60
    v_lshrrev_b32 v2, 10, v2
    v_mul_u32_u24 v2, 56, v2
    v_lshl_add_u32 v2, v60, 3, v2
    v_add_u32 v28, s37, v2
    v_add_u32 v3, 64, v60
    v_mul_u32_u24 v2, 205, v3
    v_lshrrev_b32 v2, 10, v2
    v_mul_u32_u24 v2, 56, v2
    v_lshl_add_u32 v2, v3, 3, v2
    v_add_u32 v29, s37, v2
    ds_write_b64 v28, v[30:31]
    v_cmp_gt_u32 vcc, 36, v60
    s_and_saveexec_b64 s[48:49], vcc
    ds_write_b64 v29, v[32:33]
    s_mov_b64 exec, -1
    s_mov_b32 s39, 0xffff0000
    """)
    p2_ids(a, "s28", "s29")
    a("v_mov_b32 v14, v60")
    p2_setup(a, "s31", 14)
    n1, n2 = OPT['w8'], OPT['w8'] + OPT['w9']
    wl = [ldW(i, nt, SC) for i in range(4) for nt in range(5)] + [wdma(0, j, nt) for j in range(2) for nt in range(5)]
    for x in wl[:n1]: a(x)
    p2_epi_addr(a, "s31", 14)
    a(f"""
    s_mul_i32 s37, s31, 5120
    s_add_u32 s57, s31, 1
    s_mul_i32 s58, s57, 20480
    s_lshl_b32 s57, s57, 12
    s_lshr_b32 s55, s28, 1
    s_lshl_b32 s55, s55, 2
    s_add_u32 s55, s55, s31
    s_lshl_b32 s55, s55, 8
    s_add_u32 s55, s55, {FL_O}
    s_waitcnt lgkmcnt(0)
    v_readfirstlane_b32 {NC}, v36
    s_cmp_eq_u32 s31, 3
    s_cbranch_scc1 F_w9
    s_waitcnt vmcnt({1+n1})
    F_w9:
    s_waitcnt vmcnt({9+n1})
    s_barrier
    s_waitcnt vmcnt({n1})
    s_cbranch_scc1 F_prc
    s_cmp_eq_u32 s31, 0
    s_cbranch_scc1 F_prx
    v_rcp_f32 v66, v65
    v_sub_f32 v64, 0, v64
    v_cvt_pk_bf16_f32 v68, v64, v64
    v_and_b32 v67, s39, v68
    v_sub_f32 v64, v64, v67
    v_cvt_pk_bf16_f32 v69, v64, v66
    v_and_b32 v67, s39, v69
    v_sub_f32 v66, v66, v67
    v_cvt_pk_bf16_f32 v70, v66, v56
    v_mov_b32 v71, 0
    ds_write_b128 v46, v[68:71]
    ds_write_b128 v47, v[56:59]
    ds_write_b32 v48, v65
    s_branch F_prx
    F_prc:
    """)
    for i in range(1, 8):
        for q in range(2): a(f"v_pk_add_f32 {vr(64+2*q,2)}, {vr(64+2*q,2)}, {vr(64+4*i+2*q,2)}")
    a("""
    v_cvt_pk_bf16_f32 v70, v64, v65
    v_cvt_pk_bf16_f32 v71, v66, v67
    v_lshlrev_b32 v72, 16, v70
    v_and_b32 v73, s39, v70
    v_lshlrev_b32 v74, 16, v71
    v_and_b32 v75, s39, v71
    v_sub_f32 v64, v64, v72
    v_sub_f32 v65, v65, v73
    v_sub_f32 v66, v66, v74
    v_sub_f32 v67, v67, v75
    v_cvt_pk_bf16_f32 v72, v64, v65
    v_cvt_pk_bf16_f32 v73, v66, v67
    v_cmp_gt_u32 vcc, 56, v60
    s_and_saveexec_b64 s[48:49], vcc
    ds_write_b64 v40, v[70:71]
    ds_write_b64 v41, v[72:73]
    ds_write_b64 v42, v[70:71]
    ds_write_b64 v43, v[52:53]
    ds_write_b64 v44, v[52:53]
    s_mov_b64 exec, -1
    F_prx:
    """)
    for x in wl[n1:n2]: a(x)
    a("v_add_u32 v15, s37, v6\nv_add_u32 v13, 61440, v15\nv_add_u32 v1, 112640, v15\ns_waitcnt lgkmcnt(0)\ns_barrier\ns_barrier")
    if OPT['gh'] == 3:
        a(f"s_mul_i32 s36, s30, {C_H - W_O}\ns_add_u32 s36, s36, {W_O}")
        spin(a, "s36", 4, va=10)
    elif OPT['gh']: spin(a, C_H if OPT['gh'] == 1 else W_O, 4, va=10)
    for x in wl[n2:]: a(x)

def wslot(typ, j): return j*20480 + (128*PV_PITCH if typ == 0 and j >= 2 else 0)
def wdma(typ, j, nt):
    t = f"s_add_u32 m0, s37, {wslot(typ, j) + (4096 if nt == 4 else 0)}\ns_nop 0\n" if nt in (0, 4) else ""
    if nt < 4: return t + f"buffer_load_dwordx4 v6, s[16:19], s33 offen offset:{nt*1024}{NS[OPT['nsw']]} lds"
    return t + f"buffer_load_dwordx4 v7, s[16:19], s33 offen{NS[OPT['nsw']]} lds\ns_add_u32 s33, s33, 20480"

class VM:
    def __init__(self, a): self.a = a; self.q = []
    def issue(self, tag, text): self.a(text); self.q.append(tag)
    def wait(self, tags, extra=""):
        last = max(i for i, t in enumerate(self.q) if t in tags)
        n = len(self.q) - 1 - last
        assert n < 64
        self.a(f"s_waitcnt vmcnt({n}){extra}")
def phase2(a):
    a("F_p2:\ns_cmp_eq_u32 s30, 1\ns_cbranch_scc1 F_p2_1")
    for typ in range(2):
        a(f"F_p2_{typ}:")
        phase2_t(a, typ)
        if typ == 0: a("s_branch F_p2_e")
    a("F_p2_e:")
    stamp(a, 7)
    a("s_waitcnt lgkmcnt(0)\ns_barrier")
    for m in range(3):
        for nt in range(5): a(f"ds_read_b128 {vr(20+20*m+4*nt,4)}, v{10+m} offset:{m*20480 + nt*1024}")
    for m in range(3):
        a(f"s_waitcnt lgkmcnt({10-5*m})")
        for q in range(10): a(f"v_pk_add_f32 {vr(AC2+2*q,2)}, {vr(AC2+2*q,2)}, {vr(20+20*m+2*q,2)}")
    for q in range(10): a(f"v_cvt_pk_bf16_f32 v{AC2+q}, v{AC2+2*q}, v{AC2+2*q+1}")
    a(f"buffer_store_dwordx4 {vr(AC2,4)}, v8, {SOUT}, s34 offen\nbuffer_store_dwordx4 {vr(AC2+4,4)}, v8, {SOUT}, s34 offen offset:16\nbuffer_store_dwordx2 {vr(AC2+8,2)}, v8, {SOUT}, s34 offen offset:32")
    a("s_add_u32 s31, s31, 4")
    stamp_flush(a, 8, 1)
    a("s_endpgm")
    for x in ool: a(x)

ool = []
def phase2_t(a, typ):
    nl = OPT['nlb'] if typ else OPT['nla']
    LA = OPT['la']
    vm = VM(a)
    for i in range(4):
        for nt in range(5): vm.q.append(("W", i))
    for j in range(nl):
        for nt in range(5):
            if j < 2: vm.q.append(("WL", j))
            else: vm.issue(("WL", j), wdma(typ, j, nt))
    stamp(a, 2)
    a(f"s_lshr_b32 s54, s28, 1\ns_lshl_b32 s54, s54, 11\ns_add_u32 s54, s54, {FL_H}\ns_mov_b64 s[38:39], {'0xff00' if OPT['bf'] else '0xffff'}\ns_mov_b64 s[40:41], 0xff")
    if not (typ == 1 and OPT['bp']):
        a(f"s_cmp_eq_u32 s31, 0\ns_cbranch_scc0 F_p2_wait{typ}")
        poll(a, "s54", "s[38:39]", 14, va=10)
        setword(a, W_H, va=10)
    a(f"F_p2_wait{typ}:")
    spin(a, W_H, 1, va=10)
    stamp(a, 3)
    if typ == 0 and OPT['ga']: spin(a, C_O, 4, va=10)
    gate = 4 + nl if typ == 1 and OPT['gb'] else 99
    for i in range(LA):
        for m in range(4): vm.issue(("A", i), ldA(i, m, SC))
    xe = AR + 32
    def lds_rd(i, nt):
        o = wslot(typ, i - 4) + nt*1024
        r, o = (15, o) if o < 61440 else (13, o - 61440) if o < 112640 else (1, o - 112640)
        return f"ds_read_b128 {vr(WR+20*(i%4)+4*nt,4)}, v{r} offset:{o}"
    FS = OPT['fast']
    def xadd():
        vm.wait(["x"])
        a("s_mov_b32 s39, 0xffff0000")
        for q in range(10):
            x = xe + q; b = xe + 10 + q
            t = xe + 20
            a(f"v_lshlrev_b32 v{t}, 16, v{x}\nv_and_b32 v{t+1}, s39, v{x}\nv_lshlrev_b32 v{t+2}, 16, v{b}\nv_and_b32 v{t+3}, s39, v{b}")
            a(f"v_pk_add_f32 {vr(t,2)}, {vr(t,2)}, {vr(t+2,2)}\nv_pk_add_f32 {vr(AC2+2*q,2)}, {vr(AC2+2*q,2)}, {vr(t,2)}")
    def prep():
        a("s_mov_b32 s48, 0")
        for m in range(1, 4):
            a(f"s_sub_u32 s36, s31, {m}\ns_and_b32 s36, s36, 3\ns_mul_i32 s36, s36, 5120\nv_add_u32 v{9+m}, s36, v6")
    def fo_issue():
        a("v_and_b32 v0, 1, v14\nv_lshlrev_b32 v0, 7, v0")
        vm.issue("fo", "buffer_load_dword v0, v0, s[16:19], s55 offen sc1")
    def steps(i0, i1, fast):
      tg = f"{typ}{'f' if fast else ''}"
      for i in range(i0, i1):
        if i == 12 and not fast:
            if not FS: xadd()
            stamp(a, 5)
            if typ == 0: spin(a, C_O, 4, va=10)
            vm.wait(["fo"])
            a(f"v_cmp_eq_u32 vcc, {NC}, v0\ns_cmp_eq_u64 vcc, -1\ns_cbranch_scc1 F_fo{typ}")
            poll(a, "s55", "3", 14, va=10)
            a(f"F_fo{typ}:")
            stamp(a, 6)
            a("s_mov_b32 s56, s32")
            for k in range(12, 17):
                for m in range(4): vm.issue(("A", k), ldA(k, m, SC))
            prep()
        if i == 12 and fast:
            stamp(a, 5)
            if typ == 0: spin(a, C_O, 4, va=10)
            prep()
        if i == gate:
            spin(a, C_O if OPT['gb'] == 2 else W_O, 4, va=10)
            for k in range(gate, gate + 4):
                for nt in range(5): vm.issue(("W", k), ldW(k, nt, SC))
            a("s_mov_b32 s52, s33\ns_add_u32 s33, s33, 5120")
            for nt in range(5): vm.issue(("W", 16), wdma(typ, 3, nt))
            a("s_mov_b32 s33, s52")
        if OPT['bf'] and i == OPT['fa']:
            a("v_and_b32 v12, 7, v14\nv_lshlrev_b32 v12, 7, v12")
            vm.issue("fa", "buffer_load_dword v12, v12, s[16:19], s54 offen sc1")
        if OPT['bf'] and i == 8 - LA:
            vm.wait(["fa"])
            a(f"v_cmp_eq_u32 vcc, {NC}, v12\ns_cmp_eq_u64 vcc, -1\ns_cbranch_scc1 F_fa{typ}")
            poll(a, "s54", "s[40:41]", 14, va=10)
            a(f"F_fa{typ}:")
        ex = ""
        if i == 16: ex = " lgkmcnt(0)"
        if 4 <= i < 4 + nl: ex = f" lgkmcnt({5*(min(i + 3, 3 + nl) - i)})"
        vm.wait([("A", i), ("W", i)] + ([("W", 16)] if i == 12 else []), ex)
        if i == 0: stamp(a, 4)
        if i >= 12 and OPT['so']:
            b = AR + 16*(i % 5)
            a(f"F_v{tg}_{i}:\nv_max3_u32 v0, v{b+3}, v{b+7}, v{b+11}\nv_max_u32 v0, v0, v{b+15}\nv_cmp_eq_u32 vcc, -1, v0\ns_cbranch_vccnz F_r{tg}_{i}\nF_g{tg}_{i}:")
            t = f"F_r{tg}_{i}:\ns_add_u32 s48, s48, 1\ns_cmp_ge_u32 s48, {TMO}\ns_cbranch_scc1 F_g{tg}_{i}\ns_add_u32 s36, s56, {(i-12)*1024}\n"
            for m in range(4): t += f"buffer_load_dwordx4 {vr(b+4*m,4)}, v{2+m}, s[16:19], s36 offen sc1\n"
            ool.append(t + f"s_waitcnt vmcnt(0)\ns_branch F_v{tg}_{i}")
        if i == 16:
            for m in (1, 2, 3, 0):
                for nt in range(5):
                    d = vr(AC2 + 20*m + 4*nt, 4)
                    a(f"v_mfma_f32_16x16x32_bf16 {d}, {vr(WR+20*(i%4)+4*nt,4)}, {vr(AR+16*(i%5)+4*m,4)}, {d}")
                    pm = (m - 1) % 4
                    if pm == 1 and nt == 0: a('s_nop 2')
                    if pm: a(f"ds_write_b128 v15, {vr(AC2+20*pm+4*nt,4)} offset:{(pm-1)*20480 + nt*1024}")
            continue
        for nt in range(5):
            for m in range(4):
                d = vr(AC2 + 20*m + 4*nt, 4)
                a(f"v_mfma_f32_16x16x32_bf16 {d}, {vr(WR+20*(i%4)+4*nt,4)}, {vr(AR+16*(i%5)+4*m,4)}, {'0' if i == 0 else d}")
                if m == 1 and nt < 4:
                    if i + LA < 12: vm.issue(("A", i + LA), ldA(i + LA, nt, SC))
                    elif fast and i + 4 < 17: vm.issue(("A", i + 4), ldA(i + 4, nt, SC))
            if i + 4 < 4 + nl: a(lds_rd(i + 4, nt))
            elif i == 12: a(lds_rd(7, nt).replace(vr(WR+60+4*nt,4), vr(WR+4*nt,4)))
            elif i + 4 < 16 and not (gate <= i + 4 < gate + 4): vm.issue(("W", i + 4), ldW(i + 4, nt, SC))
        if i == 7 and gate == 99:
            a("s_mov_b32 s52, s33\ns_add_u32 s33, s33, 20480")
            for nt in range(5): vm.issue(("W", 16), wdma(typ, 3, nt))
            a("s_mov_b32 s33, s52")
        if i == 11 and not fast: fo_issue()
        if i == 8:
            for k, (n, o) in enumerate(((4, 0), (4, 16), (2, 32))):
                vm.issue("x", f"buffer_load_dwordx{n} {vr(xe+4*k,n)}, v8, s[4:7], s34 offen offset:{o}")
            for k, (n, o) in enumerate(((4, 0), (4, 16), (2, 32))):
                vm.issue("x", f"buffer_load_dwordx{n} {vr(xe+10+4*k,n)}, v9, {SB2}, s35 offen offset:{o}")
        if FS and i == FS - 2: fo_issue()
    if not FS:
        steps(0, 17, False)
        return
    steps(0, FS, False)
    xadd()
    vm.wait(["fo"])
    a(f"v_cmp_eq_u32 vcc, {NC}, v0\ns_cmp_eq_u64 vcc, -1\ns_cbranch_scc1 F_fast{typ}")
    q0 = list(vm.q)
    steps(FS, 17, False)
    a(f"s_branch F_p2_e\nF_fast{typ}:")
    vm.q = q0
    stamp(a, 6)
    a("s_mov_b32 s56, s32")
    for k in range(12, FS + 4):
        for m in range(4): vm.issue(("A", k), ldA(k, m, SC))
    steps(FS, 17, True)

def gen_f1():
    a = Asm()
    stamp(a, 0)
    srd(a, 4, 0, NB_X); srd(a, 8, 8, NB_WQKV); srd(a, 12, 40, NB_W1); srd(a, 16, 88, WS_END); srd(a, 20, 16, NB_WPHI); srd(a, 24, 48, NB_B1)
    srd(a, 60, 56, NB_W2); srd(a, 64, 24, NB_WO); srd(a, 68, 72, NB_X); srd(a, 72, 64, NB_B2); srd(a, 76, 80, 256)
    a(f"""
    s_cmp_ge_u32 s2, 256
    s_cbranch_scc1 F_end
    v_lshrrev_b32 v1, 6, v0
    v_and_b32 v60, 63, v0
    s_and_b32 s33, s2, 7                ; xcd
    v_readfirstlane_b32 s31, v1
    s_lshr_b32 s34, s2, 3               ; idx
    s_and_b32 s28, s33, 1
    s_lshl_b32 s28, s28, 3
    s_and_b32 s35, s34, 7
    s_add_u32 s28, s28, s35             ; rb
    s_lshr_b32 s35, s34, 3              ; jj
    s_lshr_b32 s30, s35, 1              ; type
    s_and_b32 s35, s35, 1
    s_and_b32 s29, s33, 6
    s_add_u32 s29, s29, s35             ; g
    s_mov_b32 s32, s33
    s_cmp_lt_u32 s31, 4
    s_cbranch_scc1 F_comp
    """)
    helper(a)
    phase2(a)
    issue_sub(a)
    a(f"""
    F_comp:
    s_lshl_b32 s33, s2, 2
    s_add_u32 s33, s33, s31
    s_cmp_eq_u32 s33, 3
    s_cbranch_scc0 F_nonce_x
    s_mov_b32 s34, {WS_NONCE}
    s_waitcnt lgkmcnt(0)
    s_buffer_load_dword s35, s[16:19], s34 glc
    v_mov_b32 v3, 0
    s_waitcnt lgkmcnt(0)
    s_add_u32 s35, s35, 1
    s_max_u32 s35, s35, 1
    v_mov_b32 v2, s35
    s_mov_b64 exec, 1
    buffer_store_dword v2, v3, {SDBG}, 0 offen sc1
    buffer_store_dword v2, v3, s[16:19], s34 offen sc1
    s_mov_b64 exec, -1
    F_nonce_x:
    """)
    if OPT['cpf'] == 2: code_touch(a, "F_ct"); a("v_mov_b32 v24, v21")
    phase0_issue(a)
    if OPT['pf1'] == 1: a('s_waitcnt lgkmcnt(0)'); l2_prefetch(a)
    a(f"""
    v_lshrrev_b32 v61, 5, v60
    v_bfe_u32 v62, v60, 2, 2
    v_lshl_add_u32 v61, v61, 3, v62     ; 8hf + j
    v_and_b32 v62, 1, v60               ; c&1
    v_bfe_u32 v63, v60, 4, 1
    v_bfe_u32 v2, v60, 1, 1
    v_lshl_add_u32 v63, v63, 1, v2      ; 2gg + (c>>1)
    v_and_b32 v2, 31, v60
    s_lshl_b32 s43, s31, 5
    v_add_u32 v2, s43, v2
    v_lshrrev_b32 v3, 5, v60
    v_bfe_u32 v4, v2, 1, 3
    v_xor_b32 v3, v3, v4
    v_lshlrev_b32 v3, 4, v3
    v_lshl_add_u32 v{XA}, v2, 7, v3
    v_lshlrev_b32 v{RSTD}, 2, v2
    v_add_u32 v{RSTD}, {L_RSTD}, v{RSTD}
    v_add_u32 v{XA}, {SLOT}, v{XA}
    v_xor_b32 v{XA+1}, 32, v{XA}
    v_xor_b32 v{XA+2}, 64, v{XA}
    v_xor_b32 v{XA+3}, 96, v{XA}
    v_lshrrev_b32 v12, 5, v60
    v_cmp_eq_u32 vcc, v12, v62
    v_bfe_u32 v13, v60, 2, 2
    v_mul_u32_u24 v13, 96, v13
    v_cndmask_b32 v12, 2, v12, vcc
    v_mul_u32_u24 v12, 3840, v12
    v_lshl_add_u32 v13, v63, 3, v13
    v_add_u32 v{BDA}, v12, v13
    v_add_u32 v{BDA}, {L_BD}, v{BDA}
    s_cmp_eq_u32 s30, 1
    s_cbranch_scc1 F_as1
    """)
    addr_setup(a, 0)
    a("s_branch F_as2\nF_as1:")
    addr_setup(a, 1)
    a("F_as2:")
    for i in range(112): a(f"v_mov_b32 v{ACC+i}, 0")
    if OPT['p0'] == 2 and not OPT['pe']: a("s_waitcnt vmcnt(0)"); phase0_finish(a)
    if OPT['p0'] == 2 and OPT['pe']: a("s_waitcnt vmcnt(0)\ns_call_b64 s[58:59], P0_fin")
    if OPT['pf1'] == 2: a('s_waitcnt lgkmcnt(0)'); l2_prefetch(a)
    flag_addrs(a)
    a(f"""
    s_waitcnt lgkmcnt(0)
    s_mov_b32 s40, 0
    s_mov_b32 s57, {4 | (1 << OPT['cl']) | (1 << OPT['ct']) | (2 if OPT['p0'] == 1 else 0)}
    s_mov_b32 s42, 1
    s_mov_b32 s45, {SLOT}
    s_cmp_eq_u32 s30, 1
    s_cbranch_scc1 F_c1
    """)
    compute(a, 0)
    compute(a, 1)
    fin(a)
    if OPT['p0'] == 1 or OPT['pe']:
        a("P0_fin:")
        phase0_finish(a)
        a("s_setpc_b64 s[58:59]")
    a("F_end:\ns_endpgm")
    return a.text()

def build():
    t = gen_f1()
    for e in check_hazards(t): print(e)
    return file_text([f"; @launch grid=(256,1,1) block=(512,1,1) lds={F_LDS}"], [(NAME + "_kernel", t, 256, 102, 256)])
if __name__ == "__main__":
    for arg in list(sys.argv[1:]):
        if "=" in arg:
            k, v = arg.split("="); OPT[k] = int(v); sys.argv.remove(arg)
    out = sys.argv[1] if len(sys.argv) > 1 else f"cdna_kernels/{NAME}.s"
    open(out, "w").write(build())
```

```python
import sys
sys.path.insert(0, "gen")
import asmlib
if "--stamps" in sys.argv: asmlib.STAMPS = True; sys.argv.remove("--stamps")
from asmlib import *
from layout import *
from k0 import srd, dpp_add
from k1 import ACC, SET, XA, QA, HA, RSTD, BDA, LOG2E, tile_reads, mfma_step, softmax
from k2b import wt_task, wt_finish, p2_setup, p2_epi_addr, p2_final, AR, WR, AC2
import k2b
NS = {0: " sc1", 1: "", 2: " nt", 3: " sc0"}
def ldA(i, m, sc):
    t = k2b.ldA(i, m, NS[OPT['nsa']])
    if i == 11: t = t.replace("s32, 4096", "s32, s57")
    if i > 11: t = t.replace("s32, 4096", "s32, 1024")
    return t
def ldW(i, nt, sc):
    t = k2b.ldW(i, nt, NS[OPT['nsw']])
    if i == 11: t = t.replace("s33, 20480", "s33, s58")
    if i > 11: t = t.replace("s33, 20480", "s33, 5120")
    return t
SC = " sc1"
SW2, SWO, SOUT, SB2, SDBG = "s[60:63]", "s[64:67]", "s[68:71]", "s[72:75]", "s[76:79]"
C_H, C_PV, W_K2, W_KV, C_OB, C_O, W_H, W_O, W_N = [L_CNT + 4*i for i in range(9)]
FL_S = WS_FLAG + 0x2000
WS_NONCE = WS_FLAG + 0x4000
NC = "s53"
TMO = 1 << 18
OPT = dict(pfw=0, pfa=0, defer=1, pf1=0, w8=10, w9=20, prio=1, nla=4, nlb=7, spoll=0, hfa=0, la=4, gh=1, ga=1, gb=0, hfb=1, pd=1, ek=1, eo=0, il=1, bf=1, w16=1, fa=2, map=0, bp=0, k2=0, fast=0, cpf=1, p0=2, hb2=1, cl=8, ct=4, so=0, tw=0, al=0, pe=1, dg=0, nsa=0, nsw=0)
def dstamp(a, i):
    if OPT['dg']: stamp(a, i)
PVB = 40960

def arrive(a, off, va=1):
    a(f"""
    v_mov_b32 v{va}, 1
    v_mov_b32 v{va+1}, {off}
    s_mov_b64 exec, 1
    ds_add_rtn_u32 v{va+2}, v{va+1}, v{va}
    s_waitcnt lgkmcnt(0)
    s_mov_b64 exec, -1
    v_readfirstlane_b32 s47, v{va+2}
    """)
def signal(a, off, va=1):
    a(f"v_mov_b32 v{va}, 1\nv_mov_b32 v{va+1}, {off}\ns_mov_b64 exec, 1\nds_add_u32 v{va+1}, v{va}\ns_mov_b64 exec, -1")
def spin(a, off, val, va=1):
    L = a.label("spin")
    a(f"""
    v_mov_b32 v{va+1}, {off}
    s_mov_b32 s48, 0
    {L}:
    ds_read_b32 v{va+2}, v{va+1}
    s_add_u32 s48, s48, 1
    s_waitcnt lgkmcnt(0)
    v_readfirstlane_b32 s47, v{va+2}
    s_cmp_ge_u32 s48, {TMO}
    s_cbranch_scc1 {L}_x
    {f's_cmp_lt_u32 s47, {val}' if val else 's_andn2_b32 s47, s55, s47'}
    s_cbranch_scc1 {L}
    {L}_x:
    """)
def setword(a, off, va=1):
    a(f"v_mov_b32 v{va}, 1\nv_mov_b32 v{va+1}, {off}\nds_write_b32 v{va+1}, v{va}\ns_waitcnt lgkmcnt(0)")
def flag_store(a, soff, va=1):
    a(f"v_mov_b32 v{va}, {NC}\nv_mov_b32 v{va+1}, 0\ns_mov_b64 exec, 1\nbuffer_store_dword v{va}, v{va+1}, s[16:19], {soff} offen sc1\ns_mov_b64 exec, -1")
def poll(a, soff, mask, lane, va=1, pub=None):
    L = a.label("poll")
    pd = OPT['pd']
    R = [va + 1, va + 2] + [va + 4 + i for i in range(2)] if va == 1 else [va + 1, va + 2, 16, 17]
    a(f"""
    v_lshlrev_b32 v{va}, 7, v{lane}
    s_mov_b32 s48, 0
    {f'v_mov_b32 v{va+3}, {pub}' if pub else ''}
    s_mov_b64 exec, {mask}
    """)
    ld = lambda k: f"buffer_load_dword v{R[k]}, v{va}, s[16:19], {soff} offen sc1"
    for k in range(pd - 1): a(ld(k) + "\ns_nop 7\ns_nop 7" * 0)
    a(f"{L}:")
    for k in range(pd):
        a(f"""
        {ld((k + pd - 1) % pd)}
        s_add_u32 s48, s48, 1
        s_waitcnt vmcnt({pd-1})
        v_cmp_eq_u32 vcc, {NC}, v{R[k]}
        s_cmp_ge_u32 s48, {TMO}
        s_cbranch_scc1 {L}_x
        """)
        if pub: a(f"v_mov_b32 v{R[k]}, vcc_lo\nds_write_b32 v{va+3}, v{R[k]}\ns_waitcnt lgkmcnt(0)")
        a(f"s_cmp_eq_u64 vcc, {mask}")
        a(f"s_cbranch_scc0 {L}" if k == pd - 1 else f"s_cbranch_scc1 {L}_x")
    a(f"{L}_x:\ns_mov_b64 exec, -1")

def early_flag(a):
    L = a.label("ef")
    a(f"s_cmp_eq_u32 s31, 0\ns_cbranch_scc0 {L}")
    flag_store(a, "s51")
    a(f"{L}:")
def spoll(a, soff, regs):
    L = a.label("spoll")
    a(f"s_mov_b32 s48, 0\n{L}:")
    for i, r in enumerate(regs): a(f"s_buffer_load_dword s{r}, s[16:19], {soff} offset:{128*i} glc")
    a(f"s_add_u32 s48, s48, 1\ns_cmp_ge_u32 s48, {TMO}\ns_waitcnt lgkmcnt(0)\ns_cbranch_scc1 {L}_x")
    for r in regs: a(f"s_cmp_eq_u32 s{r}, {NC}\ns_cbranch_scc0 {L}")
    a(f"{L}_x:")

def p2_ids(a, rg, cg):
    if OPT['map'] == 1:
        a(f"s_and_b32 s36, s2, 7\ns_lshl_b32 s36, s36, 2\ns_bfe_u32 s37, s2, 0x20003\ns_add_u32 {rg}, s36, s37\ns_lshr_b32 {cg}, s2, 5")
        return
    if OPT['map'] == 2:
        a(f"s_bfe_u32 s36, s2, 0x10002\ns_lshl_b32 s36, s36, 4\ns_bfe_u32 s37, s2, 0x40003\ns_add_u32 {rg}, s36, s37\ns_and_b32 s36, s2, 3\ns_lshl_b32 s36, s36, 1\ns_lshr_b32 {cg}, s2, 7\ns_add_u32 {cg}, {cg}, s36")
        return
    a(f"""
    s_and_b32 s36, s2, 7
    s_lshr_b32 s37, s2, 3
    s_lshr_b32 {rg}, s36, 1
    s_lshl_b32 {rg}, {rg}, 3
    s_and_b32 s38, s37, 7
    s_add_u32 {rg}, {rg}, s38
    s_and_b32 {cg}, s36, 1
    s_lshl_b32 {cg}, {cg}, 2
    s_lshr_b32 s38, s37, 3
    s_add_u32 {cg}, {cg}, s38
    """)

def phase0_issue(a):
    a(f"""
    s_cmp_ge_u32 s31, 2
    s_cbranch_scc1 P0_cols
    s_lshl_b32 s33, s2, 3
    s_lshl_b32 s34, s31, 2
    s_add_u32 s33, s33, s34
    v_lshrrev_b32 v65, 4, v60
    v_add_u32 v65, s33, v65
    v_and_b32 v66, 15, v60
    v_mul_u32_u24 v64, 1280, v65
    v_lshl_add_u32 v64, v66, 4, v64
    s_waitcnt lgkmcnt(0)
    """)
    for i in range(5): a(f"buffer_load_dwordx4 {vr(20+4*i,4)}, v64, s[4:7], 0 offen offset:{256*i}")
    a(f"""
    s_branch P0_issued
    P0_cols:
    s_cmp_ge_u32 s2, 216
    s_cbranch_scc1 P0_issued
    s_lshr_b32 s33, s2, 2            ; line
    s_and_b32 s34, s2, 3
    s_lshl_b32 s34, s34, 1
    s_add_u32 s34, s34, s31
    s_sub_u32 s34, s34, 2            ; part 0..7
    s_mul_i32 s35, s34, 80
    v_lshrrev_b32 v76, 3, v60
    v_add_u32 v76, s35, v76
    v_and_b32 v77, 7, v60
    v_lshlrev_b32 v77, 4, v77
    s_cmp_ge_u32 s33, 30
    s_cbranch_scc1 P0_w1
    s_lshl_b32 s36, s33, 7
    v_mul_u32_u24 v76, 3840, v76
    v_add_u32 v76, v76, v77
    s_waitcnt lgkmcnt(0)
    """)
    for i in range(10): a(f"buffer_load_dwordx4 {vr(20+4*i,4)}, v76, s[8:11], s36 offen\ns_add_u32 s36, s36, {8*3840}")
    a("""
    s_branch P0_issued
    P0_w1:
    s_sub_u32 s36, s33, 30
    s_lshl_b32 s36, s36, 7
    v_mul_u32_u24 v76, 3072, v76
    v_add_u32 v76, v76, v77
    s_waitcnt lgkmcnt(0)
    """)
    for i in range(10): a(f"buffer_load_dwordx4 {vr(20+4*i,4)}, v76, s[12:15], s36 offen\ns_add_u32 s36, s36, {8*3072}")
    a("P0_issued:")

def phase0_finish(a):
    a(f"""
    s_cmp_ge_u32 s31, 2
    s_cbranch_scc1 P0_fcols
    s_mov_b32 s37, 0xffff0000
    """)
    for r in range(10): a(f"v_lshlrev_b32 v{40+2*r}, 16, v{20+r}\nv_and_b32 v{41+2*r}, s37, v{20+r}")
    def unp(r, t): a(f"v_lshlrev_b32 v{t}, 16, v{r}\nv_and_b32 v{t+1}, s37, v{r}")
    for r in range(5): unp(30 + r, 20 + 2*r)
    for r in range(4): unp(35 + r, 72 + 2*r)
    unp(39, 30)
    U = [40 + 2*i for i in range(10)] + [20 + 2*i for i in range(6)] + [72 + 2*i for i in range(4)]
    a(f"v_pk_add_f32 v[68:69], {vr(U[0],2)}, {vr(U[1],2)}\nv_pk_add_f32 v[70:71], {vr(U[2],2)}, {vr(U[3],2)}")
    for i in range(4, 20, 2):
        a(f"v_pk_add_f32 v[68:69], v[68:69], {vr(U[i],2)}\nv_pk_add_f32 v[70:71], v[70:71], {vr(U[i+1],2)}")
    a("v_pk_add_f32 v[68:69], v[68:69], v[70:71]\nv_add_f32 v68, v68, v69")
    for ror in (8, 4, 2, 1): dpp_add(a, 68, 68, ror)
    a("v_mul_f32 v68, 0x3acccccd, v68")
    for i in range(20): a(f"v_pk_add_f32 {vr(U[i],2)}, {vr(U[i],2)}, v[68:69] op_sel_hi:[1,0] neg_lo:[0,1] neg_hi:[0,1]")
    a(f"v_pk_mul_f32 v[70:71], {vr(U[0],2)}, {vr(U[0],2)}\nv_pk_mul_f32 v[32:33], {vr(U[1],2)}, {vr(U[1],2)}")
    for i in range(2, 20, 2):
        a(f"v_pk_fma_f32 v[70:71], {vr(U[i],2)}, {vr(U[i],2)}, v[70:71]\nv_pk_fma_f32 v[32:33], {vr(U[i+1],2)}, {vr(U[i+1],2)}, v[32:33]")
    a("v_pk_add_f32 v[70:71], v[70:71], v[32:33]\nv_add_f32 v69, v70, v71")
    for ror in (8, 4, 2, 1): dpp_add(a, 69, 69, ror)
    a(f"""
    v_mov_b32 v70, 0x3727c5ac
    v_fmac_f32 v70, 0x3acccccd, v69
    v_rsq_f32 v69, v70
    v_lshlrev_b32 v65, 3, v65
    v_cmp_eq_u32 vcc, 0, v66
    s_and_saveexec_b64 s[48:49], vcc
    s_nop 1
    buffer_store_dwordx2 v[68:69], v65, s[16:19], 0 offen sc1
    s_mov_b64 exec, -1
    s_branch P0_done
    P0_fcols:
    s_cmp_ge_u32 s2, 216
    s_cbranch_scc1 P0_done
    v_and_b32 v68, 15, v60
    v_and_b32 v69, 1, v60
    v_lshlrev_b32 v69, 4, v69
    v_mov_b32 v70, 0x3f80
    v_lshlrev_b32 v69, v69, v70
    v_lshrrev_b32 v68, 1, v68
    """)
    for q in range(4): a(f"v_cmp_eq_u32 vcc, {q}, v68\ns_nop 1\nv_cndmask_b32 v{64+q}, 0, v69, vcc")
    a("s_nop 1")
    for i in range(10):
        a(f"v_mfma_f32_16x16x32_bf16 v[68:71], v[64:67], {vr(20+4*i,4)}, {'0' if i == 0 else 'v[68:71]'}")
    a(f"""
    s_mul_i32 s36, s34, {3456*4}
    s_lshl_b32 s35, s33, 8
    s_add_u32 s36, s36, s35
    s_add_u32 s36, s36, {WS_COLS}
    v_and_b32 v76, 7, v60
    v_lshlrev_b32 v76, 5, v76
    v_and_b32 v77, 16, v60
    v_add_u32 v76, v76, v77
    v_and_b32 v77, 40, v60
    """)
    for q in range(4): dpp_add(a, 72+q, 68+q, 8)
    a(f"""
    v_cmp_eq_u32 vcc, 0, v77
    s_and_saveexec_b64 s[48:49], vcc
    s_nop 1
    buffer_store_dwordx4 v[72:75], v76, s[16:19], s36 offen sc1
    s_mov_b64 exec, -1
    P0_done:
    """)

def l2_prefetch(a):
    a(f"""
    s_lshr_b32 s46, s2, 3               ; idx
    s_cmp_ge_u32 s31, 2
    s_cbranch_scc1 PF_w
    s_and_b32 s47, s2, 1
    s_lshl_b32 s47, s47, 5
    s_add_u32 s47, s47, s46
    s_mul_i32 s47, s47, {32*1280}
    v_and_b32 v20, 31, v60
    v_mul_u32_u24 v20, 1280, v20
    v_lshrrev_b32 v21, 5, v60
    s_lshl_b32 s48, s31, 1
    s_add_u32 s48, s48, s32
    s_add_u32 s48, s48, 2
    v_add_u32 v21, s48, v21
    """)
    for j in range(2):
        a(f"""
        v_add_u32 v22, {4*j}, v21
        v_subrev_u32 v23, 10, v22
        v_min_u32 v22, v22, v23
        v_lshl_add_u32 v22, v22, 7, v20
        buffer_load_dword v{16+j}, v22, s[4:7], s47 offen
        """)
    a(f"""
    buffer_load_dword v18, v22, s[4:7], s47 offen
    s_branch PF_x
    PF_w:
    s_lshr_b32 s47, s29, 1              ; pair
    s_add_u32 s48, s32, 2
    s_cmp_eq_u32 s31, 3
    s_cbranch_scc1 PF_w1
    s_mul_i32 s47, s47, 320
    s_and_b32 s47, s47, 0xffffff80
    s_mul_i32 s46, s46, {2*3840}
    s_add_u32 s47, s47, s46
    """)
    for j in range(3):
        a(f"""
        v_add_u32 v20, {64*j}, v60
        v_min_u32 v20, 143, v20
        v_mul_u32_u24 v21, 57, v20
        v_lshrrev_b32 v21, 9, v21           ; r = n / 9
        v_mul_u32_u24 v22, 9, v21
        v_sub_u32 v20, v20, v22             ; l
        v_mul_u32_u24 v22, 11, v20
        v_lshrrev_b32 v22, 5, v22           ; seg = l / 3
        v_mul_u32_u24 v22, {1280 - 384}, v22
        v_lshl_add_u32 v20, v20, 7, v22
        v_lshrrev_b32 v22, 1, v21
        v_add_u32 v22, s48, v22
        v_subrev_u32 v23, 10, v22
        v_min_u32 v22, v22, v23             ; chunk
        v_and_b32 v21, 1, v21
        v_lshl_add_u32 v21, v22, 6, v21
        v_mad_u32_u24 v20, v21, v24, v20
        buffer_load_dword v{16+j}, v20, s[8:11], s47 offen
        """.replace("v_add_u32 v20, 0, v60", "v_mov_b32 v24, 3840\nv_mov_b32 v20, v60"))
    a(f"""
    s_branch PF_x
    PF_w1:
    s_mul_i32 s46, s46, {2*3072}
    s_lshl_b32 s49, s47, 9
    s_add_u32 s46, s46, s49
    s_lshl_b32 s47, s47, 8
    s_sub_u32 s47, {2048 - 512}, s47
    v_mov_b32 v24, 3072
    """)
    for j in range(2):
        a(f"""
        v_add_u32 v20, {64*j}, v60
        v_min_u32 v20, 95, v20
        v_mul_u32_u24 v21, 43, v20
        v_lshrrev_b32 v21, 8, v21           ; r = n / 6
        v_mul_u32_u24 v22, 6, v21
        v_sub_u32 v20, v20, v22             ; l
        v_lshrrev_b32 v22, 2, v20
        v_mul_u32_u24 v22, s47, v22
        v_lshl_add_u32 v20, v20, 7, v22
        v_lshrrev_b32 v22, 1, v21
        v_add_u32 v22, s48, v22
        v_subrev_u32 v23, 10, v22
        v_min_u32 v22, v22, v23             ; chunk
        v_and_b32 v21, 1, v21
        v_lshl_add_u32 v21, v22, 6, v21
        v_mad_u32_u24 v20, v21, v24, v20
        buffer_load_dword v{16+j}, v20, s[12:15], s46 offen
        """)
    a("buffer_load_dword v18, v20, s[12:15], s46 offen\nPF_x:")

def code_touch(a, L):
    a(f"""
    s_getpc_b64 s[46:47]
    {L}_pc:
    s_sub_u32 s46, s46, {L}_pc-{NAME}_kernel
    s_subb_u32 s47, s47, 0
    s_lshr_b32 s44, s2, 3
    s_lshl_b32 s44, s44, 2
    s_add_u32 s44, s44, s31
    s_lshl_b32 s44, s44, 9
    v_and_b32 v13, 3, v60
    v_lshl_add_u32 v13, v13, 7, s44
    v_min_u32 v13, F_end-{NAME}_kernel, v13
    global_load_dword v79, v13, s[46:47]
    """)
    if OPT['tw'] & 2:
        a(f"""
        v_and_b32 v13, 15, v60
        v_min_u32 v13, 10, v13
        v_lshlrev_b32 v13, 21, v13
        s_add_u32 s46, s44, 0x10000
        buffer_load_dword v76, v13, s[16:19], s46 offen
        v_and_b32 v13, 0x200000, v13
        buffer_load_dword v75, v13, {SOUT}, s46 offen
        """)
    if OPT['tw'] & 1:
        a(f"""
        v_and_b32 v13, 3, v60
        v_lshlrev_b32 v13, 16, v13
        s_lshl_b32 s46, s44, 9
        buffer_load_dword v78, v13, s[16:19], s46 offen offset:3968
        s_lshl_b32 s46, s44, 7
        v_mov_b32 v13, 0
        buffer_load_dword v77, v13, {SOUT}, s46 offen
        """)

def flag_addrs(a):
    a(f"""
    s_lshl_b32 s50, s28, 11
    s_lshl_b32 s55, s30, 3
    s_add_u32 s55, s55, s29
    s_lshl_b32 s55, s55, 7
    s_add_u32 s50, s50, s55
    s_add_u32 s50, s50, {FL_H}
    s_lshl_b32 s51, s29, 11
    s_lshl_b32 s55, s28, 7
    s_add_u32 s51, s51, s55
    s_add_u32 s51, s51, {FL_KV}
    s_lshl_b32 s52, s28, 10
    s_lshl_b32 s55, s29, 7
    s_add_u32 s52, s52, s55
    s_add_u32 s52, s52, {FL_O}
    s_cmp_eq_u32 s30, 1
    s_cselect_b32 s51, s52, s51
    s_lshr_b32 s54, s2, 4
    s_lshl_b32 s54, s54, 7
    s_and_b32 s55, s2, 15
    s_lshl_b32 s55, s55, 2
    s_add_u32 s54, s54, s55
    s_add_u32 s54, s54, {FL_S}
    """)

def compute(a, typ):
    L = f"F_c{typ}"
    nh = 2 if typ == 0 else 4
    a(f"{L}:\ns_barrier")
    stamp(a, 1)
    for r in tile_reads(typ, 0, SET[0]): a(r)
    if OPT['al']: a(f"s_branch {L}_loop\n.p2align {OPT['al']}")
    a(f"{L}_loop:")
    for s in range(4):
        if s < 3:
            a("s_waitcnt lgkmcnt(0)")
            fill = tile_reads(typ, s + 1, SET[(s + 1) % 2])
            if s == 2:
                fill += [f"s_cmp_eq_u32 s42, 2", f"s_cselect_b32 s41, {-2*SLOT}, s45", "s_add_u32 s42, s42, 1", "s_cmp_eq_u32 s42, 3", "s_cselect_b32 s42, 0, s42", "s_bitcmp1_b32 s57, s40"]
        else:
            a(f"s_cbranch_scc1 {L}_it2\ns_waitcnt lgkmcnt(0)\ns_barrier\n{L}_it2r:")
            rd = tile_reads(typ, 0, SET[0])
            up = lambda r: f"v_add_u32 v{r}, s41, v{r}"
            fill = [up(XA), up(QA)] + rd[:3] + [up(HA + i) for i in range(nh)] + rd[3:6] + [up(XA + 1), up(XA + 2), up(XA + 3)] + rd[6:]
            fill += ["s_add_u32 s40, s40, 1", "s_cmp_lt_u32 s40, 10"]
        mfma_step(a, SET[s % 2], fill)
    a(f"s_cbranch_scc1 {L}_loop")
    if OPT['prio']: a("s_setprio 3")
    stamp(a, 2)
    fill = [f"ds_read_b32 v{RSTD}, v{RSTD}"]
    BD = 16
    bdr = {}
    order = [(0,0),(1,0),(0,1),(1,1),(2,2),(0,2),(1,2),(2,3),(1,3),(2,4),(1,4)]
    for n, (T, u) in enumerate(order):
        bdr[(T, u)] = BD + 4*n
        for uu in range(2): fill.append(f"ds_read_b64_tr_b16 {vr(BD+4*n+2*uu,2)}, v{BDA} offset:{(8*u+4*uu)*96 + T*32}")
    a("s_waitcnt lgkmcnt(0)")
    def hflag():
        a("s_waitcnt vmcnt(0)")
        arrive(a, C_H)
        a(f"s_cmp_eq_u32 s47, 3\ns_cbranch_scc0 {L}_nohf")
        flag_store(a, "s50")
        if typ == 1 and OPT['bp']:
            p2_ids(a, "s33", "s34")
            a(f"s_lshr_b32 s33, s33, 1\ns_lshl_b32 s33, s33, 11\ns_add_u32 s33, s33, {FL_H}\ns_mov_b64 s[34:35], 0xff00")
            poll(a, "s33", "s[34:35]", 60)
            setword(a, W_H)
        a(f"{L}_nohf:")
    hfirst = typ == 1 and OPT['bf']
    k = 0
    for n, t in enumerate([3, 4, 5, 6, 0, 1, 2] if hfirst else range(7)):
        acc = vr(ACC + 16*t, 16)
        a(f"v_mfma_f32_32x32x16_bf16 {acc}, {vr(SET[0]+4+4*t,4)}, {vr(SET[0],4)}, {acc}")
        for x in fill[4*n:4*n+4]: a(x)
    BF = 112; P = 64
    cv = [f"v_cvt_pk_bf16_f32 v{BF+i}, v{ACC+2*i}, v{ACC+2*i+1}" for i in range(20)]
    if not hfirst:
        for x in cv: a(x)
        a("s_waitcnt lgkmcnt(0)\ns_barrier")
    hb = ACC + (80 if typ == 0 else 48)
    npair = 4 if typ == 0 else 8
    va = [f"v_mul_f32 v12, {LOG2E}, v{RSTD}", f"v_mul_f32 v14, v{RSTD}, v{RSTD}"]
    for m in range(npair):
        b = hb + 8*m
        for i in range(8): va.append(f"v_max_f32 v{b+i}, 0, v{b+i}")
        for i in range(4): va.append(f"v_pk_mul_f32 {vr(136+2*i,2)}, {vr(b+2*i,2)}, v[14:15] op_sel_hi:[1,0]")
        for i in range(4): va.append(f"v_pk_mul_f32 {vr(b+2*i,2)}, {vr(136+2*i,2)}, {vr(b+2*i,2)}")
        for i in range(4): va.append(f"v_cvt_pk_bf16_f32 v{b+i}, v{b+2*i}, v{b+2*i+1}")
        va.append(f"buffer_store_dwordx4 {vr(b,4)}, v15, s[16:19], s43 offen offset:{(m>>1)*1024 + (m&1)*512} sc1")
    if OPT['gh'] == 2 or (OPT['gh'] == 3 and typ == 0): va.append(f"v_mov_b32 v1, 1\nv_mov_b32 v2, {W_O}\ns_mov_b64 exec, 1\nds_add_u32 v2, v1\ns_mov_b64 exec, -1")
    if hfirst:
        a("s_waitcnt lgkmcnt(15)")
        for x in va[:23]: a(x)
        a("s_waitcnt lgkmcnt(0)\ns_barrier")
        for x in va[23:] + cv + ["s_nop 1"]: a(x)
        va = []
        if OPT['hb2']: hflag()
    if typ == 0:
        vb = ACC + 40
        for i in range(20):
            va += [f"v_pk_mul_f32 {vr(vb+2*i,2)}, {vr(vb+2*i,2)}, {vr(RSTD,2)} op_sel_hi:[1,0]", f"v_cvt_pk_bf16_f32 v{vb+i}, v{vb+2*i}, v{vb+2*i+1}"]
        for i in range(5): va.append(f"ds_write_b128 v8, {vr(vb+4*i,4)} offset:{320+16*i}")
        va += ["v_mov_b32 v2, 0x3f80", "v_mov_b32 v3, 0", "ds_write_b64 v0, v[2:3] offset:480"]
    k = 0
    seen = set()
    for n, (T, u) in enumerate(order):
        d = vr(P + 16*T, 16)
        a(f"v_mfma_f32_32x32x16_bf16 {d}, {vr(bdr[(T,u)],4)}, {vr(BF+4*u,4)}, {d if T in seen else '0'}")
        seen.add(T)
        if n >= 2:
            for _ in range(6):
                if k < len(va): a(va[k]); k += 1
    while k < len(va): a(va[k]); k += 1
    stamp(a, 3)
    if typ == 0:
        if OPT['hfa']: hflag()
        softmax(a, P, ACC, list(range(16, 26)), list(range(26, 36)))
        if not OPT['hfa']: hflag()
        for i in range(5): a(f"ds_write_b128 v9, {vr(16+4*i,4)} offset:{16*i}")
        if OPT['ek'] == 3: early_flag(a)
        softmax(a, P + 20, ACC + 20, list(range(36, 46)), list(range(46, 56)))
        stamp(a, 4)
        if OPT['ek'] == 4: early_flag(a)
        for i in range(5, 10): a(f"ds_write_b128 v9, {vr(16+4*i,4)} offset:{16*i}")
        signal(a, C_PV)
        dstamp(a, 1)
        spin(a, C_PV, 4)
        if OPT['ek'] == 1: early_flag(a)
        dstamp(a, 2)
        for st in range(8):
            for u in range(2):
                off = u*4*PV_PITCH + st*16*PV_PITCH
                a(f"ds_read_b64_tr_b16 {vr(64+12*st+2*u,2)}, v61 offset:{off}\nds_read_b64_tr_b16 {vr(68+12*st+2*u,2)}, v61 offset:{off+40}\nds_read_b64_tr_b16 {vr(72+12*st+2*u,2)}, v62 offset:{off}")
            if st >= 2:
                a("s_waitcnt lgkmcnt(12)")
                for sg in range(2):
                    d = vr(160 + 16*sg, 16)
                    a(f"v_mfma_f32_32x32x16_bf16 {d}, {vr(64+12*(st-2)+4*sg,4)}, {vr(72+12*(st-2),4)}, {'0' if st == 2 else d}")
        for st in range(6, 8):
            a(f"s_waitcnt lgkmcnt({42-6*st})")
            for sg in range(2):
                d = vr(160 + 16*sg, 16)
                a(f"v_mfma_f32_32x32x16_bf16 {d}, {vr(64+12*st+4*sg,4)}, {vr(72+12*st,4)}, {d}")
        dstamp(a, 3)
        if OPT['ek'] == 2: early_flag(a)
        a("s_mov_b32 exec_lo, 0x1fffff\ns_mov_b32 exec_hi, 0x1fffff\ns_nop 7\ns_nop 2")
        for sg in range(2):
            for i in range(4): a(f"v_cvt_pk_bf16_f32 v{200+4*sg+i}, v{160+16*sg+2*i}, v{161+16*sg+2*i}")
            for i in range(2): a(f"v_cvt_pk_bf16_f32 v{208+2*sg+i}, v{168+16*sg+2*i}, v{169+16*sg+2*i}")
            a(f"buffer_store_dwordx4 {vr(200+4*sg,4)}, v63, s[16:19], s56 offen offset:{672*sg} sc1")
        a("s_mov_b32 exec_hi, 0")
        a(f"buffer_store_dwordx4 v[208:211], v63, s[16:19], s56 offen offset:1344 sc1")
        a("s_mov_b64 exec, -1\ns_branch F_fin")
    else:
        if OPT['hfb'] and not OPT['hb2']: hflag()
        else: a('s_nop 7\ns_nop 3')
        for hh in range(2):
            o = 16 + 20*hh
            softmax(a, P + 20*hh, ACC + 20*hh, [o+i for i in range(8)] + [o+16, o+17], [o+8+i for i in range(8)] + [o+18, o+19])
            if hh == 0 and not OPT['hfb']: hflag()
        stamp(a, 4)
        otask(a)
    a(f"""
    {L}_it2:
    s_cmp_eq_u32 s40, {OPT['cl']}
    s_cbranch_scc1 {L}_it0
    s_cmp_eq_u32 s40, {OPT['ct']}
    s_cbranch_scc1 {L}_itc
    s_cmp_eq_u32 s40, 1
    s_cbranch_scc1 {L}_it1
    v_mov_b32 v13, {W_N}
    ds_read_b32 v12, v13
    s_waitcnt vmcnt(0) lgkmcnt(0)
    s_barrier
    v_readfirstlane_b32 {NC}, v12
    s_cmp_eq_u32 s31, 0
    s_cbranch_scc0 {L}_it2r
    v_mov_b32 v13, 0
    s_mov_b64 exec, 1
    buffer_store_dword v12, v13, s[16:19], s54 offen sc1
    s_mov_b64 exec, -1
    s_branch {L}_it2r
    {L}_it0:
    s_waitcnt vmcnt(0)
    """)
    assert OPT['cl'] > OPT['ct'] > 2
    if typ == 0:
        a("""
        v_lshlrev_b32 v13, 4, v60
        buffer_store_dwordx4 v[16:19], v13, s[16:19], s56 offen sc1
        v_cmp_gt_u32 vcc, 41, v60
        s_mov_b64 exec, vcc
        buffer_store_dwordx4 v[16:19], v13, s[16:19], s56 offen offset:1024 sc1
        s_mov_b64 exec, -1
        """)
    a(f"{L}_itx:\ns_waitcnt lgkmcnt(0)\ns_barrier\ns_branch {L}_it2r\n{L}_it1:")
    if OPT['p0'] == 1: a(f"s_waitcnt vmcnt(0)\ns_call_b64 s[58:59], P0_fin")
    a(f"s_branch {L}_itx\n{L}_itc:")
    code_touch(a, L)
    a(f"s_branch {L}_itx")

def addr_setup(a, typ):
    nh = 2 if typ == 0 else 4
    a(f"""
    v_mul_u32_u24 v{QA}, {QP[typ]}, v61
    v_mul_u32_u24 v14, {QP[typ]//2}, v62
    v_lshlrev_b32 v15, 3, v63
    v_add3_u32 v{QA}, v{QA}, v14, v15
    v_add_u32 v{QA}, {QB + SLOT}, v{QA}
    v_lshlrev_b32 v{HA}, {7 if typ == 0 else 8}, v61
    v_and_b32 v14, 16, v60
    v_lshlrev_b32 v14, 1, v14
    v_lshl_add_u32 v14, v62, 4, v14
    v_and_b32 v15, 2, v60
    v_lshl_add_u32 v14, v15, 2, v14
    v_add_u32 v{HA}, v{HA}, v14
    v_add_u32 v{HA}, {HB[typ] + SLOT}, v{HA}
    """)
    if typ == 0: a(f"v_and_b32 v14, 8, v60\nv_lshl_add_u32 v{HA}, v14, 3, v{HA}")
    else:        a(f"v_and_b32 v14, 12, v60\nv_lshl_add_u32 v{HA}, v14, 4, v{HA}")
    for i in range(1, nh): a(f"v_xor_b32 v{HA+i}, {64*i}, v{HA}")
    a(f"""
    s_lshl_b32 s43, s28, 3
    s_lshl_b32 s44, s31, 1
    s_add_u32 s43, s43, s44
    s_mul_i32 s43, s43, {68*1024}
    s_mul_i32 s56, s29, 2560
    s_add_u32 s56, s56, s43
    s_add_u32 s56, s56, {WS_A2 + 192*256}
    s_lshl_b32 s44, s29, {11 if typ == 0 else 12}
    s_add_u32 s43, s43, s44
    s_add_u32 s43, s43, {WS_A2 + (32*1024 if typ == 0 else 0)}
    v_and_b32 v15, 16, v60
    v_mul_u32_u24 v15, {68*64}, v15
    v_and_b32 v13, 15, v60
    v_lshl_add_u32 v15, v13, 4, v15
    v_and_b32 v13, 32, v60
    v_lshl_add_u32 v15, v13, 3, v15
    v_mov_b32 v16, -1
    v_mov_b32 v17, -1
    v_mov_b32 v18, -1
    v_mov_b32 v19, -1
    """)
    if typ == 0:
        a(f"""
        v_and_b32 v0, 31, v60
        s_lshl_b32 s44, s31, 5
        v_lshrrev_b32 v13, 5, v60
        v_mul_u32_u24 v63, 336, v13
        v_lshl_add_u32 v63, v0, 4, v63
        v_add_u32 v0, s44, v0
        v_mul_u32_u24 v0, {PV_PITCH}, v0
        v_add_u32 v0, {PVB}, v0
        v_mul_u32_u24 v13, 80, v13
        v_add_u32 v8, v0, v13
        v_add_u32 v9, v8, v13
        v_mul_u32_u24 v72, {PV_PITCH}, v61
        v_add_u32 v72, {PVB}, v72
        v_bfe_u32 v73, v60, 1, 1
        v_lshl_add_u32 v73, v62, 1, v73     ; fmap for pc<4
        v_and_b32 v74, 16, v60
        v_cmp_eq_u32 vcc, 0, v74
        s_mul_i32 s44, s31, 80
        s_and_b32 s46, s31, 1
        v_cndmask_b32 v73, 4, v73, vcc
        v_lshl_add_u32 v61, v73, 3, v72
        v_add_u32 v61, s44, v61
        v_add_u32 v73, s46, v73
        v_cmp_eq_u32 vcc, 5, v73
        s_mul_i32 s44, s31, 40
        s_add_u32 s44, s44, 320
        v_cndmask_b32 v73, v73, 0, vcc
        v_lshl_add_u32 v73, v73, 3, s44
        v_and_b32 v74, 19, v60
        v_cmp_lt_u32 vcc, 16, v74
        v_mov_b32 v75, 480
        s_lshl_b32 s56, s29, 2
        s_add_u32 s56, s56, s31             ; head
        v_cndmask_b32 v73, v73, v75, vcc
        v_add_u32 v62, v73, v72             ; B address
        s_lshl_b32 s56, s56, 4
        s_add_u32 s56, s56, s28
        s_mul_i32 s56, s56, 1792
        s_add_u32 s56, s56, {WS_KVP}
        """)

def otask(a):
    for i in range(4*OPT['so']): a(f"v_mov_b32 v{64+i}, -1")
    for p in range(0, 10*OPT['so'], 2): a(f"buffer_store_dwordx4 v[64:67], v15, s[16:19], s56 offen offset:{256*p} sc1")
    for hh in range(2):
        for sg in range(2):
            for q in range(4): a(f"v_permlane32_swap_b32 v{16+20*hh+8*sg+q}, v{20+20*hh+8*sg+q}")
    a(f"""
    v_lshrrev_b32 v3, 4, v60
    v_mul_u32_u24 v4, 1792, v3
    v_and_b32 v5, 15, v60
    v_lshl_add_u32 v4, v5, 4, v4
    v_lshlrev_b32 v12, 7, v5
    s_lshl_b32 s45, s29, 11
    s_add_u32 s45, s45, {FL_KV}
    s_lshl_b32 s33, s29, 2
    s_add_u32 s33, s33, s31
    s_mul_i32 s33, s33, {16*1792}
    s_add_u32 s33, s33, {WS_KVP}
    v_and_b32 v6, 1, v60
    v_lshlrev_b32 v6, 4, v6
    v_mov_b32 v7, 0x3f80
    v_lshlrev_b32 v6, v6, v7
    v_lshrrev_b32 v7, 1, v5
    """)
    for q in range(4): a(f"v_cmp_eq_u32 vcc, {q}, v7\ns_nop 1\nv_cndmask_b32 v{56+q}, 0, v6, vcc")
    a(f"""
    s_mul_i32 s34, s31, 1792
    s_add_u32 s34, s34, {L_STG}
    v_lshlrev_b32 v5, 4, v5
    v_bfe_u32 v6, v60, 4, 1
    v_lshl_add_u32 v5, v6, 3, v5
    v_add_u32 v5, s34, v5
    v_and_b32 v6, 31, v60
    v_min_u32 v6, 20, v6
    v_lshrrev_b32 v7, 5, v60
    v_mul_u32_u24 v8, 336, v7
    v_lshlrev_b32 v6, 4, v6
    v_add_u32 v6, {L_STG}, v6
    v_add_u32 v8, v8, v6
    v_add_u32 v6, 1344, v6
    v_mov_b32 v9, {L_BD + 2*3840 + 1024}
    v_cmp_gt_u32 vcc, 32, v60
    v_add_u32 v10, {2*1792}, v6
    s_mov_b32 s38, 0x01ff01ff
    s_mov_b32 s39, 0x01ff01ff
    v_cndmask_b32 v6, v9, v6, vcc
    v_cndmask_b32 v10, v10, v9, vcc
    s_cmp_eq_u32 s31, 0
    s_cbranch_scc0 F_o1w
    s_mov_b32 s48, 0
    s_mov_b64 exec, 0xffff
    F_o1:
    buffer_load_dword v3, v12, s[16:19], s45 offen sc1
    s_add_u32 s48, s48, 1
    s_waitcnt vmcnt(0)
    v_cmp_eq_u32 vcc, {NC}, v3
    s_mov_b32 s47, 3
    s_cmp_ge_u32 s48, {TMO}
    s_cbranch_scc1 F_o1x
    s_and_b32 s36, vcc_lo, 0xff
    s_cmp_eq_u32 s36, 0xff
    s_cselect_b32 s47, 1, 0
    s_cmp_ge_u32 vcc_lo, 0xff00
    s_cselect_b32 s36, 2, 0
    s_or_b32 s47, s47, s36
    s_cbranch_scc0 F_o1
    F_o1x:
    v_mov_b32 v1, s47
    v_mov_b32 v2, {W_KV}
    ds_write_b32 v2, v1
    s_mov_b64 exec, -1
    s_branch F_o1y
    F_o1w:
    """)
    spin(a, W_KV, 1)
    a(f"""
    F_o1y:
    s_mov_b32 s34, s47
    s_cmp_eq_u32 s47, 2
    s_cselect_b32 s35, {8*1792}, 0
    s_add_u32 s36, s33, s35
    s_xor_b32 s35, s35, {8*1792}
    s_add_u32 s35, s33, s35
    s_add_u32 s37, s36, {4*1792}
    s_add_u32 s44, s35, {4*1792}
    """)
    stamp(a, 5)
    LD = 140
    def loads(h, s0, s1):
        for i in range(2):
            for g in range(7): a(f"buffer_load_dwordx4 {vr(LD+4*(14*h+7*i+g),4)}, v4, s[16:19], {(s0, s1)[i]} offen offset:{256*g} sc1")
    def verify(h, L):
        r = [LD + 4*(14*h+7*i+g) + 3 for i in range(2) for g in range(6)]
        a(f"v_max3_u32 v11, v{r[0]}, v{r[1]}, v{r[2]}\nv_max3_u32 v13, v{r[3]}, v{r[4]}, v{r[5]}")
        a(f"v_max3_u32 v11, v11, v{r[6]}, v{r[7]}\nv_max3_u32 v13, v13, v{r[8]}, v{r[9]}\nv_max3_u32 v11, v11, v{r[10]}, v{r[11]}")
        a(f"""
        v_max_u32 v14, v{LD+4*(14*h+6)+3}, v{LD+4*(14*h+13)+3}
        v_max_u32 v11, v11, v13
        v_cmp_eq_u32 s[46:47], -1, v14
        v_cmp_eq_u32 vcc, -1, v11
        s_add_u32 s49, s49, 1
        s_and_b64 s[46:47], s[46:47], s[38:39]
        s_or_b64 vcc, vcc, s[46:47]
        s_cmp_ge_u32 s49, {TMO}
        s_cselect_b64 vcc, 0, vcc
        s_cbranch_vccnz {L}
        """)
    a("s_mov_b32 s49, 0\nF_o2:")
    loads(0, "s36", "s37")
    a(f"""
    s_cmp_eq_u32 s34, 3
    s_cbranch_scc1 F_o3x
    s_cmp_eq_u32 s31, 0
    s_cbranch_scc0 F_o3w
    s_mov_b64 s[40:41], 0xffff
    """)
    if OPT['k2'] == 1:
        a("s_and_b32 s40, s34, 1\ns_lshl_b32 s40, s40, 10\ns_add_u32 s45, s45, s40")
        spoll(a, "s45", [40, 41, 42, 43, 46, 47, 57, 58])
    else: poll(a, "s45", "s[40:41]", 60)
    a(f"v_mov_b32 v1, 1\nv_mov_b32 v2, {W_K2}\nds_write_b32 v2, v1\ns_branch F_o3x\nF_o3w:")
    spin(a, W_K2, 1)
    a("F_o3x:\ns_mov_b32 s34, 3")
    dstamp(a, 1)
    loads(1, "s35", "s44")
    for h in range(2):
        a(f"s_waitcnt vmcnt({14 - 14*h})\nF_ov{h}:")
        verify(h, f"F_or{h}")
        for i in range(2):
            for g in range(7):
                d = vr(64 + 4*g, 4)
                a(f"v_mfma_f32_16x16x32_bf16 {d}, v[56:59], {vr(LD+4*(14*h+7*i+g),4)}, {'0' if h + i == 0 else d}")
    a("s_nop 0")
    dstamp(a, 2)
    if OPT['eo'] == 3: early_flag(a)
    a("s_mov_b32 exec_hi, 0")
    for g in range(7):
        a(f"v_cvt_pk_bf16_f32 v{96+2*g}, v{64+4*g}, v{65+4*g}\nv_cvt_pk_bf16_f32 v{97+2*g}, v{66+4*g}, v{67+4*g}\nds_write_b64 v5, {vr(96+2*g,2)} offset:{256*g}")
    signal(a, C_OB)
    spin(a, C_OB, 4)
    if OPT['eo'] == 1: early_flag(a)
    dstamp(a, 3)
    AF = 64
    for hd in range(4):
        for st in range(2): a(f"ds_read_b128 {vr(AF+12*hd+4*st,4)}, v8 offset:{1792*hd + 672*st}")
        a(f"ds_read_b128 {vr(AF+12*hd+8,4)}, v{6 if hd < 2 else 10} offset:{1792*(hd&1)}")
    OD = 128
    pp = [0, 3, 5, 8]
    def norm(hd):
        d = OD + 16*hd
        r = [f"v_add_f32 v{d+12}, 0x358637bd, v{d+12}", f"v_rcp_f32 v{d+12}, v{d+12}", "s_nop 0"]
        for i in range(6): r.append(f"v_pk_mul_f32 {vr(d+2*i,2)}, {vr(d+2*i,2)}, {vr(d+12,2)} op_sel_hi:[1,0]")
        for i in range(4): r.append(f"v_cvt_pk_bf16_f32 v{d+i}, v{d+2*i}, v{d+2*i+1}")
        for i in range(2): r.append(f"v_cvt_pk_bf16_f32 v{112+2*hd+i}, v{d+8+2*i}, v{d+9+2*i}")
        r.append(f"buffer_store_dwordx4 {vr(d,4)}, v15, s[16:19], s56 offen offset:{256*pp[hd]} sc1")
        return r
    q = []
    for up in range(2):
        for st in range(3):
            for hh in range(2):
                hd = 2*up + hh
                if st == 0: a(f"s_waitcnt lgkmcnt({9-3*hd})")
                b = 16 + 20*hh + (8*st + 4*up if st < 2 else 16)
                d = vr(OD + 16*hd, 16)
                a(f"v_mfma_f32_32x32x16_bf16 {d}, {vr(AF+12*hd+4*st,4)}, {vr(b,4)}, {'0' if st == 0 else d}")
                if up == 1 and st == 0 and hh == 1: q = ['s_nop 6'] + norm(0) + norm(1)
                for _ in range(7):
                    if q: a(q.pop(0))
    for x in q: a(x)
    a("s_mov_b32 exec_hi, 0")
    a(f"buffer_store_dwordx4 v[112:115], v15, s[16:19], s56 offen offset:{256*2} sc1\ns_mov_b32 exec_hi, -1\ns_nop 3")
    for x in norm(2) + norm(3): a(x)
    a("s_mov_b32 exec_hi, 0")
    a(f"buffer_store_dwordx4 v[116:119], v15, s[16:19], s56 offen offset:{256*7} sc1")
    if OPT['gb'] == 3: signal(a, W_O)
    if not OPT['so']: a("s_waitcnt vmcnt(0)")
    a("s_mov_b64 exec, -1\ns_branch F_fin")
    for h in range(2):
        a(f"F_or{h}:")
        loads(h, *(("s36", "s37"), ("s35", "s44"))[h])
        a(f"s_waitcnt vmcnt(0)\ns_branch F_ov{h}")

def fin(a):
    a("F_fin:")
    stamp(a, 6)
    if OPT['eo'] == 0 or OPT['ek'] == 0:
        arrive(a, C_O)
        a("s_cmp_eq_u32 s47, 3\ns_cbranch_scc0 F_ot_end")
        if OPT['ek']: a("s_cmp_eq_u32 s30, 1\ns_cbranch_scc0 F_ot_end")
        flag_store(a, "s51")
    else:
        signal(a, C_O)
        a("s_waitcnt lgkmcnt(0)")
    a("F_ot_end:")
    stamp(a, 7)
    stamp_flush(a, 8, 1)
    a("s_endpgm")

def dma(a, base, j, v, srd_, soff):
    a(f"s_add_u32 m0, {base}, {1024*j}\ns_nop 0\nbuffer_load_dwordx4 v{v}, {srd_}, {soff} offen lds")
def issue_head(a):
    a("""
    s_lshl_b32 s34, s32, 7
    s_mul_i32 s35, s32, 245760
    s_mul_i32 s36, s32, 196608
    s_add_u32 s41, s33, s45
    s_add_u32 s42, s33, s46
    s_add_u32 s43, s33, s47
    """)
def issue_tail(a):
    a(f"""
    s_add_u32 s32, s32, 1
    s_cmp_eq_u32 s32, 10
    s_cselect_b32 s32, 0, s32
    s_add_u32 s33, s33, {SLOT}
    s_cmp_eq_u32 s33, {3*SLOT}
    s_cselect_b32 s33, 0, s33
    """)
def first_chunk(a, typ):
    nq = 5 if typ == 0 else 3
    nh = 2 if typ == 0 else 4
    for j in range(nh):
        if j == 0:
            if typ == 0:
                a(f"""
                s_lshl_b32 s37, s31, 4
                v_lshrrev_b32 v3, 3, v60
                v_add_u32 v3, s37, v3               ; row
                v_lshrrev_b32 v4, 2, v60
                v_and_b32 v4, 4, v4
                v_and_b32 v5, 7, v60
                v_xor_b32 v4, v4, v5
                v_mul_u32_u24 v3, 3072, v3
                v_lshl_add_u32 v3, v4, 4, v3
                v_add_u32 v19, s39, v3
                """)
            else:
                a(f"""
                s_lshl_b32 s37, s31, 4
                v_lshrrev_b32 v3, 4, v60
                v_lshlrev_b32 v4, 2, v3
                v_add_u32 v3, s37, v3               ; row
                v_and_b32 v5, 15, v60
                v_xor_b32 v4, v4, v5
                v_mul_u32_u24 v3, 3072, v3
                v_lshl_add_u32 v3, v4, 4, v3
                v_add_u32 v19, s39, v3
                """)
        else:
            a(f"v_add_u32 v{19+j}, {(8 if typ == 0 else 4)*3072*j}, v19")
        dma(a, "s43", j, 19 + j, "s[12:15]", "s36")
    a(f"s_mul_i32 s37, s31, {16*3840}\ns_add_u32 s38, s38, s37")
    for j in range(nq):
        a(f"v_add_u32 v2, {64*j}, v60")
        if typ == 0:
            a(f"""
            v_mul_u32_u24 v3, 3277, v2
            v_lshrrev_b32 v3, 16, v3            ; row
            v_mul_u32_u24 v4, 20, v3
            v_sub_u32 v4, v2, v4                ; pos
            v_mul_u32_u24 v5, 52, v4
            v_lshrrev_b32 v5, 8, v5             ; seg
            v_mul_u32_u24 v3, 3840, v3
            v_lshl_add_u32 v3, v4, 4, v3
            v_and_b32 v6, 1, v5
            v_mul_u32_u24 v6, 1200, v6
            v_lshrrev_b32 v5, 1, v5
            v_mul_u32_u24 v5, 80, v5
            v_add3_u32 v3, v3, v6, s38
            v_sub_u32 v{14+j}, v3, v5
            """)
        else:
            a(f"""
            v_mul_u32_u24 v3, 5462, v2
            v_lshrrev_b32 v3, 16, v3            ; row
            v_mul_u32_u24 v4, 12, v3
            v_sub_u32 v4, v2, v4                ; pos
            v_mul_u32_u24 v5, 43, v4
            v_lshrrev_b32 v5, 8, v5             ; seg
            v_sub_u32 v6, v4, v5
            v_mul_u32_u24 v3, 3840, v3
            v_lshl_add_u32 v3, v6, 4, v3
            v_add_u32 v{14+j}, s38, v3
            """)
        dma(a, "s42", j, 14 + j, "s[8:11]", "s35")

def issue_sub(a):
    if OPT['al']: a(f".p2align {OPT['al']}")
    a("F_issue:")
    issue_head(a)
    for j in range(4): dma(a, "s41", j, 10 + j, "s[4:7]", "s34")
    for j in range(3): dma(a, "s42", j, 14 + j, "s[8:11]", "s35")
    for j in range(2): dma(a, "s43", j, 19 + j, "s[12:15]", "s36")
    a("s_cmp_eq_u32 s30, 1\ns_cbranch_scc1 F_issue_b")
    for j in range(3, 5): dma(a, "s42", j, 14 + j, "s[8:11]", "s35")
    a("s_branch F_issue_e\nF_issue_b:")
    for j in range(2, 4): dma(a, "s43", j, 19 + j, "s[12:15]", "s36")
    a("F_issue_e:")
    issue_tail(a)
    a("s_setpc_b64 s[56:57]")
CALL = "s_call_b64 s[56:57], F_issue"

def cols_addr(a, typ):
    nql = 40 if typ == 0 else 24
    if typ == 0:
        a(f"""
        v_mul_u32_u24 v2, 26, v60
        v_lshrrev_b32 v2, 8, v2             ; seg
        v_mul_u32_u24 v3, 10, v2
        v_sub_u32 v3, v60, v3               ; w
        v_and_b32 v4, 1, v2
        v_mul_u32_u24 v4, 640, v4
        v_lshrrev_b32 v2, 1, v2
        v_mul_u32_u24 v2, 40, v2
        v_lshl_add_u32 v2, v3, 2, v2
        s_mul_i32 s37, s29, 80
        s_add_u32 s37, s37, 640
        v_add3_u32 v2, v2, v4, s37          ; colQ
        s_lshl_b32 s37, s29, 6
        s_add_u32 s37, s37, {1024 - 4*nql}
        """)
    else:
        a(f"""
        v_mul_u32_u24 v2, 22, v60
        v_lshrrev_b32 v2, 8, v2             ; seg
        v_lshlrev_b32 v2, 1, v2
        v_sub_u32 v2, v60, v2
        s_mul_i32 s37, s29, 80
        v_lshl_add_u32 v2, v2, 2, s37       ; colQ
        s_lshl_b32 s37, s29, 7
        s_sub_u32 s37, s37, {4*nql}
        """)
    a(f"""
    v_lshl_add_u32 v3, v60, 2, s37          ; w1 column
    v_add_u32 v4, 1920, v3
    v_lshlrev_b32 v3, 1, v3
    v_mov_b32 v5, 0x40000000
    v_cmp_gt_u32 vcc, {nql}, v60
    v_mov_b32 v6, {2*SLOT + HB[typ] - 8*nql}
    v_mov_b32 v7, {2*SLOT + QB}
    v_cndmask_b32 v2, v4, v2, vcc
    v_cndmask_b32 v51, v3, v5, vcc
    v_cndmask_b32 v6, v6, v7, vcc
    v_lshl_add_u32 v6, v60, 3, v6           ; A0
    v_mov_b32 v7, {HP[typ]}
    v_mov_b32 v8, {QP[typ]}
    v_cndmask_b32 v7, v7, v8, vcc           ; pitch
    v_mov_b32 v8, 64
    v_cndmask_b32 v8, v8, v56, vcc          ; X
    v_lshlrev_b32 v50, 2, v2
    """)
    for k in range(5):
        xm = ((k >> 1) & 1) if typ == 0 else (k & 3)
        a(f"v_mul_u32_u24 v{40+k}, {xm}, v8\nv_xor_b32 v{40+k}, v{40+k}, v6\nv_mad_u32_u24 v{40+k}, v7, {k}, v{40+k}")

def helper(a):
    a(f"""
    F_helper:
    s_sub_u32 s31, s31, 4
    s_lshl_b32 s37, s28, 7
    s_lshl_b32 s38, s31, 5
    s_add_u32 s37, s37, s38             ; first token row
    v_lshrrev_b32 v2, 3, v60
    v_add_u32 v2, s37, v2
    v_mul_u32_u24 v2, 1280, v2
    v_lshrrev_b32 v3, 4, v60
    v_and_b32 v4, 7, v60
    v_xor_b32 v3, v3, v4
    v_lshl_add_u32 v10, v3, 4, v2
    v_xor_b32 v3, 4, v3
    v_lshl_add_u32 v11, v3, 4, v2
    v_add_u32 v11, {8*1280}, v11
    v_add_u32 v12, {16*1280}, v10
    v_add_u32 v13, {16*1280}, v11
    s_lshl_b32 s45, s31, 12
    s_cmp_eq_u32 s30, 1
    s_cselect_b32 s46, 3072, 5120
    s_cselect_b32 s47, 4096, 2048
    s_cselect_b32 s37, {HB[1]}, 0
    s_cselect_b32 s38, 0, {HB[0]}
    s_mul_i32 s46, s46, s31
    s_add_u32 s46, s46, {QB}
    s_mul_i32 s47, s47, s31
    s_add_u32 s47, s47, s37
    s_add_u32 s47, s47, s38
    s_mov_b32 s33, {SLOT}
    """.replace("s_cselect_b32 s46, 3072, 5120", "s_cselect_b32 s46, 3, 5\ns_lshl_b32 s46, s46, 10\ns_cmp_eq_u32 s30, 1").replace("s_cselect_b32 s47, 4096, 2048", "s_cselect_b32 s47, 4, 2\ns_lshl_b32 s47, s47, 10\ns_cmp_eq_u32 s30, 1"))
    issue_head(a)
    a("s_mul_i32 s38, s29, 160\ns_waitcnt lgkmcnt(0)")
    stamp(a, 1)
    for j in range(4): dma(a, "s41", j, 10 + j, "s[4:7]", "s34")
    a("""
    s_cmp_eq_u32 s30, 1
    s_cbranch_scc1 F_hb
    s_add_u32 s38, s38, 1280
    s_lshl_b32 s39, s29, 7
    s_add_u32 s39, s39, 2048
    """)
    first_chunk(a, 0)
    a("v_mov_b32 v21, v19\nv_mov_b32 v22, v19\ns_branch F_hc\nF_hb:\ns_lshl_b32 s39, s29, 8")
    first_chunk(a, 1)
    a("v_mov_b32 v17, v14\nv_mov_b32 v18, v14\nF_hc:")
    issue_tail(a)
    a(CALL)
    a(f"""
    s_mov_b32 s40, s2
    s_mov_b32 s44, s31
    s_cmp_lt_u32 s31, 2
    s_cselect_b32 s58, 1, 0
    s_cbranch_scc1 F_wt_sel
    s_and_b32 s44, s2, 1
    s_lshr_b32 s40, s2, 1
    s_add_u32 s40, s40, {256 - 112}
    s_cmp_eq_u32 s31, 2
    s_cselect_b32 s58, 1, 0
    s_cmp_ge_u32 s2, 224
    s_cselect_b32 s58, s58, 0
    F_wt_sel:
    s_mul_i32 s49, s31, 5120
    s_add_u32 s49, s49, {L_STG}
    v_mov_b32 v62, 0
    v_mov_b32 v63, 0
    s_cmp_eq_u32 s58, 0
    s_cbranch_scc1 F_wt_skip1
    """)
    t = Asm(); t.nlabel = 900
    wt_task(t, "s40", "s44", "s49", 60, SW2, SWO, "s[16:19]", "FW")
    txt = t.text()
    import re
    remap = {20: 62, 21: 63, 22: 23, 23: 24, 24: 25, 25: 26, 26: 27}
    txt = re.sub(r"\bv(2[0-6])\b", lambda m: f"v{remap[int(m.group(1))]}", txt)
    a(txt)
    a(f"""
    F_wt_skip1:
    s_lshl_b32 s37, s29, 2
    s_add_u32 s37, s37, s31
    s_mul_i32 s37, s37, 800
    v_lshlrev_b32 v2, 3, v60
    buffer_load_dwordx2 v[30:31], v2, s[20:23], s37 offen
    buffer_load_dwordx2 v[32:33], v2, s[20:23], s37 offen offset:512
    v_mov_b32 v56, 0
    v_mov_b32 v57, 0
    v_mov_b32 v58, 0
    v_mov_b32 v59, 0
    s_mul_i32 s37, s31, 2880
    s_add_u32 s37, s37, {L_BD}
    v_lshl_add_u32 v2, v60, 4, s37
    ds_write_b128 v2, v[56:59]
    ds_write_b128 v2, v[56:59] offset:1024
    ds_write_b128 v2, v[56:59] offset:1856
    v_lshlrev_b32 v61, 2, v60
    v_min_u32 v2, 60, v61
    v_add_u32 v2, {L_CNT}, v2
    ds_write_b32 v2, v56
    v_mov_b32 v50, 0
    v_mov_b32 v51, 0
    s_cmp_eq_u32 s31, 3
    s_cbranch_scc0 F_ca2
    s_cmp_eq_u32 s30, 1
    s_cbranch_scc1 F_ca1
    """)
    cols_addr(a, 0)
    a("s_branch F_ca2\nF_ca1:")
    cols_addr(a, 1)
    a(f"""
    F_ca2:
    v_mov_b32 v49, {W_N}
    s_mov_b32 s40, {FL_S}
    s_cmp_eq_u32 s58, 1
    s_cbranch_scc1 F_wt_j1
    s_waitcnt vmcnt(13)
    F_wt_j1:
    s_waitcnt vmcnt(18) lgkmcnt(0)
    s_barrier
    {CALL}
    s_waitcnt vmcnt(13)
    s_barrier
    s_cmp_eq_u32 s58, 0
    s_cbranch_scc1 F_wt_skip2
    """)
    for nt in range(5):
        for u in range(2): a(f"ds_read_b64_tr_b16 {vr(64+4*nt+2*u,2)}, v62 offset:{u*640 + 8*nt}")
    a(f"{CALL}\ns_waitcnt lgkmcnt(0)")
    for nt in range(5):
        a(f"buffer_store_dwordx4 {vr(64+4*nt,4)}, v63, s[16:19], s{54 if nt < 4 else 55} offen offset:{(nt%4)*1024}{SC}")
    a(f"""
    s_waitcnt vmcnt(16)
    s_branch F_wt_j2
    F_wt_skip2:
    s_buffer_load_dword {NC}, {SDBG}, 0
    {CALL}
    s_cmp_eq_u32 s31, 3
    s_cbranch_scc0 F_ng_x
    s_mov_b32 s48, 0
    s_waitcnt lgkmcnt(0)
    s_cmp_eq_u32 {NC}, 0
    s_cbranch_scc0 F_ng_y
    F_ng:
    s_buffer_load_dword {NC}, {SDBG}, 0 glc
    s_add_u32 s48, s48, 1
    s_waitcnt lgkmcnt(0)
    s_cmp_ge_u32 s48, {TMO}
    s_cbranch_scc1 F_ng_y
    s_cmp_eq_u32 {NC}, 0
    s_cbranch_scc1 F_ng
    F_ng_y:
    v_mov_b32 v2, {NC}
    ds_write_b32 v49, v2
    F_ng_x:
    s_waitcnt vmcnt(11) lgkmcnt(0)
    F_wt_j2:
    s_barrier
    """)
    for k in range(3, 7):
        a(CALL)
        if k == 5: a(f"""
    s_sub_u32 s37, s31, 1
    s_lshl_b32 s37, s37, 6
    v_add_u32 v2, s37, v60
    v_and_b32 v2, 127, v2
    v_lshlrev_b32 v45, 3, v2
    v_lshlrev_b32 v46, 7, v2
    v_and_b32 v7, 14, v2
    v_lshl_add_u32 v46, v7, 3, v46
    v_add_u32 v46, {2*SLOT}, v46
    v_xor_b32 v47, 16, v46
    v_lshlrev_b32 v48, 2, v2
    v_add_u32 v48, {L_RSTD}, v48
    v_lshrrev_b32 v61, 2, v60
    v_lshlrev_b32 v61, 7, v61
    v_and_b32 v3, 3, v60
    v_lshl_add_u32 v61, v3, 4, v61
 """)
        a("s_waitcnt vmcnt(11)\ns_barrier")
    a(f"""
    s_cmp_eq_u32 s31, 3
    s_cbranch_scc1 F_pl
    {CALL}
    s_waitcnt vmcnt(11)
    s_branch F_pollx
    F_pl:
    buffer_load_dwordx4 v[36:39], v61, s[16:19], s40 offen sc1
    {CALL}
    s_mov_b32 s48, 0
    s_waitcnt vmcnt(11)
    F_poll:
    v_min3_u32 v2, v36, v37, v38
    v_max3_u32 v3, v36, v37, v38
    v_min_u32 v2, v2, v39
    v_max_u32 v3, v3, v39
    v_cmp_eq_u32 s[38:39], {NC}, v2
    v_cmp_eq_u32 vcc, {NC}, v3
    s_and_b64 vcc, vcc, s[38:39]
    s_add_u32 s48, s48, 1
    s_cmp_ge_u32 s48, {TMO}
    s_cbranch_scc1 F_pollx
    s_cmp_eq_u64 vcc, -1
    s_cbranch_scc1 F_pollx
    buffer_load_dwordx4 v[36:39], v61, s[16:19], s40 offen sc1
    s_waitcnt vmcnt(0)
    s_branch F_poll
    F_pollx:
    s_barrier
    """)
    a(CALL)
    a(f"""
    s_cmp_eq_u32 s31, 3
    s_cbranch_scc1 F_ldc
    s_lshl_b32 s38, s28, 10
    buffer_load_dwordx2 v[64:65], v45, s[16:19], s38 offen sc1
    s_waitcnt vmcnt(12)
    s_branch F_ldx
    F_ldc:
    s_mov_b32 s37, {WS_COLS}
    """)
    for i in range(8): a(f"buffer_load_dwordx4 {vr(64+4*i,4)}, v50, s[16:19], s37 offen sc1\ns_add_u32 s37, s37, {3456*4}")
    a(f"""
    buffer_load_dwordx2 v[52:53], v51, s[24:27], 0 offen
    s_waitcnt vmcnt(20)
    F_ldx:
    s_barrier
    ds_read_b32 v36, v49
    s_and_b32 s37, s31, 1
    s_mul_i32 s37, s37, {20*96 + 40}
    s_lshr_b32 s38, s31, 1
    s_mul_i32 s38, s38, 3840
    s_add_u32 s37, s37, s38
    s_add_u32 s37, s37, {L_BD}
    v_mul_u32_u24 v2, 205, v60
    v_lshrrev_b32 v2, 10, v2
    v_mul_u32_u24 v2, 56, v2
    v_lshl_add_u32 v2, v60, 3, v2
    v_add_u32 v28, s37, v2
    v_add_u32 v3, 64, v60
    v_mul_u32_u24 v2, 205, v3
    v_lshrrev_b32 v2, 10, v2
    v_mul_u32_u24 v2, 56, v2
    v_lshl_add_u32 v2, v3, 3, v2
    v_add_u32 v29, s37, v2
    ds_write_b64 v28, v[30:31]
    v_cmp_gt_u32 vcc, 36, v60
    s_and_saveexec_b64 s[48:49], vcc
    ds_write_b64 v29, v[32:33]
    s_mov_b64 exec, -1
    s_mov_b32 s39, 0xffff0000
    """)
    p2_ids(a, "s28", "s29")
    a("v_mov_b32 v14, v60")
    p2_setup(a, "s31", 14)
    n1, n2 = OPT['w8'], OPT['w8'] + OPT['w9']
    wl = [ldW(i, nt, SC) for i in range(4) for nt in range(5)] + [wdma(0, j, nt) for j in range(2) for nt in range(5)]
    for x in wl[:n1]: a(x)
    p2_epi_addr(a, "s31", 14)
    a(f"""
    s_mul_i32 s37, s31, 5120
    s_add_u32 s57, s31, 1
    s_mul_i32 s58, s57, 20480
    s_lshl_b32 s57, s57, 12
    s_lshr_b32 s55, s28, 1
    s_lshl_b32 s55, s55, 2
    s_add_u32 s55, s55, s31
    s_lshl_b32 s55, s55, 8
    s_add_u32 s55, s55, {FL_O}
    s_waitcnt lgkmcnt(0)
    v_readfirstlane_b32 {NC}, v36
    s_cmp_eq_u32 s31, 3
    s_cbranch_scc1 F_w9
    s_waitcnt vmcnt({1+n1})
    F_w9:
    s_waitcnt vmcnt({9+n1})
    s_barrier
    s_waitcnt vmcnt({n1})
    s_cbranch_scc1 F_prc
    s_cmp_eq_u32 s31, 0
    s_cbranch_scc1 F_prx
    v_rcp_f32 v66, v65
    v_sub_f32 v64, 0, v64
    v_cvt_pk_bf16_f32 v68, v64, v64
    v_and_b32 v67, s39, v68
    v_sub_f32 v64, v64, v67
    v_cvt_pk_bf16_f32 v69, v64, v66
    v_and_b32 v67, s39, v69
    v_sub_f32 v66, v66, v67
    v_cvt_pk_bf16_f32 v70, v66, v56
    v_mov_b32 v71, 0
    ds_write_b128 v46, v[68:71]
    ds_write_b128 v47, v[56:59]
    ds_write_b32 v48, v65
    s_branch F_prx
    F_prc:
    """)
    for i in range(1, 8):
        for q in range(2): a(f"v_pk_add_f32 {vr(64+2*q,2)}, {vr(64+2*q,2)}, {vr(64+4*i+2*q,2)}")
    a("""
    v_cvt_pk_bf16_f32 v70, v64, v65
    v_cvt_pk_bf16_f32 v71, v66, v67
    v_lshlrev_b32 v72, 16, v70
    v_and_b32 v73, s39, v70
    v_lshlrev_b32 v74, 16, v71
    v_and_b32 v75, s39, v71
    v_sub_f32 v64, v64, v72
    v_sub_f32 v65, v65, v73
    v_sub_f32 v66, v66, v74
    v_sub_f32 v67, v67, v75
    v_cvt_pk_bf16_f32 v72, v64, v65
    v_cvt_pk_bf16_f32 v73, v66, v67
    v_cmp_gt_u32 vcc, 56, v60
    s_and_saveexec_b64 s[48:49], vcc
    ds_write_b64 v40, v[70:71]
    ds_write_b64 v41, v[72:73]
    ds_write_b64 v42, v[70:71]
    ds_write_b64 v43, v[52:53]
    ds_write_b64 v44, v[52:53]
    s_mov_b64 exec, -1
    F_prx:
    """)
    for x in wl[n1:n2]: a(x)
    a("v_add_u32 v15, s37, v6\nv_add_u32 v13, 61440, v15\nv_add_u32 v1, 112640, v15\ns_waitcnt lgkmcnt(0)\ns_barrier\ns_barrier")
    if OPT['gh'] == 3:
        a(f"s_mul_i32 s36, s30, {C_H - W_O}\ns_add_u32 s36, s36, {W_O}")
        spin(a, "s36", 4, va=10)
    elif OPT['gh']: spin(a, C_H if OPT['gh'] == 1 else W_O, 4, va=10)
    for x in wl[n2:]: a(x)

def wslot(typ, j): return j*20480 + (128*PV_PITCH if typ == 0 and j >= 2 else 0)
def wdma(typ, j, nt):
    t = f"s_add_u32 m0, s37, {wslot(typ, j) + (4096 if nt == 4 else 0)}\ns_nop 0\n" if nt in (0, 4) else ""
    if nt < 4: return t + f"buffer_load_dwordx4 v6, s[16:19], s33 offen offset:{nt*1024}{NS[OPT['nsw']]} lds"
    return t + f"buffer_load_dwordx4 v7, s[16:19], s33 offen{NS[OPT['nsw']]} lds\ns_add_u32 s33, s33, 20480"

class VM:
    def __init__(self, a): self.a = a; self.q = []
    def issue(self, tag, text): self.a(text); self.q.append(tag)
    def wait(self, tags, extra=""):
        last = max(i for i, t in enumerate(self.q) if t in tags)
        n = len(self.q) - 1 - last
        assert n < 64
        self.a(f"s_waitcnt vmcnt({n}){extra}")
def phase2(a):
    a("F_p2:\ns_cmp_eq_u32 s30, 1\ns_cbranch_scc1 F_p2_1")
    for typ in range(2):
        a(f"F_p2_{typ}:")
        phase2_t(a, typ)
        if typ == 0: a("s_branch F_p2_e")
    a("F_p2_e:")
    stamp(a, 7)
    a("s_waitcnt lgkmcnt(0)\ns_barrier")
    for m in range(3):
        for nt in range(5): a(f"ds_read_b128 {vr(20+20*m+4*nt,4)}, v{10+m} offset:{m*20480 + nt*1024}")
    for m in range(3):
        a(f"s_waitcnt lgkmcnt({10-5*m})")
        for q in range(10): a(f"v_pk_add_f32 {vr(AC2+2*q,2)}, {vr(AC2+2*q,2)}, {vr(20+20*m+2*q,2)}")
    for q in range(10): a(f"v_cvt_pk_bf16_f32 v{AC2+q}, v{AC2+2*q}, v{AC2+2*q+1}")
    a(f"buffer_store_dwordx4 {vr(AC2,4)}, v8, {SOUT}, s34 offen\nbuffer_store_dwordx4 {vr(AC2+4,4)}, v8, {SOUT}, s34 offen offset:16\nbuffer_store_dwordx2 {vr(AC2+8,2)}, v8, {SOUT}, s34 offen offset:32")
    a("s_add_u32 s31, s31, 4")
    stamp_flush(a, 8, 1)
    a("s_endpgm")
    for x in ool: a(x)

ool = []
def phase2_t(a, typ):
    nl = OPT['nlb'] if typ else OPT['nla']
    LA = OPT['la']
    vm = VM(a)
    for i in range(4):
        for nt in range(5): vm.q.append(("W", i))
    for j in range(nl):
        for nt in range(5):
            if j < 2: vm.q.append(("WL", j))
            else: vm.issue(("WL", j), wdma(typ, j, nt))
    stamp(a, 2)
    a(f"s_lshr_b32 s54, s28, 1\ns_lshl_b32 s54, s54, 11\ns_add_u32 s54, s54, {FL_H}\ns_mov_b64 s[38:39], {'0xff00' if OPT['bf'] else '0xffff'}\ns_mov_b64 s[40:41], 0xff")
    if not (typ == 1 and OPT['bp']):
        a(f"s_cmp_eq_u32 s31, 0\ns_cbranch_scc0 F_p2_wait{typ}")
        poll(a, "s54", "s[38:39]", 14, va=10)
        setword(a, W_H, va=10)
    a(f"F_p2_wait{typ}:")
    spin(a, W_H, 1, va=10)
    stamp(a, 3)
    if typ == 0 and OPT['ga']: spin(a, C_O, 4, va=10)
    gate = 4 + nl if typ == 1 and OPT['gb'] else 99
    for i in range(LA):
        for m in range(4): vm.issue(("A", i), ldA(i, m, SC))
    xe = AR + 32
    def lds_rd(i, nt):
        o = wslot(typ, i - 4) + nt*1024
        r, o = (15, o) if o < 61440 else (13, o - 61440) if o < 112640 else (1, o - 112640)
        return f"ds_read_b128 {vr(WR+20*(i%4)+4*nt,4)}, v{r} offset:{o}"
    FS = OPT['fast']
    def xadd():
        vm.wait(["x"])
        a("s_mov_b32 s39, 0xffff0000")
        for q in range(10):
            x = xe + q; b = xe + 10 + q
            t = xe + 20
            a(f"v_lshlrev_b32 v{t}, 16, v{x}\nv_and_b32 v{t+1}, s39, v{x}\nv_lshlrev_b32 v{t+2}, 16, v{b}\nv_and_b32 v{t+3}, s39, v{b}")
            a(f"v_pk_add_f32 {vr(t,2)}, {vr(t,2)}, {vr(t+2,2)}\nv_pk_add_f32 {vr(AC2+2*q,2)}, {vr(AC2+2*q,2)}, {vr(t,2)}")
    def prep():
        a("s_mov_b32 s48, 0")
        for m in range(1, 4):
            a(f"s_sub_u32 s36, s31, {m}\ns_and_b32 s36, s36, 3\ns_mul_i32 s36, s36, 5120\nv_add_u32 v{9+m}, s36, v6")
    def fo_issue():
        a("v_and_b32 v0, 1, v14\nv_lshlrev_b32 v0, 7, v0")
        vm.issue("fo", "buffer_load_dword v0, v0, s[16:19], s55 offen sc1")
    def steps(i0, i1, fast):
      tg = f"{typ}{'f' if fast else ''}"
      for i in range(i0, i1):
        if i == 12 and not fast:
            if not FS: xadd()
            stamp(a, 5)
            if typ == 0: spin(a, C_O, 4, va=10)
            vm.wait(["fo"])
            a(f"v_cmp_eq_u32 vcc, {NC}, v0\ns_cmp_eq_u64 vcc, -1\ns_cbranch_scc1 F_fo{typ}")
            poll(a, "s55", "3", 14, va=10)
            a(f"F_fo{typ}:")
            stamp(a, 6)
            a("s_mov_b32 s56, s32")
            for k in range(12, 17):
                for m in range(4): vm.issue(("A", k), ldA(k, m, SC))
            prep()
        if i == 12 and fast:
            stamp(a, 5)
            if typ == 0: spin(a, C_O, 4, va=10)
            prep()
        if i == gate:
            spin(a, C_O if OPT['gb'] == 2 else W_O, 4, va=10)
            for k in range(gate, gate + 4):
                for nt in range(5): vm.issue(("W", k), ldW(k, nt, SC))
            a("s_mov_b32 s52, s33\ns_add_u32 s33, s33, 5120")
            for nt in range(5): vm.issue(("W", 16), wdma(typ, 3, nt))
            a("s_mov_b32 s33, s52")
        if OPT['bf'] and i == OPT['fa']:
            a("v_and_b32 v12, 7, v14\nv_lshlrev_b32 v12, 7, v12")
            vm.issue("fa", "buffer_load_dword v12, v12, s[16:19], s54 offen sc1")
        if OPT['bf'] and i == 8 - LA:
            vm.wait(["fa"])
            a(f"v_cmp_eq_u32 vcc, {NC}, v12\ns_cmp_eq_u64 vcc, -1\ns_cbranch_scc1 F_fa{typ}")
            poll(a, "s54", "s[40:41]", 14, va=10)
            a(f"F_fa{typ}:")
        ex = ""
        if i == 16: ex = " lgkmcnt(0)"
        if 4 <= i < 4 + nl: ex = f" lgkmcnt({5*(min(i + 3, 3 + nl) - i)})"
        vm.wait([("A", i), ("W", i)] + ([("W", 16)] if i == 12 else []), ex)
        if i == 0: stamp(a, 4)
        if i >= 12 and OPT['so']:
            b = AR + 16*(i % 5)
            a(f"F_v{tg}_{i}:\nv_max3_u32 v0, v{b+3}, v{b+7}, v{b+11}\nv_max_u32 v0, v0, v{b+15}\nv_cmp_eq_u32 vcc, -1, v0\ns_cbranch_vccnz F_r{tg}_{i}\nF_g{tg}_{i}:")
            t = f"F_r{tg}_{i}:\ns_add_u32 s48, s48, 1\ns_cmp_ge_u32 s48, {TMO}\ns_cbranch_scc1 F_g{tg}_{i}\ns_add_u32 s36, s56, {(i-12)*1024}\n"
            for m in range(4): t += f"buffer_load_dwordx4 {vr(b+4*m,4)}, v{2+m}, s[16:19], s36 offen sc1\n"
            ool.append(t + f"s_waitcnt vmcnt(0)\ns_branch F_v{tg}_{i}")
        if i == 16:
            for m in (1, 2, 3, 0):
                for nt in range(5):
                    d = vr(AC2 + 20*m + 4*nt, 4)
                    a(f"v_mfma_f32_16x16x32_bf16 {d}, {vr(WR+20*(i%4)+4*nt,4)}, {vr(AR+16*(i%5)+4*m,4)}, {d}")
                    pm = (m - 1) % 4
                    if pm == 1 and nt == 0: a('s_nop 2')
                    if pm: a(f"ds_write_b128 v15, {vr(AC2+20*pm+4*nt,4)} offset:{(pm-1)*20480 + nt*1024}")
            continue
        for nt in range(5):
            for m in range(4):
                d = vr(AC2 + 20*m + 4*nt, 4)
                a(f"v_mfma_f32_16x16x32_bf16 {d}, {vr(WR+20*(i%4)+4*nt,4)}, {vr(AR+16*(i%5)+4*m,4)}, {'0' if i == 0 else d}")
                if m == 1 and nt < 4:
                    if i + LA < 12: vm.issue(("A", i + LA), ldA(i + LA, nt, SC))
                    elif fast and i + 4 < 17: vm.issue(("A", i + 4), ldA(i + 4, nt, SC))
            if i + 4 < 4 + nl: a(lds_rd(i + 4, nt))
            elif i == 12: a(lds_rd(7, nt).replace(vr(WR+60+4*nt,4), vr(WR+4*nt,4)))
            elif i + 4 < 16 and not (gate <= i + 4 < gate + 4): vm.issue(("W", i + 4), ldW(i + 4, nt, SC))
        if i == 7 and gate == 99:
            a("s_mov_b32 s52, s33\ns_add_u32 s33, s33, 20480")
            for nt in range(5): vm.issue(("W", 16), wdma(typ, 3, nt))
            a("s_mov_b32 s33, s52")
        if i == 11 and not fast: fo_issue()
        if i == 8:
            for k, (n, o) in enumerate(((4, 0), (4, 16), (2, 32))):
                vm.issue("x", f"buffer_load_dwordx{n} {vr(xe+4*k,n)}, v8, s[4:7], s34 offen offset:{o}")
            for k, (n, o) in enumerate(((4, 0), (4, 16), (2, 32))):
                vm.issue("x", f"buffer_load_dwordx{n} {vr(xe+10+4*k,n)}, v9, {SB2}, s35 offen offset:{o}")
        if FS and i == FS - 2: fo_issue()
    if not FS:
        steps(0, 17, False)
        return
    steps(0, FS, False)
    xadd()
    vm.wait(["fo"])
    a(f"v_cmp_eq_u32 vcc, {NC}, v0\ns_cmp_eq_u64 vcc, -1\ns_cbranch_scc1 F_fast{typ}")
    q0 = list(vm.q)
    steps(FS, 17, False)
    a(f"s_branch F_p2_e\nF_fast{typ}:")
    vm.q = q0
    stamp(a, 6)
    a("s_mov_b32 s56, s32")
    for k in range(12, FS + 4):
        for m in range(4): vm.issue(("A", k), ldA(k, m, SC))
    steps(FS, 17, True)

def gen_f1():
    a = Asm()
    stamp(a, 0)
    srd(a, 4, 0, NB_X); srd(a, 8, 8, NB_WQKV); srd(a, 12, 40, NB_W1); srd(a, 16, 88, WS_END); srd(a, 20, 16, NB_WPHI); srd(a, 24, 48, NB_B1)
    srd(a, 60, 56, NB_W2); srd(a, 64, 24, NB_WO); srd(a, 68, 72, NB_X); srd(a, 72, 64, NB_B2); srd(a, 76, 80, 256)
    a(f"""
    s_cmp_ge_u32 s2, 256
    s_cbranch_scc1 F_end
    v_lshrrev_b32 v1, 6, v0
    v_and_b32 v60, 63, v0
    s_and_b32 s33, s2, 7                ; xcd
    v_readfirstlane_b32 s31, v1
    s_lshr_b32 s34, s2, 3               ; idx
    s_and_b32 s28, s33, 1
    s_lshl_b32 s28, s28, 3
    s_and_b32 s35, s34, 7
    s_add_u32 s28, s28, s35             ; rb
    s_lshr_b32 s35, s34, 3              ; jj
    s_lshr_b32 s30, s35, 1              ; type
    s_and_b32 s35, s35, 1
    s_and_b32 s29, s33, 6
    s_add_u32 s29, s29, s35             ; g
    s_mov_b32 s32, s33
    s_cmp_lt_u32 s31, 4
    s_cbranch_scc1 F_comp
    """)
    helper(a)
    phase2(a)
    issue_sub(a)
    a(f"""
    F_comp:
    s_lshl_b32 s33, s2, 2
    s_add_u32 s33, s33, s31
    s_cmp_eq_u32 s33, 3
    s_cbranch_scc0 F_nonce_x
    s_mov_b32 s34, {WS_NONCE}
    s_waitcnt lgkmcnt(0)
    s_buffer_load_dword s35, s[16:19], s34 glc
    v_mov_b32 v3, 0
    s_waitcnt lgkmcnt(0)
    s_add_u32 s35, s35, 1
    s_max_u32 s35, s35, 1
    v_mov_b32 v2, s35
    s_mov_b64 exec, 1
    buffer_store_dword v2, v3, {SDBG}, 0 offen sc1
    buffer_store_dword v2, v3, s[16:19], s34 offen sc1
    s_mov_b64 exec, -1
    F_nonce_x:
    """)
    if OPT['cpf'] == 2: code_touch(a, "F_ct"); a("v_mov_b32 v24, v21")
    phase0_issue(a)
    if OPT['pf1'] == 1: a('s_waitcnt lgkmcnt(0)'); l2_prefetch(a)
    a(f"""
    v_lshrrev_b32 v61, 5, v60
    v_bfe_u32 v62, v60, 2, 2
    v_lshl_add_u32 v61, v61, 3, v62     ; 8hf + j
    v_and_b32 v62, 1, v60               ; c&1
    v_bfe_u32 v63, v60, 4, 1
    v_bfe_u32 v2, v60, 1, 1
    v_lshl_add_u32 v63, v63, 1, v2      ; 2gg + (c>>1)
    v_and_b32 v2, 31, v60
    s_lshl_b32 s43, s31, 5
    v_add_u32 v2, s43, v2
    v_lshrrev_b32 v3, 5, v60
    v_bfe_u32 v4, v2, 1, 3
    v_xor_b32 v3, v3, v4
    v_lshlrev_b32 v3, 4, v3
    v_lshl_add_u32 v{XA}, v2, 7, v3
    v_lshlrev_b32 v{RSTD}, 2, v2
    v_add_u32 v{RSTD}, {L_RSTD}, v{RSTD}
    v_add_u32 v{XA}, {SLOT}, v{XA}
    v_xor_b32 v{XA+1}, 32, v{XA}
    v_xor_b32 v{XA+2}, 64, v{XA}
    v_xor_b32 v{XA+3}, 96, v{XA}
    v_lshrrev_b32 v12, 5, v60
    v_cmp_eq_u32 vcc, v12, v62
    v_bfe_u32 v13, v60, 2, 2
    v_mul_u32_u24 v13, 96, v13
    v_cndmask_b32 v12, 2, v12, vcc
    v_mul_u32_u24 v12, 3840, v12
    v_lshl_add_u32 v13, v63, 3, v13
    v_add_u32 v{BDA}, v12, v13
    v_add_u32 v{BDA}, {L_BD}, v{BDA}
    s_cmp_eq_u32 s30, 1
    s_cbranch_scc1 F_as1
    """)
    addr_setup(a, 0)
    a("s_branch F_as2\nF_as1:")
    addr_setup(a, 1)
    a("F_as2:")
    for i in range(112): a(f"v_mov_b32 v{ACC+i}, 0")
    if OPT['p0'] == 2 and not OPT['pe']: a("s_waitcnt vmcnt(0)"); phase0_finish(a)
    if OPT['p0'] == 2 and OPT['pe']: a("s_waitcnt vmcnt(0)\ns_call_b64 s[58:59], P0_fin")
    if OPT['pf1'] == 2: a('s_waitcnt lgkmcnt(0)'); l2_prefetch(a)
    flag_addrs(a)
    a(f"""
    s_waitcnt lgkmcnt(0)
    s_mov_b32 s40, 0
    s_mov_b32 s57, {4 | (1 << OPT['cl']) | (1 << OPT['ct']) | (2 if OPT['p0'] == 1 else 0)}
    s_mov_b32 s42, 1
    s_mov_b32 s45, {SLOT}
    s_cmp_eq_u32 s30, 1
    s_cbranch_scc1 F_c1
    """)
    compute(a, 0)
    compute(a, 1)
    fin(a)
    if OPT['p0'] == 1 or OPT['pe']:
        a("P0_fin:")
        phase0_finish(a)
        a("s_setpc_b64 s[58:59]")
    a("F_end:\ns_endpgm")
    return a.text()

def build():
    t = gen_f1()
    for e in check_hazards(t): print(e)
    return file_text([f"; @launch grid=(256,1,1) block=(512,1,1) lds={F_LDS}"], [(NAME + "_kernel", t, 256, 102, 256)])
if __name__ == "__main__":
    for arg in list(sys.argv[1:]):
        if "=" in arg:
            k, v = arg.split("="); OPT[k] = int(v); sys.argv.remove(arg)
    out = sys.argv[1] if len(sys.argv) > 1 else f"cdna_kernels/{NAME}.s"
    open(out, "w").write(build())
```

```python
import sys
sys.path.insert(0, "gen")
import asmlib
if "--stamps" in sys.argv: asmlib.STAMPS = True; sys.argv.remove("--stamps")
from asmlib import *
from layout import *
from k0 import srd, dpp_add
from k1 import ACC, SET, XA, QA, HA, RSTD, BDA, LOG2E, tile_reads, mfma_step, softmax
from k2b import wt_task, wt_finish, p2_setup, p2_epi_addr, p2_final, AR, WR, AC2
import k2b
NS = {0: " sc1", 1: "", 2: " nt", 3: " sc0"}
def nxt(i, r, base, stride, last):
    if i == 12: return f"s_add_u32 s{r}, s{base}, s{last}\ns_add_u32 s{r}, s{r}, {11*stride}"
    if i < 8: t = f"s_lshl1_add_u32 s{r}, s42, {i}\ns_and_b32 s{r}, s{r}, 7"
    else:     t = f"s_add_u32 s{r}, s42, {i}\ns_and_b32 s{r}, s{r}, 3\ns_or_b32 s{r}, s{r}, 8"
    return t + f"\ns_mul_i32 s{r}, s{r}, {stride}\ns_add_u32 s{r}, s{r}, s{base}"
def ldA(i, m, sc):
    t = k2b.ldA(i, m, NS[OPT['nsa']])
    if OPT['rot'] and i <= 11: return t.replace("s_add_u32 s32, s32, 4096", nxt(i + 1, 32, 43, 4096, 57))
    if i == 11: t = t.replace("s32, 4096", "s32, s57")
    if i > 11: t = t.replace("s32, 4096", "s32, 1024")
    return t
def ldW(i, nt, sc):
    t = k2b.ldW(i, nt, NS[OPT['nsw']])
    if OPT['rot'] and i <= 11: return t.replace("s_add_u32 s33, s33, 20480", nxt(i + 1, 33, 44, 20480, 58))
    if i == 11: t = t.replace("s33, 20480", "s33, s58")
    if i > 11: t = t.replace("s33, 20480", "s33, 5120")
    return t
SC = " sc1"
SW2, SWO, SOUT, SB2, SDBG = "s[60:63]", "s[64:67]", "s[68:71]", "s[72:75]", "s[76:79]"
C_H, C_PV, W_K2, W_KV, C_OB, C_O, W_H, W_O, W_N = [L_CNT + 4*i for i in range(9)]
FL_S = WS_FLAG + 0x2000
WS_NONCE = WS_FLAG + 0x4000
NC = "s53"
TMO = 1 << 18
OPT = dict(se=0, hp=0, d3=0, pfw=0, pfa=0, defer=1, pf1=0, w8=10, w9=20, prio=1, nla=4, nlb=7, spoll=0, hfa=0, la=4, gh=1, ga=1, gb=0, hfb=1, pd=1, ek=1, eo=0, il=1, bf=1, w16=1, fa=2, map=0, bp=0, k2=0, fast=0, cpf=1, p0=2, hb2=1, cl=8, ct=4, so=0, tw=0, al=0, pe=1, kr=0, rot=0, dg=0, nsa=0, nsw=0)
def dstamp(a, i):
    if OPT['dg']: stamp(a, i)
PVB = 40960

def arrive(a, off, va=1):
    a(f"""
    v_mov_b32 v{va}, 1
    v_mov_b32 v{va+1}, {off}
    s_mov_b64 exec, 1
    ds_add_rtn_u32 v{va+2}, v{va+1}, v{va}
    s_waitcnt lgkmcnt(0)
    s_mov_b64 exec, -1
    v_readfirstlane_b32 s47, v{va+2}
    """)
def signal(a, off, va=1):
    a(f"v_mov_b32 v{va}, 1\nv_mov_b32 v{va+1}, {off}\ns_mov_b64 exec, 1\nds_add_u32 v{va+1}, v{va}\ns_mov_b64 exec, -1")
def spin(a, off, val, va=1):
    L = a.label("spin")
    a(f"""
    v_mov_b32 v{va+1}, {off}
    s_mov_b32 s48, 0
    {L}:
    ds_read_b32 v{va+2}, v{va+1}
    s_add_u32 s48, s48, 1
    s_waitcnt lgkmcnt(0)
    v_readfirstlane_b32 s47, v{va+2}
    s_cmp_ge_u32 s48, {TMO}
    s_cbranch_scc1 {L}_x
    {f's_cmp_lt_u32 s47, {val}' if val else 's_andn2_b32 s47, s55, s47'}
    s_cbranch_scc1 {L}
    {L}_x:
    """)
def setword(a, off, va=1):
    a(f"v_mov_b32 v{va}, 1\nv_mov_b32 v{va+1}, {off}\nds_write_b32 v{va+1}, v{va}\ns_waitcnt lgkmcnt(0)")
def flag_store(a, soff, va=1):
    a(f"v_mov_b32 v{va}, {NC}\nv_mov_b32 v{va+1}, 0\ns_mov_b64 exec, 1\nbuffer_store_dword v{va}, v{va+1}, s[16:19], {soff} offen sc1\ns_mov_b64 exec, -1")
def poll(a, soff, mask, lane, va=1, pub=None):
    L = a.label("poll")
    pd = OPT['pd']
    R = [va + 1, va + 2] + [va + 4 + i for i in range(2)] if va == 1 else [va + 1, va + 2, 16, 17]
    a(f"""
    v_lshlrev_b32 v{va}, 7, v{lane}
    s_mov_b32 s48, 0
    {f'v_mov_b32 v{va+3}, {pub}' if pub else ''}
    s_mov_b64 exec, {mask}
    """)
    ld = lambda k: f"buffer_load_dword v{R[k]}, v{va}, s[16:19], {soff} offen sc1"
    for k in range(pd - 1): a(ld(k) + "\ns_nop 7\ns_nop 7" * 0)
    a(f"{L}:")
    for k in range(pd):
        a(f"""
        {ld((k + pd - 1) % pd)}
        s_add_u32 s48, s48, 1
        s_waitcnt vmcnt({pd-1})
        v_cmp_eq_u32 vcc, {NC}, v{R[k]}
        s_cmp_ge_u32 s48, {TMO}
        s_cbranch_scc1 {L}_x
        """)
        if pub: a(f"v_mov_b32 v{R[k]}, vcc_lo\nds_write_b32 v{va+3}, v{R[k]}\ns_waitcnt lgkmcnt(0)")
        a(f"s_cmp_eq_u64 vcc, {mask}")
        a(f"s_cbranch_scc0 {L}" if k == pd - 1 else f"s_cbranch_scc1 {L}_x")
    a(f"{L}_x:\ns_mov_b64 exec, -1")

def early_flag(a):
    L = a.label("ef")
    a(f"s_cmp_eq_u32 s31, 0\ns_cbranch_scc0 {L}")
    flag_store(a, "s51")
    a(f"{L}:")
def spoll(a, soff, regs):
    L = a.label("spoll")
    a(f"s_mov_b32 s48, 0\n{L}:")
    for i, r in enumerate(regs): a(f"s_buffer_load_dword s{r}, s[16:19], {soff} offset:{128*i} glc")
    a(f"s_add_u32 s48, s48, 1\ns_cmp_ge_u32 s48, {TMO}\ns_waitcnt lgkmcnt(0)\ns_cbranch_scc1 {L}_x")
    for r in regs: a(f"s_cmp_eq_u32 s{r}, {NC}\ns_cbranch_scc0 {L}")
    a(f"{L}_x:")

def p2_ids(a, rg, cg):
    if OPT['map'] == 1:
        a(f"s_and_b32 s36, s2, 7\ns_lshl_b32 s36, s36, 2\ns_bfe_u32 s37, s2, 0x20003\ns_add_u32 {rg}, s36, s37\ns_lshr_b32 {cg}, s2, 5")
        return
    if OPT['map'] == 2:
        a(f"s_bfe_u32 s36, s2, 0x10002\ns_lshl_b32 s36, s36, 4\ns_bfe_u32 s37, s2, 0x40003\ns_add_u32 {rg}, s36, s37\ns_and_b32 s36, s2, 3\ns_lshl_b32 s36, s36, 1\ns_lshr_b32 {cg}, s2, 7\ns_add_u32 {cg}, {cg}, s36")
        return
    a(f"""
    s_and_b32 s36, s2, 7
    s_lshr_b32 s37, s2, 3
    s_lshr_b32 {rg}, s36, 1
    s_lshl_b32 {rg}, {rg}, 3
    s_and_b32 s38, s37, 7
    s_add_u32 {rg}, {rg}, s38
    s_and_b32 {cg}, s36, 1
    s_lshl_b32 {cg}, {cg}, 2
    s_lshr_b32 s38, s37, 3
    s_add_u32 {cg}, {cg}, s38
    """)

def phase0_issue(a):
    a(f"""
    s_cmp_ge_u32 s31, 2
    s_cbranch_scc1 P0_cols
    s_lshl_b32 s33, s2, 3
    s_lshl_b32 s34, s31, 2
    s_add_u32 s33, s33, s34
    v_lshrrev_b32 v65, 4, v60
    v_add_u32 v65, s33, v65
    v_and_b32 v66, 15, v60
    v_mul_u32_u24 v64, 1280, v65
    v_lshl_add_u32 v64, v66, 4, v64
    s_waitcnt lgkmcnt(0)
    """)
    for i in range(5): a(f"buffer_load_dwordx4 {vr(20+4*i,4)}, v64, s[4:7], 0 offen offset:{256*i}")
    a(f"""
    s_branch P0_issued
    P0_cols:
    s_cmp_ge_u32 s2, 216
    s_cbranch_scc1 P0_issued
    s_lshr_b32 s33, s2, 2            ; line
    s_and_b32 s34, s2, 3
    s_lshl_b32 s34, s34, 1
    s_add_u32 s34, s34, s31
    s_sub_u32 s34, s34, 2            ; part 0..7
    s_mul_i32 s35, s34, 80
    v_lshrrev_b32 v76, 3, v60
    v_add_u32 v76, s35, v76
    v_and_b32 v77, 7, v60
    v_lshlrev_b32 v77, 4, v77
    s_cmp_ge_u32 s33, 30
    s_cbranch_scc1 P0_w1
    s_lshl_b32 s36, s33, 7
    v_mul_u32_u24 v76, 3840, v76
    v_add_u32 v76, v76, v77
    s_waitcnt lgkmcnt(0)
    """)
    for i in range(10): a(f"buffer_load_dwordx4 {vr(20+4*i,4)}, v76, s[8:11], s36 offen\ns_add_u32 s36, s36, {8*3840}")
    a("""
    s_branch P0_issued
    P0_w1:
    s_sub_u32 s36, s33, 30
    s_lshl_b32 s36, s36, 7
    v_mul_u32_u24 v76, 3072, v76
    v_add_u32 v76, v76, v77
    s_waitcnt lgkmcnt(0)
    """)
    for i in range(10): a(f"buffer_load_dwordx4 {vr(20+4*i,4)}, v76, s[12:15], s36 offen\ns_add_u32 s36, s36, {8*3072}")
    a("P0_issued:")

def phase0_finish(a):
    a(f"""
    s_cmp_ge_u32 s31, 2
    s_cbranch_scc1 P0_fcols
    s_mov_b32 s37, 0xffff0000
    """)
    for r in range(10): a(f"v_lshlrev_b32 v{40+2*r}, 16, v{20+r}\nv_and_b32 v{41+2*r}, s37, v{20+r}")
    def unp(r, t): a(f"v_lshlrev_b32 v{t}, 16, v{r}\nv_and_b32 v{t+1}, s37, v{r}")
    for r in range(5): unp(30 + r, 20 + 2*r)
    for r in range(4): unp(35 + r, 72 + 2*r)
    unp(39, 30)
    U = [40 + 2*i for i in range(10)] + [20 + 2*i for i in range(6)] + [72 + 2*i for i in range(4)]
    a(f"v_pk_add_f32 v[68:69], {vr(U[0],2)}, {vr(U[1],2)}\nv_pk_add_f32 v[70:71], {vr(U[2],2)}, {vr(U[3],2)}")
    for i in range(4, 20, 2):
        a(f"v_pk_add_f32 v[68:69], v[68:69], {vr(U[i],2)}\nv_pk_add_f32 v[70:71], v[70:71], {vr(U[i+1],2)}")
    a("v_pk_add_f32 v[68:69], v[68:69], v[70:71]\nv_add_f32 v68, v68, v69")
    for ror in (8, 4, 2, 1): dpp_add(a, 68, 68, ror)
    a("v_mul_f32 v68, 0x3acccccd, v68")
    for i in range(20): a(f"v_pk_add_f32 {vr(U[i],2)}, {vr(U[i],2)}, v[68:69] op_sel_hi:[1,0] neg_lo:[0,1] neg_hi:[0,1]")
    a(f"v_pk_mul_f32 v[70:71], {vr(U[0],2)}, {vr(U[0],2)}\nv_pk_mul_f32 v[32:33], {vr(U[1],2)}, {vr(U[1],2)}")
    for i in range(2, 20, 2):
        a(f"v_pk_fma_f32 v[70:71], {vr(U[i],2)}, {vr(U[i],2)}, v[70:71]\nv_pk_fma_f32 v[32:33], {vr(U[i+1],2)}, {vr(U[i+1],2)}, v[32:33]")
    a("v_pk_add_f32 v[70:71], v[70:71], v[32:33]\nv_add_f32 v69, v70, v71")
    for ror in (8, 4, 2, 1): dpp_add(a, 69, 69, ror)
    a(f"""
    v_mov_b32 v70, 0x3727c5ac
    v_fmac_f32 v70, 0x3acccccd, v69
    v_rsq_f32 v69, v70
    v_lshlrev_b32 v65, 3, v65
    v_cmp_eq_u32 vcc, 0, v66
    s_and_saveexec_b64 s[48:49], vcc
    s_nop 1
    buffer_store_dwordx2 v[68:69], v65, s[16:19], 0 offen sc1
    s_mov_b64 exec, -1
    s_branch P0_done
    P0_fcols:
    s_cmp_ge_u32 s2, 216
    s_cbranch_scc1 P0_done
    v_and_b32 v68, 15, v60
    v_and_b32 v69, 1, v60
    v_lshlrev_b32 v69, 4, v69
    v_mov_b32 v70, 0x3f80
    v_lshlrev_b32 v69, v69, v70
    v_lshrrev_b32 v68, 1, v68
    """)
    for q in range(4): a(f"v_cmp_eq_u32 vcc, {q}, v68\ns_nop 1\nv_cndmask_b32 v{64+q}, 0, v69, vcc")
    a("s_nop 1")
    for i in range(10):
        a(f"v_mfma_f32_16x16x32_bf16 v[68:71], v[64:67], {vr(20+4*i,4)}, {'0' if i == 0 else 'v[68:71]'}")
    a(f"""
    s_mul_i32 s36, s34, {3456*4}
    s_lshl_b32 s35, s33, 8
    s_add_u32 s36, s36, s35
    s_add_u32 s36, s36, {WS_COLS}
    v_and_b32 v76, 7, v60
    v_lshlrev_b32 v76, 5, v76
    v_and_b32 v77, 16, v60
    v_add_u32 v76, v76, v77
    v_and_b32 v77, 40, v60
    """)
    for q in range(4): dpp_add(a, 72+q, 68+q, 8)
    a(f"""
    v_cmp_eq_u32 vcc, 0, v77
    s_and_saveexec_b64 s[48:49], vcc
    s_nop 1
    buffer_store_dwordx4 v[72:75], v76, s[16:19], s36 offen sc1
    s_mov_b64 exec, -1
    P0_done:
    """)

def l2_prefetch(a):
    a(f"""
    s_lshr_b32 s46, s2, 3               ; idx
    s_cmp_ge_u32 s31, 2
    s_cbranch_scc1 PF_w
    s_and_b32 s47, s2, 1
    s_lshl_b32 s47, s47, 5
    s_add_u32 s47, s47, s46
    s_mul_i32 s47, s47, {32*1280}
    v_and_b32 v20, 31, v60
    v_mul_u32_u24 v20, 1280, v20
    v_lshrrev_b32 v21, 5, v60
    s_lshl_b32 s48, s31, 1
    s_add_u32 s48, s48, s32
    s_add_u32 s48, s48, 2
    v_add_u32 v21, s48, v21
    """)
    for j in range(2):
        a(f"""
        v_add_u32 v22, {4*j}, v21
        v_subrev_u32 v23, 10, v22
        v_min_u32 v22, v22, v23
        v_lshl_add_u32 v22, v22, 7, v20
        buffer_load_dword v{16+j}, v22, s[4:7], s47 offen
        """)
    a(f"""
    buffer_load_dword v18, v22, s[4:7], s47 offen
    s_branch PF_x
    PF_w:
    s_lshr_b32 s47, s29, 1              ; pair
    s_add_u32 s48, s32, 2
    s_cmp_eq_u32 s31, 3
    s_cbranch_scc1 PF_w1
    s_mul_i32 s47, s47, 320
    s_and_b32 s47, s47, 0xffffff80
    s_mul_i32 s46, s46, {2*3840}
    s_add_u32 s47, s47, s46
    """)
    for j in range(3):
        a(f"""
        v_add_u32 v20, {64*j}, v60
        v_min_u32 v20, 143, v20
        v_mul_u32_u24 v21, 57, v20
        v_lshrrev_b32 v21, 9, v21           ; r = n / 9
        v_mul_u32_u24 v22, 9, v21
        v_sub_u32 v20, v20, v22             ; l
        v_mul_u32_u24 v22, 11, v20
        v_lshrrev_b32 v22, 5, v22           ; seg = l / 3
        v_mul_u32_u24 v22, {1280 - 384}, v22
        v_lshl_add_u32 v20, v20, 7, v22
        v_lshrrev_b32 v22, 1, v21
        v_add_u32 v22, s48, v22
        v_subrev_u32 v23, 10, v22
        v_min_u32 v22, v22, v23             ; chunk
        v_and_b32 v21, 1, v21
        v_lshl_add_u32 v21, v22, 6, v21
        v_mad_u32_u24 v20, v21, v24, v20
        buffer_load_dword v{16+j}, v20, s[8:11], s47 offen
        """.replace("v_add_u32 v20, 0, v60", "v_mov_b32 v24, 3840\nv_mov_b32 v20, v60"))
    a(f"""
    s_branch PF_x
    PF_w1:
    s_mul_i32 s46, s46, {2*3072}
    s_lshl_b32 s49, s47, 9
    s_add_u32 s46, s46, s49
    s_lshl_b32 s47, s47, 8
    s_sub_u32 s47, {2048 - 512}, s47
    v_mov_b32 v24, 3072
    """)
    for j in range(2):
        a(f"""
        v_add_u32 v20, {64*j}, v60
        v_min_u32 v20, 95, v20
        v_mul_u32_u24 v21, 43, v20
        v_lshrrev_b32 v21, 8, v21           ; r = n / 6
        v_mul_u32_u24 v22, 6, v21
        v_sub_u32 v20, v20, v22             ; l
        v_lshrrev_b32 v22, 2, v20
        v_mul_u32_u24 v22, s47, v22
        v_lshl_add_u32 v20, v20, 7, v22
        v_lshrrev_b32 v22, 1, v21
        v_add_u32 v22, s48, v22
        v_subrev_u32 v23, 10, v22
        v_min_u32 v22, v22, v23             ; chunk
        v_and_b32 v21, 1, v21
        v_lshl_add_u32 v21, v22, 6, v21
        v_mad_u32_u24 v20, v21, v24, v20
        buffer_load_dword v{16+j}, v20, s[12:15], s46 offen
        """)
    a("buffer_load_dword v18, v20, s[12:15], s46 offen\nPF_x:")

def code_touch(a, L):
    a(f"""
    s_getpc_b64 s[46:47]
    {L}_pc:
    s_sub_u32 s46, s46, {L}_pc-{NAME}_kernel
    s_subb_u32 s47, s47, 0
    s_lshr_b32 s44, s2, 3
    s_lshl_b32 s44, s44, 2
    s_add_u32 s44, s44, s31
    s_lshl_b32 s44, s44, 9
    v_and_b32 v13, 3, v60
    v_lshl_add_u32 v13, v13, 7, s44
    v_min_u32 v13, F_end-{NAME}_kernel, v13
    global_load_dword v79, v13, s[46:47]
    """)
    if OPT['tw'] & 2:
        a(f"""
        v_and_b32 v13, 15, v60
        v_min_u32 v13, 10, v13
        v_lshlrev_b32 v13, 21, v13
        s_add_u32 s46, s44, 0x10000
        buffer_load_dword v76, v13, s[16:19], s46 offen
        v_and_b32 v13, 0x200000, v13
        buffer_load_dword v75, v13, {SOUT}, s46 offen
        """)
    if OPT['tw'] & 1:
        a(f"""
        v_and_b32 v13, 3, v60
        v_lshlrev_b32 v13, 16, v13
        s_lshl_b32 s46, s44, 9
        buffer_load_dword v78, v13, s[16:19], s46 offen offset:3968
        s_lshl_b32 s46, s44, 7
        v_mov_b32 v13, 0
        buffer_load_dword v77, v13, {SOUT}, s46 offen
        """)

def flag_addrs(a):
    a(f"""
    s_lshl_b32 s50, s28, 11
    s_lshl_b32 s55, s30, 3
    s_add_u32 s55, s55, s29
    s_lshl_b32 s55, s55, 7
    s_add_u32 s50, s50, s55
    s_add_u32 s50, s50, {FL_H}
    s_lshl_b32 s51, s29, 11
    s_lshl_b32 s55, s28, 7
    s_add_u32 s51, s51, s55
    s_add_u32 s51, s51, {FL_KV}
    s_lshl_b32 s52, s28, 10
    s_lshl_b32 s55, s29, 7
    s_add_u32 s52, s52, s55
    s_add_u32 s52, s52, {FL_O}
    s_cmp_eq_u32 s30, 1
    s_cselect_b32 s51, s52, s51
    s_lshr_b32 s54, s2, 4
    s_lshl_b32 s54, s54, 7
    s_and_b32 s55, s2, 15
    s_lshl_b32 s55, s55, 2
    s_add_u32 s54, s54, s55
    s_add_u32 s54, s54, {FL_S}
    """)

def compute(a, typ):
    L = f"F_c{typ}"
    nh = 2 if typ == 0 else 4
    a(f"{L}:\ns_barrier")
    stamp(a, 1)
    for r in tile_reads(typ, 0, SET[0]): a(r)
    if OPT['al']: a(f"s_branch {L}_loop\n.p2align {OPT['al']}")
    a(f"{L}_loop:")
    for s in range(4):
        if s < 3:
            a("s_waitcnt lgkmcnt(0)")
            fill = tile_reads(typ, s + 1, SET[(s + 1) % 2])
            if s == 2:
                fill += [f"s_cmp_eq_u32 s42, 2", f"s_cselect_b32 s41, {-2*SLOT}, s45", "s_add_u32 s42, s42, 1", "s_cmp_eq_u32 s42, 3", "s_cselect_b32 s42, 0, s42", "s_bitcmp1_b32 s57, s40"]
        else:
            a(f"s_cbranch_scc1 {L}_it2\ns_waitcnt lgkmcnt(0)\ns_barrier\n{L}_it2r:")
            rd = tile_reads(typ, 0, SET[0])
            up = lambda r: f"v_add_u32 v{r}, s41, v{r}"
            fill = [up(XA), up(QA)] + rd[:3] + [up(HA + i) for i in range(nh)] + rd[3:6] + [up(XA + 1), up(XA + 2), up(XA + 3)] + rd[6:]
            fill += ["s_add_u32 s40, s40, 1", "s_cmp_lt_u32 s40, 10"]
        mfma_step(a, SET[s % 2], fill)
    a(f"s_cbranch_scc1 {L}_loop")
    if OPT['prio']: a("s_setprio 3")
    stamp(a, 2)
    fill = [f"ds_read_b32 v{RSTD}, v{RSTD}"]
    BD = 16
    bdr = {}
    order = [(0,0),(1,0),(0,1),(1,1),(2,2),(0,2),(1,2),(2,3),(1,3),(2,4),(1,4)]
    for n, (T, u) in enumerate(order):
        bdr[(T, u)] = BD + 4*n
        for uu in range(2): fill.append(f"ds_read_b64_tr_b16 {vr(BD+4*n+2*uu,2)}, v{BDA} offset:{(8*u+4*uu)*96 + T*32}")
    a("s_waitcnt lgkmcnt(0)")
    def hflag():
        a("s_waitcnt vmcnt(0)")
        arrive(a, C_H)
        a(f"s_cmp_eq_u32 s47, 3\ns_cbranch_scc0 {L}_nohf")
        flag_store(a, "s50")
        if typ == 1 and OPT['bp']:
            p2_ids(a, "s33", "s34")
            a(f"s_lshr_b32 s33, s33, 1\ns_lshl_b32 s33, s33, 11\ns_add_u32 s33, s33, {FL_H}\ns_mov_b64 s[34:35], 0xff00")
            poll(a, "s33", "s[34:35]", 60)
            setword(a, W_H)
        a(f"{L}_nohf:")
    hfirst = typ == 1 and OPT['bf']
    k = 0
    for n, t in enumerate([3, 4, 5, 6, 0, 1, 2] if hfirst else range(7)):
        acc = vr(ACC + 16*t, 16)
        a(f"v_mfma_f32_32x32x16_bf16 {acc}, {vr(SET[0]+4+4*t,4)}, {vr(SET[0],4)}, {acc}")
        for x in fill[4*n:4*n+4]: a(x)
    BF = 112; P = 64
    cv = [f"v_cvt_pk_bf16_f32 v{BF+i}, v{ACC+2*i}, v{ACC+2*i+1}" for i in range(20)]
    if not hfirst:
        for x in cv: a(x)
        a("s_waitcnt lgkmcnt(0)\ns_barrier")
    hb = ACC + (80 if typ == 0 else 48)
    npair = 4 if typ == 0 else 8
    va = [f"v_mul_f32 v12, {LOG2E}, v{RSTD}", f"v_mul_f32 v14, v{RSTD}, v{RSTD}"]
    for m in range(npair):
        b = hb + 8*m
        for i in range(8): va.append(f"v_max_f32 v{b+i}, 0, v{b+i}")
        for i in range(4): va.append(f"v_pk_mul_f32 {vr(136+2*i,2)}, {vr(b+2*i,2)}, v[14:15] op_sel_hi:[1,0]")
        for i in range(4): va.append(f"v_pk_mul_f32 {vr(b+2*i,2)}, {vr(136+2*i,2)}, {vr(b+2*i,2)}")
        for i in range(4): va.append(f"v_cvt_pk_bf16_f32 v{b+i}, v{b+2*i}, v{b+2*i+1}")
        va.append(f"buffer_store_dwordx4 {vr(b,4)}, v15, s[16:19], s43 offen offset:{(m>>1)*1024 + (m&1)*512} sc1")
    if OPT['gh'] == 2 or (OPT['gh'] == 3 and typ == 0): va.append(f"v_mov_b32 v1, 1\nv_mov_b32 v2, {W_O}\ns_mov_b64 exec, 1\nds_add_u32 v2, v1\ns_mov_b64 exec, -1")
    if hfirst:
        a("s_waitcnt lgkmcnt(15)")
        for x in va[:23]: a(x)
        a("s_waitcnt lgkmcnt(0)\ns_barrier")
        for x in va[23:] + cv + ["s_nop 1"]: a(x)
        va = []
        if OPT['hb2']: hflag()
    if typ == 0:
        vb = ACC + 40
        for i in range(20):
            va += [f"v_pk_mul_f32 {vr(vb+2*i,2)}, {vr(vb+2*i,2)}, {vr(RSTD,2)} op_sel_hi:[1,0]", f"v_cvt_pk_bf16_f32 v{vb+i}, v{vb+2*i}, v{vb+2*i+1}"]
        for i in range(5): va.append(f"ds_write_b128 v8, {vr(vb+4*i,4)} offset:{320+16*i}")
        va += ["v_mov_b32 v2, 0x3f80", "v_mov_b32 v3, 0", "ds_write_b64 v0, v[2:3] offset:480"]
    k = 0
    seen = set()
    for n, (T, u) in enumerate(order):
        d = vr(P + 16*T, 16)
        a(f"v_mfma_f32_32x32x16_bf16 {d}, {vr(bdr[(T,u)],4)}, {vr(BF+4*u,4)}, {d if T in seen else '0'}")
        seen.add(T)
        if n >= 2:
            for _ in range(6):
                if k < len(va): a(va[k]); k += 1
    while k < len(va): a(va[k]); k += 1
    stamp(a, 3)
    if typ == 0:
        if OPT['hfa']: hflag()
        softmax(a, P, ACC, list(range(16, 26)), list(range(26, 36)))
        if not OPT['hfa']: hflag()
        for i in range(5): a(f"ds_write_b128 v9, {vr(16+4*i,4)} offset:{16*i}")
        if OPT['ek'] == 3: early_flag(a)
        softmax(a, P + 20, ACC + 20, list(range(36, 46)), list(range(46, 56)))
        stamp(a, 4)
        if OPT['ek'] == 4: early_flag(a)
        for i in range(5, 10): a(f"ds_write_b128 v9, {vr(16+4*i,4)} offset:{16*i}")
        signal(a, C_PV)
        dstamp(a, 1)
        spin(a, C_PV, 4)
        if OPT['ek'] == 1: early_flag(a)
        dstamp(a, 2)
        for st in range(8):
            for u in range(2):
                off = u*4*PV_PITCH + st*16*PV_PITCH
                a(f"ds_read_b64_tr_b16 {vr(64+12*st+2*u,2)}, v61 offset:{off}\nds_read_b64_tr_b16 {vr(68+12*st+2*u,2)}, v61 offset:{off+40}\nds_read_b64_tr_b16 {vr(72+12*st+2*u,2)}, v62 offset:{off}")
            if st >= 2:
                a("s_waitcnt lgkmcnt(12)")
                for sg in range(2):
                    d = vr(160 + 16*sg, 16)
                    a(f"v_mfma_f32_32x32x16_bf16 {d}, {vr(64+12*(st-2)+4*sg,4)}, {vr(72+12*(st-2),4)}, {'0' if st == 2 else d}")
        for st in range(6, 8):
            a(f"s_waitcnt lgkmcnt({42-6*st})")
            for sg in range(2):
                d = vr(160 + 16*sg, 16)
                a(f"v_mfma_f32_32x32x16_bf16 {d}, {vr(64+12*st+4*sg,4)}, {vr(72+12*st,4)}, {d}")
        dstamp(a, 3)
        if OPT['ek'] == 2: early_flag(a)
        a("s_mov_b32 exec_lo, 0x1fffff\ns_mov_b32 exec_hi, 0x1fffff\ns_nop 7\ns_nop 2")
        for sg in range(2):
            for i in range(4): a(f"v_cvt_pk_bf16_f32 v{200+4*sg+i}, v{160+16*sg+2*i}, v{161+16*sg+2*i}")
            for i in range(2): a(f"v_cvt_pk_bf16_f32 v{208+2*sg+i}, v{168+16*sg+2*i}, v{169+16*sg+2*i}")
            a(f"buffer_store_dwordx4 {vr(200+4*sg,4)}, v63, s[16:19], s56 offen offset:{672*sg} sc1")
        a("s_mov_b32 exec_hi, 0")
        a(f"buffer_store_dwordx4 v[208:211], v63, s[16:19], s56 offen offset:1344 sc1")
        a("s_mov_b64 exec, -1\ns_branch F_fin")
    else:
        if OPT['hfb'] and not OPT['hb2']: hflag()
        else: a('s_nop 7\ns_nop 3')
        for hh in range(2):
            o = 16 + 20*hh
            softmax(a, P + 20*hh, ACC + 20*hh, [o+i for i in range(8)] + [o+16, o+17], [o+8+i for i in range(8)] + [o+18, o+19])
            if hh == 0 and not OPT['hfb']: hflag()
        stamp(a, 4)
        otask(a)
    a(f"""
    {L}_it2:
    s_cmp_eq_u32 s40, {OPT['cl']}
    s_cbranch_scc1 {L}_it0
    s_cmp_eq_u32 s40, {OPT['ct']}
    s_cbranch_scc1 {L}_itc
    s_cmp_eq_u32 s40, 1
    s_cbranch_scc1 {L}_it1
    v_mov_b32 v13, {W_N}
    ds_read_b32 v12, v13
    s_waitcnt vmcnt(0) lgkmcnt(0)
    s_barrier
    v_readfirstlane_b32 {NC}, v12
    s_cmp_eq_u32 s31, 0
    s_cbranch_scc0 {L}_it2r
    v_mov_b32 v13, 0
    s_mov_b64 exec, 1
    buffer_store_dword v12, v13, s[16:19], s54 offen sc1
    s_mov_b64 exec, -1
    s_branch {L}_it2r
    {L}_it0:
    s_waitcnt vmcnt(0)
    """)
    assert OPT['cl'] > OPT['ct'] > 2
    if typ == 0:
        a("""
        v_lshlrev_b32 v13, 4, v60
        buffer_store_dwordx4 v[16:19], v13, s[16:19], s56 offen sc1
        v_cmp_gt_u32 vcc, 41, v60
        s_mov_b64 exec, vcc
        buffer_store_dwordx4 v[16:19], v13, s[16:19], s56 offen offset:1024 sc1
        s_mov_b64 exec, -1
        """)
    a(f"{L}_itx:\ns_waitcnt lgkmcnt(0)\ns_barrier\ns_branch {L}_it2r\n{L}_it1:")
    if OPT['p0'] == 1: a(f"s_waitcnt vmcnt(0)\ns_call_b64 s[58:59], P0_fin")
    a(f"s_branch {L}_itx\n{L}_itc:")
    code_touch(a, L)
    a(f"s_branch {L}_itx")

def addr_setup(a, typ):
    nh = 2 if typ == 0 else 4
    a(f"""
    v_mul_u32_u24 v{QA}, {QP[typ]}, v61
    v_mul_u32_u24 v14, {QP[typ]//2}, v62
    v_lshlrev_b32 v15, 3, v63
    v_add3_u32 v{QA}, v{QA}, v14, v15
    v_add_u32 v{QA}, {QB + SLOT}, v{QA}
    v_lshlrev_b32 v{HA}, {7 if typ == 0 else 8}, v61
    v_and_b32 v14, 16, v60
    v_lshlrev_b32 v14, 1, v14
    v_lshl_add_u32 v14, v62, 4, v14
    v_and_b32 v15, 2, v60
    v_lshl_add_u32 v14, v15, 2, v14
    v_add_u32 v{HA}, v{HA}, v14
    v_add_u32 v{HA}, {HB[typ] + SLOT}, v{HA}
    """)
    if typ == 0: a(f"v_and_b32 v14, 8, v60\nv_lshl_add_u32 v{HA}, v14, 3, v{HA}")
    else:        a(f"v_and_b32 v14, 12, v60\nv_lshl_add_u32 v{HA}, v14, 4, v{HA}")
    for i in range(1, nh): a(f"v_xor_b32 v{HA+i}, {64*i}, v{HA}")
    a(f"""
    s_lshl_b32 s43, s28, 3
    s_lshl_b32 s44, s31, 1
    s_add_u32 s43, s43, s44
    s_mul_i32 s43, s43, {68*1024}
    s_mul_i32 s56, s29, 2560
    s_add_u32 s56, s56, s43
    s_add_u32 s56, s56, {WS_A2 + 192*256}
    s_lshl_b32 s44, s29, {11 if typ == 0 else 12}
    s_add_u32 s43, s43, s44
    s_add_u32 s43, s43, {WS_A2 + (32*1024 if typ == 0 else 0)}
    v_and_b32 v15, 16, v60
    v_mul_u32_u24 v15, {68*64}, v15
    v_and_b32 v13, 15, v60
    v_lshl_add_u32 v15, v13, 4, v15
    v_and_b32 v13, 32, v60
    v_lshl_add_u32 v15, v13, 3, v15
    v_mov_b32 v16, -1
    v_mov_b32 v17, -1
    v_mov_b32 v18, -1
    v_mov_b32 v19, -1
    """)
    if typ == 0:
        a(f"""
        v_and_b32 v0, 31, v60
        s_lshl_b32 s44, s31, 5
        v_lshrrev_b32 v13, 5, v60
        v_mul_u32_u24 v63, 336, v13
        v_lshl_add_u32 v63, v0, 4, v63
        v_add_u32 v0, s44, v0
        v_mul_u32_u24 v0, {PV_PITCH}, v0
        v_add_u32 v0, {PVB}, v0
        v_mul_u32_u24 v13, 80, v13
        v_add_u32 v8, v0, v13
        v_add_u32 v9, v8, v13
        v_mul_u32_u24 v72, {PV_PITCH}, v61
        v_add_u32 v72, {PVB}, v72
        v_bfe_u32 v73, v60, 1, 1
        v_lshl_add_u32 v73, v62, 1, v73     ; fmap for pc<4
        v_and_b32 v74, 16, v60
        v_cmp_eq_u32 vcc, 0, v74
        s_mul_i32 s44, s31, 80
        s_and_b32 s46, s31, 1
        v_cndmask_b32 v73, 4, v73, vcc
        v_lshl_add_u32 v61, v73, 3, v72
        v_add_u32 v61, s44, v61
        v_add_u32 v73, s46, v73
        v_cmp_eq_u32 vcc, 5, v73
        s_mul_i32 s44, s31, 40
        s_add_u32 s44, s44, 320
        v_cndmask_b32 v73, v73, 0, vcc
        v_lshl_add_u32 v73, v73, 3, s44
        v_and_b32 v74, 19, v60
        v_cmp_lt_u32 vcc, 16, v74
        v_mov_b32 v75, 480
        s_lshl_b32 s56, s29, 2
        s_add_u32 s56, s56, s31             ; head
        v_cndmask_b32 v73, v73, v75, vcc
        v_add_u32 v62, v73, v72             ; B address
        s_lshl_b32 s56, s56, 4
        s_add_u32 s56, s56, s28
        s_mul_i32 s56, s56, 1792
        s_add_u32 s56, s56, {WS_KVP}
        """)

def otask(a):
    for i in range(4*OPT['so']): a(f"v_mov_b32 v{64+i}, -1")
    for p in range(0, 10*OPT['so'], 2): a(f"buffer_store_dwordx4 v[64:67], v15, s[16:19], s56 offen offset:{256*p} sc1")
    for hh in range(2):
        for sg in range(2):
            for q in range(4): a(f"v_permlane32_swap_b32 v{16+20*hh+8*sg+q}, v{20+20*hh+8*sg+q}")
    a(f"""
    v_lshrrev_b32 v3, 4, v60
    v_mul_u32_u24 v4, 1792, v3
    v_and_b32 v5, 15, v60
    v_lshl_add_u32 v4, v5, 4, v4
    v_lshlrev_b32 v12, 7, v5
    s_lshl_b32 s45, s29, 11
    s_add_u32 s45, s45, {FL_KV}
    s_lshl_b32 s33, s29, 2
    s_add_u32 s33, s33, s31
    s_mul_i32 s33, s33, {16*1792}
    s_add_u32 s33, s33, {WS_KVP}
    v_and_b32 v6, 1, v60
    v_lshlrev_b32 v6, 4, v6
    v_mov_b32 v7, 0x3f80
    v_lshlrev_b32 v6, v6, v7
    v_lshrrev_b32 v7, 1, v5
    """)
    for q in range(4): a(f"v_cmp_eq_u32 vcc, {q}, v7\ns_nop 1\nv_cndmask_b32 v{56+q}, 0, v6, vcc")
    a(f"""
    s_mul_i32 s34, s31, 1792
    s_add_u32 s34, s34, {L_STG}
    v_lshlrev_b32 v5, 4, v5
    v_bfe_u32 v6, v60, 4, 1
    v_lshl_add_u32 v5, v6, 3, v5
    v_add_u32 v5, s34, v5
    v_and_b32 v6, 31, v60
    v_min_u32 v6, 20, v6
    v_lshrrev_b32 v7, 5, v60
    v_mul_u32_u24 v8, 336, v7
    v_lshlrev_b32 v6, 4, v6
    v_add_u32 v6, {L_STG}, v6
    v_add_u32 v8, v8, v6
    v_add_u32 v6, 1344, v6
    v_mov_b32 v9, {L_BD + 2*3840 + 1024}
    v_cmp_gt_u32 vcc, 32, v60
    v_add_u32 v10, {2*1792}, v6
    s_mov_b32 s38, 0x01ff01ff
    s_mov_b32 s39, 0x01ff01ff
    v_cndmask_b32 v6, v9, v6, vcc
    v_cndmask_b32 v10, v10, v9, vcc
    s_cmp_eq_u32 s31, 0
    s_cbranch_scc0 F_o1w
    s_mov_b32 s48, 0
    s_mov_b64 exec, 0xffff
    F_o1:
    buffer_load_dword v3, v12, s[16:19], s45 offen sc1
    s_add_u32 s48, s48, 1
    s_waitcnt vmcnt(0)
    v_cmp_eq_u32 vcc, {NC}, v3
    s_mov_b32 s47, 3
    s_cmp_ge_u32 s48, {TMO}
    s_cbranch_scc1 F_o1x
    s_and_b32 s36, vcc_lo, 0xff
    s_cmp_eq_u32 s36, 0xff
    s_cselect_b32 s47, 1, 0
    s_cmp_ge_u32 vcc_lo, 0xff00
    s_cselect_b32 s36, 2, 0
    s_or_b32 s47, s47, s36
    s_cbranch_scc0 F_o1
    F_o1x:
    v_mov_b32 v1, s47
    v_mov_b32 v2, {W_KV}
    ds_write_b32 v2, v1
    s_mov_b64 exec, -1
    s_branch F_o1y
    F_o1w:
    """)
    spin(a, W_KV, 1)
    a(f"""
    F_o1y:
    s_mov_b32 s34, s47
    s_cmp_eq_u32 s47, 2
    s_cselect_b32 s35, {8*1792}, 0
    s_add_u32 s36, s33, s35
    s_xor_b32 s35, s35, {8*1792}
    s_add_u32 s35, s33, s35
    s_add_u32 s37, s36, {4*1792}
    s_add_u32 s44, s35, {4*1792}
    """)
    stamp(a, 5)
    LD = 140
    def loads(h, s0, s1):
        for i in range(2):
            for g in range(7): a(f"buffer_load_dwordx4 {vr(LD+4*(14*h+7*i+g),4)}, v4, s[16:19], {(s0, s1)[i]} offen offset:{256*g} sc1")
    def verify(h, L):
        r = [LD + 4*(14*h+7*i+g) + 3 for i in range(2) for g in range(6)]
        a(f"v_max3_u32 v11, v{r[0]}, v{r[1]}, v{r[2]}\nv_max3_u32 v13, v{r[3]}, v{r[4]}, v{r[5]}")
        a(f"v_max3_u32 v11, v11, v{r[6]}, v{r[7]}\nv_max3_u32 v13, v13, v{r[8]}, v{r[9]}\nv_max3_u32 v11, v11, v{r[10]}, v{r[11]}")
        a(f"""
        v_max_u32 v14, v{LD+4*(14*h+6)+3}, v{LD+4*(14*h+13)+3}
        v_max_u32 v11, v11, v13
        v_cmp_eq_u32 s[46:47], -1, v14
        v_cmp_eq_u32 vcc, -1, v11
        s_add_u32 s49, s49, 1
        s_and_b64 s[46:47], s[46:47], s[38:39]
        s_or_b64 vcc, vcc, s[46:47]
        s_cmp_ge_u32 s49, {TMO}
        s_cselect_b64 vcc, 0, vcc
        s_cbranch_vccnz {L}
        """)
    a("s_mov_b32 s49, 0\nF_o2:")
    loads(0, "s36", "s37")
    a(f"""
    s_cmp_eq_u32 s34, 3
    s_cbranch_scc1 F_o3x
    s_cmp_eq_u32 s31, 0
    s_cbranch_scc0 F_o3w
    s_mov_b64 s[40:41], 0xffff
    """)
    if OPT['k2'] == 1:
        a("s_and_b32 s40, s34, 1\ns_lshl_b32 s40, s40, 10\ns_add_u32 s45, s45, s40")
        spoll(a, "s45", [40, 41, 42, 43, 46, 47, 57, 58])
    else: poll(a, "s45", "s[40:41]", 60)
    a(f"v_mov_b32 v1, 1\nv_mov_b32 v2, {W_K2}\nds_write_b32 v2, v1\ns_branch F_o3x\nF_o3w:")
    spin(a, W_K2, 1)
    a("F_o3x:\ns_mov_b32 s34, 3")
    dstamp(a, 1)
    loads(1, "s35", "s44")
    for h in range(2):
        a(f"s_waitcnt vmcnt({14 - 14*h})\nF_ov{h}:")
        verify(h, f"F_or{h}")
        for i in range(2):
            for g in range(7):
                d = vr(64 + 4*g, 4)
                a(f"v_mfma_f32_16x16x32_bf16 {d}, v[56:59], {vr(LD+4*(14*h+7*i+g),4)}, {'0' if h + i == 0 else d}")
    a("s_nop 0")
    dstamp(a, 2)
    if OPT['eo'] == 3: early_flag(a)
    a("s_mov_b32 exec_hi, 0")
    for g in range(7):
        a(f"v_cvt_pk_bf16_f32 v{96+2*g}, v{64+4*g}, v{65+4*g}\nv_cvt_pk_bf16_f32 v{97+2*g}, v{66+4*g}, v{67+4*g}\nds_write_b64 v5, {vr(96+2*g,2)} offset:{256*g}")
    signal(a, C_OB)
    spin(a, C_OB, 4)
    if OPT['eo'] == 1: early_flag(a)
    dstamp(a, 3)
    AF = 64
    for hd in range(4):
        for st in range(2): a(f"ds_read_b128 {vr(AF+12*hd+4*st,4)}, v8 offset:{1792*hd + 672*st}")
        a(f"ds_read_b128 {vr(AF+12*hd+8,4)}, v{6 if hd < 2 else 10} offset:{1792*(hd&1)}")
    OD = 128
    pp = [0, 3, 5, 8]
    def norm(hd):
        d = OD + 16*hd
        r = [f"v_add_f32 v{d+12}, 0x358637bd, v{d+12}", f"v_rcp_f32 v{d+12}, v{d+12}", "s_nop 0"]
        for i in range(6): r.append(f"v_pk_mul_f32 {vr(d+2*i,2)}, {vr(d+2*i,2)}, {vr(d+12,2)} op_sel_hi:[1,0]")
        for i in range(4): r.append(f"v_cvt_pk_bf16_f32 v{d+i}, v{d+2*i}, v{d+2*i+1}")
        for i in range(2): r.append(f"v_cvt_pk_bf16_f32 v{112+2*hd+i}, v{d+8+2*i}, v{d+9+2*i}")
        r.append(f"buffer_store_dwordx4 {vr(d,4)}, v15, s[16:19], s56 offen offset:{256*pp[hd]} sc1")
        return r
    q = []
    for up in range(2):
        for st in range(3):
            for hh in range(2):
                hd = 2*up + hh
                if st == 0: a(f"s_waitcnt lgkmcnt({9-3*hd})")
                b = 16 + 20*hh + (8*st + 4*up if st < 2 else 16)
                d = vr(OD + 16*hd, 16)
                a(f"v_mfma_f32_32x32x16_bf16 {d}, {vr(AF+12*hd+4*st,4)}, {vr(b,4)}, {'0' if st == 0 else d}")
                if up == 1 and st == 0 and hh == 1: q = ['s_nop 6'] + norm(0) + norm(1)
                for _ in range(7):
                    if q: a(q.pop(0))
    for x in q: a(x)
    a("s_mov_b32 exec_hi, 0")
    a(f"buffer_store_dwordx4 v[112:115], v15, s[16:19], s56 offen offset:{256*2} sc1\ns_mov_b32 exec_hi, -1\ns_nop 3")
    for x in norm(2) + norm(3): a(x)
    a("s_mov_b32 exec_hi, 0")
    a(f"buffer_store_dwordx4 v[116:119], v15, s[16:19], s56 offen offset:{256*7} sc1")
    if OPT['gb'] == 3: signal(a, W_O)
    if not OPT['so']: a("s_waitcnt vmcnt(0)")
    a("s_mov_b64 exec, -1\ns_branch F_fin")
    for h in range(2):
        a(f"F_or{h}:")
        loads(h, *(("s36", "s37"), ("s35", "s44"))[h])
        a(f"s_waitcnt vmcnt(0)\ns_branch F_ov{h}")

def fin(a):
    a("F_fin:")
    stamp(a, 6)
    if OPT['eo'] == 0 or OPT['ek'] == 0:
        arrive(a, C_O)
        a("s_cmp_eq_u32 s47, 3\ns_cbranch_scc0 F_ot_end")
        if OPT['ek']: a("s_cmp_eq_u32 s30, 1\ns_cbranch_scc0 F_ot_end")
        flag_store(a, "s51")
    else:
        signal(a, C_O)
        a("s_waitcnt lgkmcnt(0)")
    a("F_ot_end:")
    stamp(a, 7)
    stamp_flush(a, 8, 1)
    a("s_endpgm")

def dma(a, base, j, v, srd_, soff):
    a(f"s_add_u32 m0, {base}, {1024*j}\ns_nop 0\nbuffer_load_dwordx4 v{v}, {srd_}, {soff} offen lds")
def issue_head(a):
    a("""
    s_lshl_b32 s34, s32, 7
    s_mul_i32 s35, s32, 245760
    s_mul_i32 s36, s32, 196608
    s_add_u32 s41, s33, s45
    s_add_u32 s42, s33, s46
    s_add_u32 s43, s33, s47
    """)
def issue_tail(a):
    a(f"""
    s_add_u32 s32, s32, 1
    s_cmp_eq_u32 s32, 10
    s_cselect_b32 s32, 0, s32
    s_add_u32 s33, s33, {SLOT}
    s_cmp_eq_u32 s33, {3*SLOT}
    s_cselect_b32 s33, 0, s33
    """)
def first_chunk(a, typ):
    nq = 5 if typ == 0 else 3
    nh = 2 if typ == 0 else 4
    for j in range(nh):
        if j == 0:
            if typ == 0:
                a(f"""
                s_lshl_b32 s37, s31, 4
                v_lshrrev_b32 v3, 3, v60
                v_add_u32 v3, s37, v3               ; row
                v_lshrrev_b32 v4, 2, v60
                v_and_b32 v4, 4, v4
                v_and_b32 v5, 7, v60
                v_xor_b32 v4, v4, v5
                v_mul_u32_u24 v3, 3072, v3
                v_lshl_add_u32 v3, v4, 4, v3
                v_add_u32 v19, s39, v3
                """)
            else:
                a(f"""
                s_lshl_b32 s37, s31, 4
                v_lshrrev_b32 v3, 4, v60
                v_lshlrev_b32 v4, 2, v3
                v_add_u32 v3, s37, v3               ; row
                v_and_b32 v5, 15, v60
                v_xor_b32 v4, v4, v5
                v_mul_u32_u24 v3, 3072, v3
                v_lshl_add_u32 v3, v4, 4, v3
                v_add_u32 v19, s39, v3
                """)
        else:
            a(f"v_add_u32 v{19+j}, {(8 if typ == 0 else 4)*3072*j}, v19")
        dma(a, "s43", j, 19 + j, "s[12:15]", "s36")
    a(f"s_mul_i32 s37, s31, {16*3840}\ns_add_u32 s38, s38, s37")
    for j in range(nq):
        a(f"v_add_u32 v2, {64*j}, v60")
        if typ == 0:
            a(f"""
            v_mul_u32_u24 v3, 3277, v2
            v_lshrrev_b32 v3, 16, v3            ; row
            v_mul_u32_u24 v4, 20, v3
            v_sub_u32 v4, v2, v4                ; pos
            v_mul_u32_u24 v5, 52, v4
            v_lshrrev_b32 v5, 8, v5             ; seg
            v_mul_u32_u24 v3, 3840, v3
            v_lshl_add_u32 v3, v4, 4, v3
            v_and_b32 v6, 1, v5
            v_mul_u32_u24 v6, 1200, v6
            v_lshrrev_b32 v5, 1, v5
            v_mul_u32_u24 v5, 80, v5
            v_add3_u32 v3, v3, v6, s38
            v_sub_u32 v{14+j}, v3, v5
            """)
        else:
            a(f"""
            v_mul_u32_u24 v3, 5462, v2
            v_lshrrev_b32 v3, 16, v3            ; row
            v_mul_u32_u24 v4, 12, v3
            v_sub_u32 v4, v2, v4                ; pos
            v_mul_u32_u24 v5, 43, v4
            v_lshrrev_b32 v5, 8, v5             ; seg
            v_sub_u32 v6, v4, v5
            v_mul_u32_u24 v3, 3840, v3
            v_lshl_add_u32 v3, v6, 4, v3
            v_add_u32 v{14+j}, s38, v3
            """)
        dma(a, "s42", j, 14 + j, "s[8:11]", "s35")

def issue_sub(a):
    if OPT['al']: a(f".p2align {OPT['al']}")
    a("F_issue:")
    issue_head(a)
    for j in range(4): dma(a, "s41", j, 10 + j, "s[4:7]", "s34")
    for j in range(3): dma(a, "s42", j, 14 + j, "s[8:11]", "s35")
    for j in range(2): dma(a, "s43", j, 19 + j, "s[12:15]", "s36")
    a("s_cmp_eq_u32 s30, 1\ns_cbranch_scc1 F_issue_b")
    for j in range(3, 5): dma(a, "s42", j, 14 + j, "s[8:11]", "s35")
    a("s_branch F_issue_e\nF_issue_b:")
    for j in range(2, 4): dma(a, "s43", j, 19 + j, "s[12:15]", "s36")
    a("F_issue_e:")
    issue_tail(a)
    a("s_setpc_b64 s[56:57]")
CALL = "s_call_b64 s[56:57], F_issue"

def cols_addr(a, typ):
    nql = 40 if typ == 0 else 24
    if typ == 0:
        a(f"""
        v_mul_u32_u24 v2, 26, v60
        v_lshrrev_b32 v2, 8, v2             ; seg
        v_mul_u32_u24 v3, 10, v2
        v_sub_u32 v3, v60, v3               ; w
        v_and_b32 v4, 1, v2
        v_mul_u32_u24 v4, 640, v4
        v_lshrrev_b32 v2, 1, v2
        v_mul_u32_u24 v2, 40, v2
        v_lshl_add_u32 v2, v3, 2, v2
        s_mul_i32 s37, s29, 80
        s_add_u32 s37, s37, 640
        v_add3_u32 v2, v2, v4, s37          ; colQ
        s_lshl_b32 s37, s29, 6
        s_add_u32 s37, s37, {1024 - 4*nql}
        """)
    else:
        a(f"""
        v_mul_u32_u24 v2, 22, v60
        v_lshrrev_b32 v2, 8, v2             ; seg
        v_lshlrev_b32 v2, 1, v2
        v_sub_u32 v2, v60, v2
        s_mul_i32 s37, s29, 80
        v_lshl_add_u32 v2, v2, 2, s37       ; colQ
        s_lshl_b32 s37, s29, 7
        s_sub_u32 s37, s37, {4*nql}
        """)
    a(f"""
    v_lshl_add_u32 v3, v60, 2, s37          ; w1 column
    v_add_u32 v4, 1920, v3
    v_lshlrev_b32 v3, 1, v3
    v_mov_b32 v5, 0x40000000
    v_cmp_gt_u32 vcc, {nql}, v60
    v_mov_b32 v6, {2*SLOT + HB[typ] - 8*nql}
    v_mov_b32 v7, {2*SLOT + QB}
    v_cndmask_b32 v2, v4, v2, vcc
    v_cndmask_b32 v51, v3, v5, vcc
    v_cndmask_b32 v6, v6, v7, vcc
    v_lshl_add_u32 v6, v60, 3, v6           ; A0
    v_mov_b32 v7, {HP[typ]}
    v_mov_b32 v8, {QP[typ]}
    v_cndmask_b32 v7, v7, v8, vcc           ; pitch
    v_mov_b32 v8, 64
    v_cndmask_b32 v8, v8, v56, vcc          ; X
    v_lshlrev_b32 v50, 2, v2
    """)
    for k in range(5):
        xm = ((k >> 1) & 1) if typ == 0 else (k & 3)
        a(f"v_mul_u32_u24 v{40+k}, {xm}, v8\nv_xor_b32 v{40+k}, v{40+k}, v6\nv_mad_u32_u24 v{40+k}, v7, {k}, v{40+k}")

def helper(a):
    a(f"""
    F_helper:
    s_sub_u32 s31, s31, 4
    s_lshl_b32 s37, s28, 7
    s_lshl_b32 s38, s31, 5
    s_add_u32 s37, s37, s38             ; first token row
    v_lshrrev_b32 v2, 3, v60
    v_add_u32 v2, s37, v2
    v_mul_u32_u24 v2, 1280, v2
    v_lshrrev_b32 v3, 4, v60
    v_and_b32 v4, 7, v60
    v_xor_b32 v3, v3, v4
    v_lshl_add_u32 v10, v3, 4, v2
    v_xor_b32 v3, 4, v3
    v_lshl_add_u32 v11, v3, 4, v2
    v_add_u32 v11, {8*1280}, v11
    v_add_u32 v12, {16*1280}, v10
    v_add_u32 v13, {16*1280}, v11
    s_lshl_b32 s45, s31, 12
    s_cmp_eq_u32 s30, 1
    s_cselect_b32 s46, 3072, 5120
    s_cselect_b32 s47, 4096, 2048
    s_cselect_b32 s37, {HB[1]}, 0
    s_cselect_b32 s38, 0, {HB[0]}
    s_mul_i32 s46, s46, s31
    s_add_u32 s46, s46, {QB}
    s_mul_i32 s47, s47, s31
    s_add_u32 s47, s47, s37
    s_add_u32 s47, s47, s38
    s_mov_b32 s33, {SLOT}
    """.replace("s_cselect_b32 s46, 3072, 5120", "s_cselect_b32 s46, 3, 5\ns_lshl_b32 s46, s46, 10\ns_cmp_eq_u32 s30, 1").replace("s_cselect_b32 s47, 4096, 2048", "s_cselect_b32 s47, 4, 2\ns_lshl_b32 s47, s47, 10\ns_cmp_eq_u32 s30, 1"))
    issue_head(a)
    a("s_mul_i32 s38, s29, 160\ns_waitcnt lgkmcnt(0)")
    stamp(a, 1)
    for j in range(4): dma(a, "s41", j, 10 + j, "s[4:7]", "s34")
    a("""
    s_cmp_eq_u32 s30, 1
    s_cbranch_scc1 F_hb
    s_add_u32 s38, s38, 1280
    s_lshl_b32 s39, s29, 7
    s_add_u32 s39, s39, 2048
    """)
    first_chunk(a, 0)
    a("v_mov_b32 v21, v19\nv_mov_b32 v22, v19\ns_branch F_hc\nF_hb:\ns_lshl_b32 s39, s29, 8")
    first_chunk(a, 1)
    a("v_mov_b32 v17, v14\nv_mov_b32 v18, v14\nF_hc:")
    issue_tail(a)
    a(CALL)
    a(f"""
    s_mov_b32 s40, s2
    s_mov_b32 s44, s31
    s_cmp_lt_u32 s31, 2
    s_cselect_b32 s58, 1, 0
    s_cbranch_scc1 F_wt_sel
    s_and_b32 s44, s2, 1
    s_lshr_b32 s40, s2, 1
    s_add_u32 s40, s40, {256 - 112}
    s_cmp_eq_u32 s31, 2
    s_cselect_b32 s58, 1, 0
    s_cmp_ge_u32 s2, 224
    s_cselect_b32 s58, s58, 0
    F_wt_sel:
    s_mul_i32 s49, s31, 5120
    s_add_u32 s49, s49, {L_STG}
    v_mov_b32 v62, 0
    v_mov_b32 v63, 0
    s_cmp_eq_u32 s58, 0
    s_cbranch_scc1 F_wt_skip1
    """)
    t = Asm(); t.nlabel = 900
    wt_task(t, "s40", "s44", "s49", 60, SW2, SWO, "s[16:19]", "FW")
    txt = t.text()
    import re
    remap = {20: 62, 21: 63, 22: 23, 23: 24, 24: 25, 25: 26, 26: 27}
    txt = re.sub(r"\bv(2[0-6])\b", lambda m: f"v{remap[int(m.group(1))]}", txt)
    a(txt)
    a(f"""
    F_wt_skip1:
    s_lshl_b32 s37, s29, 2
    s_add_u32 s37, s37, s31
    s_mul_i32 s37, s37, 800
    v_lshlrev_b32 v2, 3, v60
    buffer_load_dwordx2 v[30:31], v2, s[20:23], s37 offen
    buffer_load_dwordx2 v[32:33], v2, s[20:23], s37 offen offset:512
    v_mov_b32 v56, 0
    v_mov_b32 v57, 0
    v_mov_b32 v58, 0
    v_mov_b32 v59, 0
    s_mul_i32 s37, s31, 2880
    s_add_u32 s37, s37, {L_BD}
    v_lshl_add_u32 v2, v60, 4, s37
    ds_write_b128 v2, v[56:59]
    ds_write_b128 v2, v[56:59] offset:1024
    ds_write_b128 v2, v[56:59] offset:1856
    v_lshlrev_b32 v61, 2, v60
    v_min_u32 v2, 60, v61
    v_add_u32 v2, {L_CNT}, v2
    ds_write_b32 v2, v56
    v_mov_b32 v50, 0
    v_mov_b32 v51, 0
    s_cmp_eq_u32 s31, 3
    s_cbranch_scc0 F_ca2
    s_cmp_eq_u32 s30, 1
    s_cbranch_scc1 F_ca1
    """)
    cols_addr(a, 0)
    a("s_branch F_ca2\nF_ca1:")
    cols_addr(a, 1)
    a(f"""
    F_ca2:
    v_mov_b32 v49, {W_N}
    s_mov_b32 s40, {FL_S}
    s_cmp_eq_u32 s58, 1
    s_cbranch_scc1 F_wt_j1
    s_waitcnt vmcnt(13)
    F_wt_j1:
    s_waitcnt vmcnt(18) lgkmcnt(0)
    s_barrier
    {"s_setprio 2" if OPT['hp'] == 2 else ""}
    {CALL}
    s_waitcnt vmcnt(13)
    s_barrier
    s_cmp_eq_u32 s58, 0
    s_cbranch_scc1 F_wt_skip2
    """)
    for nt in range(5):
        for u in range(2): a(f"ds_read_b64_tr_b16 {vr(64+4*nt+2*u,2)}, v62 offset:{u*640 + 8*nt}")
    a(f"{CALL}\ns_waitcnt lgkmcnt(0)")
    for nt in range(5):
        a(f"buffer_store_dwordx4 {vr(64+4*nt,4)}, v63, s[16:19], s{54 if nt < 4 else 55} offen offset:{(nt%4)*1024}{SC}")
    a(f"""
    s_waitcnt vmcnt(16)
    s_branch F_wt_j2
    F_wt_skip2:
    s_buffer_load_dword {NC}, {SDBG}, 0
    {CALL}
    s_cmp_eq_u32 s31, 3
    s_cbranch_scc0 F_ng_x
    s_mov_b32 s48, 0
    s_waitcnt lgkmcnt(0)
    s_cmp_eq_u32 {NC}, 0
    s_cbranch_scc0 F_ng_y
    F_ng:
    s_buffer_load_dword {NC}, {SDBG}, 0 glc
    s_add_u32 s48, s48, 1
    s_waitcnt lgkmcnt(0)
    s_cmp_ge_u32 s48, {TMO}
    s_cbranch_scc1 F_ng_y
    s_cmp_eq_u32 {NC}, 0
    s_cbranch_scc1 F_ng
    F_ng_y:
    v_mov_b32 v2, {NC}
    ds_write_b32 v49, v2
    F_ng_x:
    s_waitcnt vmcnt(11) lgkmcnt(0)
    F_wt_j2:
    s_barrier
    """)
    for k in range(3, 7):
        a(CALL)
        if k == 5: a(f"""
    s_sub_u32 s37, s31, 1
    s_lshl_b32 s37, s37, 6
    v_add_u32 v2, s37, v60
    v_and_b32 v2, 127, v2
    v_lshlrev_b32 v45, 3, v2
    v_lshlrev_b32 v46, 7, v2
    v_and_b32 v7, 14, v2
    v_lshl_add_u32 v46, v7, 3, v46
    v_add_u32 v46, {2*SLOT}, v46
    v_xor_b32 v47, 16, v46
    v_lshlrev_b32 v48, 2, v2
    v_add_u32 v48, {L_RSTD}, v48
    v_lshrrev_b32 v61, 2, v60
    v_lshlrev_b32 v61, 7, v61
    v_and_b32 v3, 3, v60
    v_lshl_add_u32 v61, v3, 4, v61
 """)
        a("s_waitcnt vmcnt(11)\ns_barrier")
    a(f"""
    s_cmp_eq_u32 s31, 3
    s_cbranch_scc1 F_pl
    {CALL}
    s_waitcnt vmcnt(11)
    s_branch F_pollx
    F_pl:
    buffer_load_dwordx4 v[36:39], v61, s[16:19], s40 offen sc1
    {CALL}
    s_mov_b32 s48, 0
    s_waitcnt vmcnt(11)
    F_poll:
    v_min3_u32 v2, v36, v37, v38
    v_max3_u32 v3, v36, v37, v38
    v_min_u32 v2, v2, v39
    v_max_u32 v3, v3, v39
    v_cmp_eq_u32 s[38:39], {NC}, v2
    v_cmp_eq_u32 vcc, {NC}, v3
    s_and_b64 vcc, vcc, s[38:39]
    s_add_u32 s48, s48, 1
    s_cmp_ge_u32 s48, {TMO}
    s_cbranch_scc1 F_pollx
    s_cmp_eq_u64 vcc, -1
    s_cbranch_scc1 F_pollx
    buffer_load_dwordx4 v[36:39], v61, s[16:19], s40 offen sc1
    s_waitcnt vmcnt(0)
    s_branch F_poll
    F_pollx:
    s_barrier
    """)
    se = OPT['se']
    if not se: a(CALL)
    a(f"""
    s_cmp_eq_u32 s31, 3
    s_cbranch_scc1 F_ldc
    s_lshl_b32 s38, s28, 10
    buffer_load_dwordx2 v[64:65], v45, s[16:19], s38 offen sc1
    {CALL if se else ""}
    s_waitcnt vmcnt(12)
    s_branch F_ldx
    F_ldc:
    s_mov_b32 s37, {WS_COLS}
    """)
    for i in range(8): a(f"buffer_load_dwordx4 {vr(64+4*i,4)}, v50, s[16:19], s37 offen sc1\ns_add_u32 s37, s37, {3456*4}")
    a(f"""
    buffer_load_dwordx2 v[52:53], v51, s[24:27], 0 offen
    {CALL if se else ""}
    s_waitcnt vmcnt(20)
    F_ldx:
    s_barrier
    ds_read_b32 v36, v49
    s_and_b32 s37, s31, 1
    s_mul_i32 s37, s37, {20*96 + 40}
    s_lshr_b32 s38, s31, 1
    s_mul_i32 s38, s38, 3840
    s_add_u32 s37, s37, s38
    s_add_u32 s37, s37, {L_BD}
    v_mul_u32_u24 v2, 205, v60
    v_lshrrev_b32 v2, 10, v2
    v_mul_u32_u24 v2, 56, v2
    v_lshl_add_u32 v2, v60, 3, v2
    v_add_u32 v28, s37, v2
    v_add_u32 v3, 64, v60
    v_mul_u32_u24 v2, 205, v3
    v_lshrrev_b32 v2, 10, v2
    v_mul_u32_u24 v2, 56, v2
    v_lshl_add_u32 v2, v3, 3, v2
    v_add_u32 v29, s37, v2
    ds_write_b64 v28, v[30:31]
    v_cmp_gt_u32 vcc, 36, v60
    s_and_saveexec_b64 s[48:49], vcc
    ds_write_b64 v29, v[32:33]
    s_mov_b64 exec, -1
    s_mov_b32 s39, 0xffff0000
    """)
    p2_ids(a, "s28", "s29")
    a("v_mov_b32 v14, v60")
    p2_setup(a, "s31", 14)
    if OPT['rot']:
        a({1: "s_add_u32 s42, s28, s29", 2: "s_mov_b32 s42, s29"}[OPT['rot']])
        a("s_and_b32 s42, s42, 3\ns_mov_b32 s43, s32\ns_mov_b32 s44, s33\n" + nxt(0, 32, 43, 4096, 57) + "\n" + nxt(0, 33, 44, 20480, 58))
    n1, n2 = OPT['w8'], OPT['w8'] + OPT['w9']
    wl = [ldW(i, nt, SC) for i in range(4) for nt in range(5)] + [wdma(0, j, nt) for j in range(2) for nt in range(5)]
    for x in wl[:n1]: a(x)
    p2_epi_addr(a, "s31", 14)
    a(f"""
    s_mul_i32 s37, s31, 5120
    s_add_u32 s57, s31, 1
    s_mul_i32 s58, s57, 20480
    s_lshl_b32 s57, s57, 12
    s_lshr_b32 s55, s28, 1
    s_lshl_b32 s55, s55, 2
    s_add_u32 s55, s55, s31
    s_lshl_b32 s55, s55, 8
    s_add_u32 s55, s55, {FL_O}
    s_waitcnt lgkmcnt(0)
    v_readfirstlane_b32 {NC}, v36
    s_cmp_eq_u32 s31, 3
    {[f"s_cbranch_scc1 F_w9; s_waitcnt vmcnt({1+n1}); F_w9:; s_waitcnt vmcnt({9+n1}); s_barrier; s_waitcnt vmcnt({n1})", f"s_waitcnt vmcnt({n1}); s_barrier", f"s_waitcnt vmcnt({11+n1})"][se].replace("; ", chr(10))}
    s_cbranch_scc1 F_prc
    s_cmp_eq_u32 s31, 0
    s_cbranch_scc1 F_prx
    v_rcp_f32 v66, v65
    v_sub_f32 v64, 0, v64
    v_cvt_pk_bf16_f32 v68, v64, v64
    v_and_b32 v67, s39, v68
    v_sub_f32 v64, v64, v67
    v_cvt_pk_bf16_f32 v69, v64, v66
    v_and_b32 v67, s39, v69
    v_sub_f32 v66, v66, v67
    v_cvt_pk_bf16_f32 v70, v66, v56
    v_mov_b32 v71, 0
    ds_write_b128 v46, v[68:71]
    ds_write_b128 v47, v[56:59]
    ds_write_b32 v48, v65
    s_branch F_prx
    F_prc:
    """)
    for i in range(1, 8):
        for q in range(2): a(f"v_pk_add_f32 {vr(64+2*q,2)}, {vr(64+2*q,2)}, {vr(64+4*i+2*q,2)}")
    a("""
    v_cvt_pk_bf16_f32 v70, v64, v65
    v_cvt_pk_bf16_f32 v71, v66, v67
    v_lshlrev_b32 v72, 16, v70
    v_and_b32 v73, s39, v70
    v_lshlrev_b32 v74, 16, v71
    v_and_b32 v75, s39, v71
    v_sub_f32 v64, v64, v72
    v_sub_f32 v65, v65, v73
    v_sub_f32 v66, v66, v74
    v_sub_f32 v67, v67, v75
    v_cvt_pk_bf16_f32 v72, v64, v65
    v_cvt_pk_bf16_f32 v73, v66, v67
    v_cmp_gt_u32 vcc, 56, v60
    s_and_saveexec_b64 s[48:49], vcc
    ds_write_b64 v40, v[70:71]
    ds_write_b64 v41, v[72:73]
    ds_write_b64 v42, v[70:71]
    ds_write_b64 v43, v[52:53]
    ds_write_b64 v44, v[52:53]
    s_mov_b64 exec, -1
    F_prx:
    """)
    if se == 2: a(f"s_waitcnt vmcnt({n1})\ns_barrier")
    d3 = OPT['d3']
    def late(cond, lab):
        if cond: a(f"s_cmp_eq_u32 s31, 3\ns_cbranch_scc{cond - 1} {lab}")
        for x in wl[n1:n2]: a(x)
        if cond: a(f"{lab}:")
    if d3 == 0: late(0, "")
    if d3 in (1, 2): late(2, "F_d3a")
    a("v_add_u32 v15, s37, v6\nv_add_u32 v13, 61440, v15\nv_add_u32 v1, 112640, v15\ns_waitcnt lgkmcnt(0)\ns_barrier")
    if d3 == 2: late(1, "F_d3b")
    if d3 == 3: late(0, "")
    a("s_barrier")
    if d3 == 1: late(1, "F_d3b")
    if d3 == 4: late(0, "")
    if OPT['gh'] == 3:
        a(f"s_mul_i32 s36, s30, {C_H - W_O}\ns_add_u32 s36, s36, {W_O}")
        spin(a, "s36", 4, va=10)
    elif OPT['gh']: spin(a, C_H if OPT['gh'] == 1 else W_O, 4, va=10)
    for x in wl[n2:]: a(x)

def wslot(typ, j): return j*20480 + (128*PV_PITCH if typ == 0 and j >= 2 else 0)
def wdma(typ, j, nt):
    t = f"s_add_u32 m0, s37, {wslot(typ, j) + (4096 if nt == 4 else 0)}\ns_nop 0\n" if nt in (0, 4) else ""
    if nt < 4: return t + f"buffer_load_dwordx4 v6, s[16:19], s33 offen offset:{nt*1024}{NS[OPT['nsw']]} lds"
    return t + f"buffer_load_dwordx4 v7, s[16:19], s33 offen{NS[OPT['nsw']]} lds\n" + (nxt(j + 5, 33, 44, 20480, 58) if OPT['rot'] else "s_add_u32 s33, s33, 20480")

class VM:
    def __init__(self, a): self.a = a; self.q = []
    def issue(self, tag, text): self.a(text); self.q.append(tag)
    def wait(self, tags, extra=""):
        last = max(i for i, t in enumerate(self.q) if t in tags)
        n = len(self.q) - 1 - last
        assert n < 64
        self.a(f"s_waitcnt vmcnt({n}){extra}")
def phase2(a):
    a("F_p2:\ns_cmp_eq_u32 s30, 1\ns_cbranch_scc1 F_p2_1")
    for typ in range(2):
        a(f"F_p2_{typ}:")
        phase2_t(a, typ)
        if typ == 0: a("s_branch F_p2_e")
    a("F_p2_e:")
    stamp(a, 7)
    a("s_waitcnt lgkmcnt(0)\ns_barrier")
    for m in range(3):
        for nt in range(5): a(f"ds_read_b128 {vr(20+20*m+4*nt,4)}, v{10+m} offset:{m*20480 + nt*1024}")
    for m in range(3):
        a(f"s_waitcnt lgkmcnt({10-5*m})")
        for q in range(10): a(f"v_pk_add_f32 {vr(AC2+2*q,2)}, {vr(AC2+2*q,2)}, {vr(20+20*m+2*q,2)}")
    for q in range(10): a(f"v_cvt_pk_bf16_f32 v{AC2+q}, v{AC2+2*q}, v{AC2+2*q+1}")
    a(f"buffer_store_dwordx4 {vr(AC2,4)}, v8, {SOUT}, s34 offen\nbuffer_store_dwordx4 {vr(AC2+4,4)}, v8, {SOUT}, s34 offen offset:16\nbuffer_store_dwordx2 {vr(AC2+8,2)}, v8, {SOUT}, s34 offen offset:32")
    a("s_add_u32 s31, s31, 4")
    stamp_flush(a, 8, 1)
    a("s_endpgm")
    for x in ool: a(x)

ool = []
def phase2_t(a, typ):
    nl = OPT['nlb'] if typ else OPT['nla']
    LA = OPT['la']
    vm = VM(a)
    for i in range(4):
        for nt in range(5): vm.q.append(("W", i))
    for j in range(nl):
        for nt in range(5):
            if j < 2: vm.q.append(("WL", j))
            else: vm.issue(("WL", j), wdma(typ, j, nt))
    stamp(a, 2)
    a(f"s_lshr_b32 s54, s28, 1\ns_lshl_b32 s54, s54, 11\ns_add_u32 s54, s54, {FL_H}\ns_mov_b64 s[38:39], {'0xff00' if OPT['bf'] else '0xffff'}\ns_mov_b64 s[40:41], 0xff")
    if not (typ == 1 and OPT['bp']):
        a(f"s_cmp_eq_u32 s31, 0\ns_cbranch_scc0 F_p2_wait{typ}")
        poll(a, "s54", "s[38:39]", 14, va=10)
        setword(a, W_H, va=10)
    a(f"F_p2_wait{typ}:")
    spin(a, W_H, 1, va=10)
    stamp(a, 3)
    if typ == 0 and OPT['ga']: spin(a, C_O, 4, va=10)
    gate = 4 + nl if typ == 1 and OPT['gb'] else 99
    for i in range(LA):
        for m in range(4): vm.issue(("A", i), ldA(i, m, SC))
    xe = AR + 32
    def lds_rd(i, nt):
        o = wslot(typ, i - 4) + nt*1024
        r, o = (15, o) if o < 61440 else (13, o - 61440) if o < 112640 else (1, o - 112640)
        return f"ds_read_b128 {vr(WR+20*(i%4)+4*nt,4)}, v{r} offset:{o}"
    FS = OPT['fast']
    def xadd():
        vm.wait(["x"])
        a("s_mov_b32 s39, 0xffff0000")
        for q in range(10):
            x = xe + q; b = xe + 10 + q
            t = xe + 20
            a(f"v_lshlrev_b32 v{t}, 16, v{x}\nv_and_b32 v{t+1}, s39, v{x}\nv_lshlrev_b32 v{t+2}, 16, v{b}\nv_and_b32 v{t+3}, s39, v{b}")
            a(f"v_pk_add_f32 {vr(t,2)}, {vr(t,2)}, {vr(t+2,2)}\nv_pk_add_f32 {vr(AC2+2*q,2)}, {vr(AC2+2*q,2)}, {vr(t,2)}")
    def prep():
        a("s_mov_b32 s48, 0")
        for m in range(1, 4):
            a(f"s_sub_u32 s36, s31, {m}\ns_and_b32 s36, s36, 3\ns_mul_i32 s36, s36, 5120\nv_add_u32 v{9+m}, s36, v6")
    def fo_issue():
        a("v_and_b32 v0, 1, v14\nv_lshlrev_b32 v0, 7, v0")
        vm.issue("fo", "buffer_load_dword v0, v0, s[16:19], s55 offen sc1")
    def steps(i0, i1, fast):
      tg = f"{typ}{'f' if fast else ''}"
      for i in range(i0, i1):
        if i == 12 and not fast:
            if not FS: xadd()
            stamp(a, 5)
            if typ == 0: spin(a, C_O, 4, va=10)
            vm.wait(["fo"])
            a(f"v_cmp_eq_u32 vcc, {NC}, v0\ns_cmp_eq_u64 vcc, -1\ns_cbranch_scc1 F_fo{typ}")
            poll(a, "s55", "3", 14, va=10)
            a(f"F_fo{typ}:")
            stamp(a, 6)
            a("s_mov_b32 s56, s32")
            for k in range(12, 17):
                for m in range(4): vm.issue(("A", k), ldA(k, m, SC))
            prep()
        if i == 12 and fast:
            stamp(a, 5)
            if typ == 0: spin(a, C_O, 4, va=10)
            prep()
        if i == gate:
            spin(a, C_O if OPT['gb'] == 2 else W_O, 4, va=10)
            for k in range(gate, gate + 4):
                for nt in range(5): vm.issue(("W", k), ldW(k, nt, SC))
            a("s_mov_b32 s52, s33\ns_add_u32 s33, s33, 5120")
            for nt in range(5): vm.issue(("W", 16), wdma(typ, 3, nt))
            a("s_mov_b32 s33, s52")
        if OPT['bf'] and i == OPT['fa']:
            a("v_and_b32 v12, 7, v14\nv_lshlrev_b32 v12, 7, v12")
            vm.issue("fa", "buffer_load_dword v12, v12, s[16:19], s54 offen sc1")
        if OPT['bf'] and i == 8 - LA:
            vm.wait(["fa"])
            a(f"v_cmp_eq_u32 vcc, {NC}, v12\ns_cmp_eq_u64 vcc, -1\ns_cbranch_scc1 F_fa{typ}")
            poll(a, "s54", "s[40:41]", 14, va=10)
            a(f"F_fa{typ}:")
        ex = ""
        if i == 16: ex = " lgkmcnt(0)"
        if 4 <= i < 4 + nl: ex = f" lgkmcnt({5*(min(i + 3, 3 + nl) - i)})"
        vm.wait([("A", i), ("W", i)] + ([("W", 16)] if i == 12 else []), ex)
        if i == 0: stamp(a, 4)
        if i >= 12 and OPT['so']:
            b = AR + 16*(i % 5)
            a(f"F_v{tg}_{i}:\nv_max3_u32 v0, v{b+3}, v{b+7}, v{b+11}\nv_max_u32 v0, v0, v{b+15}\nv_cmp_eq_u32 vcc, -1, v0\ns_cbranch_vccnz F_r{tg}_{i}\nF_g{tg}_{i}:")
            t = f"F_r{tg}_{i}:\ns_add_u32 s48, s48, 1\ns_cmp_ge_u32 s48, {TMO}\ns_cbranch_scc1 F_g{tg}_{i}\ns_add_u32 s36, s56, {(i-12)*1024}\n"
            for m in range(4): t += f"buffer_load_dwordx4 {vr(b+4*m,4)}, v{2+m}, s[16:19], s36 offen sc1\n"
            ool.append(t + f"s_waitcnt vmcnt(0)\ns_branch F_v{tg}_{i}")
        if i == 16:
            for m in (1, 2, 3, 0):
                for nt in range(5):
                    d = vr(AC2 + 20*m + 4*nt, 4)
                    a(f"v_mfma_f32_16x16x32_bf16 {d}, {vr(WR+20*(i%4)+4*nt,4)}, {vr(AR+16*(i%5)+4*m,4)}, {d}")
                    pm = (m - 1) % 4
                    if pm == 1 and nt == 0: a('s_nop 2')
                    if pm: a(f"ds_write_b128 v15, {vr(AC2+20*pm+4*nt,4)} offset:{(pm-1)*20480 + nt*1024}")
            continue
        for nt in range(5):
            for m in range(4):
                d = vr(AC2 + 20*m + 4*nt, 4)
                a(f"v_mfma_f32_16x16x32_bf16 {d}, {vr(WR+20*(i%4)+4*nt,4)}, {vr(AR+16*(i%5)+4*m,4)}, {'0' if i == 0 else d}")
                if m == 1 and nt < 4:
                    if i + LA < 12: vm.issue(("A", i + LA), ldA(i + LA, nt, SC))
                    elif fast and i + 4 < 17: vm.issue(("A", i + 4), ldA(i + 4, nt, SC))
            if i + 4 < 4 + nl: a(lds_rd(i + 4, nt))
            elif i == 12: a(lds_rd(7, nt).replace(vr(WR+60+4*nt,4), vr(WR+4*nt,4)))
            elif i + 4 < 16 and not (gate <= i + 4 < gate + 4): vm.issue(("W", i + 4), ldW(i + 4, nt, SC))
        if i == 7 and gate == 99:
            a("s_mov_b32 s52, s33\ns_add_u32 s33, s33, 20480")
            for nt in range(5): vm.issue(("W", 16), wdma(typ, 3, nt))
            a("s_mov_b32 s33, s52")
        if i == 11 and not fast: fo_issue()
        if i == 8:
            for k, (n, o) in enumerate(((4, 0), (4, 16), (2, 32))):
                vm.issue("x", f"buffer_load_dwordx{n} {vr(xe+4*k,n)}, v8, s[4:7], s34 offen offset:{o}")
            for k, (n, o) in enumerate(((4, 0), (4, 16), (2, 32))):
                vm.issue("x", f"buffer_load_dwordx{n} {vr(xe+10+4*k,n)}, v9, {SB2}, s35 offen offset:{o}")
        if FS and i == FS - 2: fo_issue()
    if not FS:
        steps(0, 17, False)
        return
    steps(0, FS, False)
    xadd()
    vm.wait(["fo"])
    a(f"v_cmp_eq_u32 vcc, {NC}, v0\ns_cmp_eq_u64 vcc, -1\ns_cbranch_scc1 F_fast{typ}")
    q0 = list(vm.q)
    steps(FS, 17, False)
    a(f"s_branch F_p2_e\nF_fast{typ}:")
    vm.q = q0
    stamp(a, 6)
    a("s_mov_b32 s56, s32")
    for k in range(12, FS + 4):
        for m in range(4): vm.issue(("A", k), ldA(k, m, SC))
    steps(FS, 17, True)

def KR():
    k = OPT['kr']
    if k == 0: return ""
    t = {1: "s_and_b32 s35, s34, 7\ns_add_u32 s32, s32, s35",
         2: "s_and_b32 s35, s34, 7\ns_add_u32 s32, s32, s35\ns_lshr_b32 s35, s34, 3\ns_mul_i32 s35, s35, 3\ns_add_u32 s32, s32, s35",
         3: "s_and_b32 s35, s34, 1\ns_mul_i32 s35, s35, 5\ns_add_u32 s32, s32, s35",
         4: "s_lshr_b32 s35, s34, 3\ns_add_u32 s35, s35, s34\ns_and_b32 s35, s35, 1\ns_add_u32 s32, s32, s35"}[k]
    return t + "\ns_mul_i32 s35, s32, 26\ns_lshr_b32 s35, s35, 8\ns_mul_i32 s35, s35, 10\ns_sub_u32 s32, s32, s35"

def gen_f1():
    a = Asm()
    stamp(a, 0)
    srd(a, 4, 0, NB_X); srd(a, 8, 8, NB_WQKV); srd(a, 12, 40, NB_W1); srd(a, 16, 88, WS_END); srd(a, 20, 16, NB_WPHI); srd(a, 24, 48, NB_B1)
    srd(a, 60, 56, NB_W2); srd(a, 64, 24, NB_WO); srd(a, 68, 72, NB_X); srd(a, 72, 64, NB_B2); srd(a, 76, 80, 256)
    a(f"""
    s_cmp_ge_u32 s2, 256
    s_cbranch_scc1 F_end
    v_lshrrev_b32 v1, 6, v0
    v_and_b32 v60, 63, v0
    s_and_b32 s33, s2, 7                ; xcd
    v_readfirstlane_b32 s31, v1
    s_lshr_b32 s34, s2, 3               ; idx
    s_and_b32 s28, s33, 1
    s_lshl_b32 s28, s28, 3
    s_and_b32 s35, s34, 7
    s_add_u32 s28, s28, s35             ; rb
    s_lshr_b32 s35, s34, 3              ; jj
    s_lshr_b32 s30, s35, 1              ; type
    s_and_b32 s35, s35, 1
    s_and_b32 s29, s33, 6
    s_add_u32 s29, s29, s35             ; g
    s_mov_b32 s32, s33
    {KR()}
    s_cmp_lt_u32 s31, 4
    s_cbranch_scc1 F_comp
    """)
    if OPT['hp'] == 1: a("s_setprio 2")
    helper(a)
    phase2(a)
    issue_sub(a)
    a(f"""
    F_comp:
    s_lshl_b32 s33, s2, 2
    s_add_u32 s33, s33, s31
    s_cmp_eq_u32 s33, 3
    s_cbranch_scc0 F_nonce_x
    s_mov_b32 s34, {WS_NONCE}
    s_waitcnt lgkmcnt(0)
    s_buffer_load_dword s35, s[16:19], s34 glc
    v_mov_b32 v3, 0
    s_waitcnt lgkmcnt(0)
    s_add_u32 s35, s35, 1
    s_max_u32 s35, s35, 1
    v_mov_b32 v2, s35
    s_mov_b64 exec, 1
    buffer_store_dword v2, v3, {SDBG}, 0 offen sc1
    buffer_store_dword v2, v3, s[16:19], s34 offen sc1
    s_mov_b64 exec, -1
    F_nonce_x:
    """)
    if OPT['cpf'] == 2: code_touch(a, "F_ct"); a("v_mov_b32 v24, v21")
    phase0_issue(a)
    if OPT['pf1'] == 1: a('s_waitcnt lgkmcnt(0)'); l2_prefetch(a)
    a(f"""
    v_lshrrev_b32 v61, 5, v60
    v_bfe_u32 v62, v60, 2, 2
    v_lshl_add_u32 v61, v61, 3, v62     ; 8hf + j
    v_and_b32 v62, 1, v60               ; c&1
    v_bfe_u32 v63, v60, 4, 1
    v_bfe_u32 v2, v60, 1, 1
    v_lshl_add_u32 v63, v63, 1, v2      ; 2gg + (c>>1)
    v_and_b32 v2, 31, v60
    s_lshl_b32 s43, s31, 5
    v_add_u32 v2, s43, v2
    v_lshrrev_b32 v3, 5, v60
    v_bfe_u32 v4, v2, 1, 3
    v_xor_b32 v3, v3, v4
    v_lshlrev_b32 v3, 4, v3
    v_lshl_add_u32 v{XA}, v2, 7, v3
    v_lshlrev_b32 v{RSTD}, 2, v2
    v_add_u32 v{RSTD}, {L_RSTD}, v{RSTD}
    v_add_u32 v{XA}, {SLOT}, v{XA}
    v_xor_b32 v{XA+1}, 32, v{XA}
    v_xor_b32 v{XA+2}, 64, v{XA}
    v_xor_b32 v{XA+3}, 96, v{XA}
    v_lshrrev_b32 v12, 5, v60
    v_cmp_eq_u32 vcc, v12, v62
    v_bfe_u32 v13, v60, 2, 2
    v_mul_u32_u24 v13, 96, v13
    v_cndmask_b32 v12, 2, v12, vcc
    v_mul_u32_u24 v12, 3840, v12
    v_lshl_add_u32 v13, v63, 3, v13
    v_add_u32 v{BDA}, v12, v13
    v_add_u32 v{BDA}, {L_BD}, v{BDA}
    s_cmp_eq_u32 s30, 1
    s_cbranch_scc1 F_as1
    """)
    addr_setup(a, 0)
    a("s_branch F_as2\nF_as1:")
    addr_setup(a, 1)
    a("F_as2:")
    for i in range(112): a(f"v_mov_b32 v{ACC+i}, 0")
    if OPT['p0'] == 2 and not OPT['pe']: a("s_waitcnt vmcnt(0)"); phase0_finish(a)
    if OPT['p0'] == 2 and OPT['pe']: a("s_waitcnt vmcnt(0)\ns_call_b64 s[58:59], P0_fin")
    if OPT['pf1'] == 2: a('s_waitcnt lgkmcnt(0)'); l2_prefetch(a)
    flag_addrs(a)
    a(f"""
    s_waitcnt lgkmcnt(0)
    s_mov_b32 s40, 0
    s_mov_b32 s57, {4 | (1 << OPT['cl']) | (1 << OPT['ct']) | (2 if OPT['p0'] == 1 else 0)}
    s_mov_b32 s42, 1
    s_mov_b32 s45, {SLOT}
    s_cmp_eq_u32 s30, 1
    s_cbranch_scc1 F_c1
    """)
    compute(a, 0)
    compute(a, 1)
    fin(a)
    if OPT['p0'] == 1 or OPT['pe']:
        a("P0_fin:")
        phase0_finish(a)
        a("s_setpc_b64 s[58:59]")
    a("F_end:\ns_endpgm")
    return a.text()

def build():
    t = gen_f1()
    for e in check_hazards(t): print(e)
    return file_text([f"; @launch grid=(256,1,1) block=(512,1,1) lds={F_LDS}"], [(NAME + "_kernel", t, 256, 102, 256)])
if __name__ == "__main__":
    for arg in list(sys.argv[1:]):
        if "=" in arg:
            k, v = arg.split("="); OPT[k] = int(v); sys.argv.remove(arg)
    out = sys.argv[1] if len(sys.argv) > 1 else f"cdna_kernels/{NAME}.s"
    open(out, "w").write(build())
```

```python
import sys
sys.path.insert(0, "gen")
import asmlib
asmlib.STAMPS = True
from asmlib import *
from layout import *
from k0 import srd
def zk(kidx, i, wg=0, wave=0):
    a = Asm()
    srd(a, 16, 88, WS_END)
    a(f"""
    s_cmp_ge_u32 s2, 1
    s_cbranch_scc1 Z_end
    v_mov_b32 v0, 0
    s_mov_b32 s20, {WS_DBG + kidx*0x20000 + (wg*8+wave)*64 + 4*i}
    s_waitcnt lgkmcnt(0)
    buffer_load_dword v1, v0, s[16:19], s20 offen
    s_waitcnt vmcnt(0)
    v_readfirstlane_b32 s21, v1
    Z_loop:
    s_memrealtime s[22:23]
    s_waitcnt lgkmcnt(0)
    s_sub_u32 s22, s22, s21
    s_cmp_lt_u32 s22, 10000
    s_cbranch_scc1 Z_loop
    Z_end:
    s_endpgm
    """)
    return a.text()
def add_probe(text, kidx, i, wg=0, wave=0):
    lines = text.split("\n")
    n = 0
    while lines[n].startswith("; @launch"): n += 1
    head = lines[:n]
    if "kernel=" not in head[0]: head[0] = head[0].replace("; @launch", f"; @launch kernel={NAME}_kernel")
    head.append("; @launch kernel=z_kernel grid=(1,1,1) block=(64,1,1) lds=0")
    rest = "\n".join(lines[n:])
    rest = rest.replace('.section .rodata,"a"\n', kernel_begin("z_kernel") + zk(kidx, i, wg, wave) + '.section .rodata,"a"\n' + kernel_desc("z_kernel", 8, 32, 8))
    return "\n".join(head) + "\n" + rest
if __name__ == "__main__":
    import gen4
    t = gen4.build()
    for k, i in [(0, 0), (0, 1), (1, 0), (1, 1), (1, 6), (3, 0), (3, 1), (3, 7), (2, 0), (2, 1), (1, 2)]:
        open(f"p_{k}_{i}.s", "w").write(add_probe(t, k, i))
```

```python
import sys
sys.path.insert(0, "gen")
from probe_t import add_probe
src = sys.argv[1]; wave = int(sys.argv[2])
t = open(src).read()
for i in sys.argv[3:]:
    open(src.replace(".s", f"_p{wave}_{i}.s"), "w").write(add_probe(t, 1, int(i), wg=9, wave=wave))
```

```python
import sys
sys.path.insert(0, "gen")
import asmlib
if "--stamps" in sys.argv: asmlib.STAMPS = True; sys.argv.remove("--stamps")
from asmlib import *
from layout import *
from k0 import srd, dpp_add
from k1 import ACC, SET, XA, QA, HA, RSTD, BDA, LOG2E, tile_reads, mfma_step, softmax
from k2b import wt_task, wt_finish, p2_setup, p2_epi_addr, p2_final, AR, WR, AC2
import k2b
NS = {0: " sc1", 1: "", 2: " nt", 3: " sc0"}
def nxt(i, r, base, stride, last):
    if i == 12: return f"s_add_u32 s{r}, s{base}, s{last}\ns_add_u32 s{r}, s{r}, {11*stride}"
    if i < 8: t = f"s_lshl1_add_u32 s{r}, s42, {i}\ns_and_b32 s{r}, s{r}, 7"
    else:     t = f"s_add_u32 s{r}, s42, {i}\ns_and_b32 s{r}, s{r}, 3\ns_or_b32 s{r}, s{r}, 8"
    return t + f"\ns_mul_i32 s{r}, s{r}, {stride}\ns_add_u32 s{r}, s{r}, s{base}"
def ldA(i, m, sc):
    t = k2b.ldA(i, m, NS[OPT['nsa']])
    if OPT['rot'] and i <= 11: return t.replace("s_add_u32 s32, s32, 4096", nxt(i + 1, 32, 43, 4096, 57))
    if i == 11: t = t.replace("s32, 4096", "s32, s57")
    if i > 11: t = t.replace("s32, 4096", "s32, 1024")
    return t
def ldW(i, nt, sc):
    t = k2b.ldW(i, nt, NS[OPT['nsw']])
    if OPT['rot'] and i <= 11: return t.replace("s_add_u32 s33, s33, 20480", nxt(i + 1, 33, 44, 20480, 58))
    if i == 11: t = t.replace("s33, 20480", "s33, s58")
    if i > 11: t = t.replace("s33, 20480", "s33, 5120")
    return t
SC = " sc1"
SW2, SWO, SOUT, SB2, SDBG = "s[60:63]", "s[64:67]", "s[68:71]", "s[72:75]", "s[76:79]"
C_H, C_PV, W_K2, W_KV, C_OB, C_O, W_H, W_O, W_N = [L_CNT + 4*i for i in range(9)]
FL_S = WS_FLAG + 0x2000
WS_NONCE = WS_FLAG + 0x4000
NC = "s53"
TMO = 1 << 18
OPT = dict(da=0, c2=0, se=2, hp=0, d3=1, pfw=0, pfa=0, defer=1, pf1=0, w8=10, w9=20, prio=1, nla=4, nlb=7, spoll=0, hfa=0, la=4, gh=1, ga=1, gb=0, hfb=1, pd=1, ek=1, eo=0, il=1, bf=1, w16=1, fa=2, map=0, bp=0, k2=0, fast=0, cpf=1, p0=2, hb2=1, cl=8, ct=4, so=0, tw=0, al=0, pe=1, kr=0, rot=0, dg=0, nsa=0, nsw=0)
def dstamp(a, i):
    if OPT['dg']: stamp(a, i)
PVB = 40960

def arrive(a, off, va=1):
    a(f"""
    v_mov_b32 v{va}, 1
    v_mov_b32 v{va+1}, {off}
    s_mov_b64 exec, 1
    ds_add_rtn_u32 v{va+2}, v{va+1}, v{va}
    s_waitcnt lgkmcnt(0)
    s_mov_b64 exec, -1
    v_readfirstlane_b32 s47, v{va+2}
    """)
def signal(a, off, va=1):
    a(f"v_mov_b32 v{va}, 1\nv_mov_b32 v{va+1}, {off}\ns_mov_b64 exec, 1\nds_add_u32 v{va+1}, v{va}\ns_mov_b64 exec, -1")
def spin(a, off, val, va=1):
    L = a.label("spin")
    a(f"""
    v_mov_b32 v{va+1}, {off}
    s_mov_b32 s48, 0
    {L}:
    ds_read_b32 v{va+2}, v{va+1}
    s_add_u32 s48, s48, 1
    s_waitcnt lgkmcnt(0)
    v_readfirstlane_b32 s47, v{va+2}
    s_cmp_ge_u32 s48, {TMO}
    s_cbranch_scc1 {L}_x
    {f's_cmp_lt_u32 s47, {val}' if val else 's_andn2_b32 s47, s55, s47'}
    s_cbranch_scc1 {L}
    {L}_x:
    """)
def setword(a, off, va=1):
    a(f"v_mov_b32 v{va}, 1\nv_mov_b32 v{va+1}, {off}\nds_write_b32 v{va+1}, v{va}\ns_waitcnt lgkmcnt(0)")
def flag_store(a, soff, va=1):
    a(f"v_mov_b32 v{va}, {NC}\nv_mov_b32 v{va+1}, 0\ns_mov_b64 exec, 1\nbuffer_store_dword v{va}, v{va+1}, s[16:19], {soff} offen sc1\ns_mov_b64 exec, -1")
def poll(a, soff, mask, lane, va=1, pub=None):
    L = a.label("poll")
    pd = OPT['pd']
    R = [va + 1, va + 2] + [va + 4 + i for i in range(2)] if va == 1 else [va + 1, va + 2, 16, 17]
    a(f"""
    v_lshlrev_b32 v{va}, 7, v{lane}
    s_mov_b32 s48, 0
    {f'v_mov_b32 v{va+3}, {pub}' if pub else ''}
    s_mov_b64 exec, {mask}
    """)
    ld = lambda k: f"buffer_load_dword v{R[k]}, v{va}, s[16:19], {soff} offen sc1"
    for k in range(pd - 1): a(ld(k) + "\ns_nop 7\ns_nop 7" * 0)
    a(f"{L}:")
    for k in range(pd):
        a(f"""
        {ld((k + pd - 1) % pd)}
        s_add_u32 s48, s48, 1
        s_waitcnt vmcnt({pd-1})
        v_cmp_eq_u32 vcc, {NC}, v{R[k]}
        s_cmp_ge_u32 s48, {TMO}
        s_cbranch_scc1 {L}_x
        """)
        if pub: a(f"v_mov_b32 v{R[k]}, vcc_lo\nds_write_b32 v{va+3}, v{R[k]}\ns_waitcnt lgkmcnt(0)")
        a(f"s_cmp_eq_u64 vcc, {mask}")
        a(f"s_cbranch_scc0 {L}" if k == pd - 1 else f"s_cbranch_scc1 {L}_x")
    a(f"{L}_x:\ns_mov_b64 exec, -1")

def early_flag(a):
    L = a.label("ef")
    a(f"s_cmp_eq_u32 s31, 0\ns_cbranch_scc0 {L}")
    flag_store(a, "s51")
    a(f"{L}:")
def spoll(a, soff, regs):
    L = a.label("spoll")
    a(f"s_mov_b32 s48, 0\n{L}:")
    for i, r in enumerate(regs): a(f"s_buffer_load_dword s{r}, s[16:19], {soff} offset:{128*i} glc")
    a(f"s_add_u32 s48, s48, 1\ns_cmp_ge_u32 s48, {TMO}\ns_waitcnt lgkmcnt(0)\ns_cbranch_scc1 {L}_x")
    for r in regs: a(f"s_cmp_eq_u32 s{r}, {NC}\ns_cbranch_scc0 {L}")
    a(f"{L}_x:")

def p2_ids(a, rg, cg):
    if OPT['map'] == 1:
        a(f"s_and_b32 s36, s2, 7\ns_lshl_b32 s36, s36, 2\ns_bfe_u32 s37, s2, 0x20003\ns_add_u32 {rg}, s36, s37\ns_lshr_b32 {cg}, s2, 5")
        return
    if OPT['map'] == 2:
        a(f"s_bfe_u32 s36, s2, 0x10002\ns_lshl_b32 s36, s36, 4\ns_bfe_u32 s37, s2, 0x40003\ns_add_u32 {rg}, s36, s37\ns_and_b32 s36, s2, 3\ns_lshl_b32 s36, s36, 1\ns_lshr_b32 {cg}, s2, 7\ns_add_u32 {cg}, {cg}, s36")
        return
    a(f"""
    s_and_b32 s36, s2, 7
    s_lshr_b32 s37, s2, 3
    s_lshr_b32 {rg}, s36, 1
    s_lshl_b32 {rg}, {rg}, 3
    s_and_b32 s38, s37, 7
    s_add_u32 {rg}, {rg}, s38
    s_and_b32 {cg}, s36, 1
    s_lshl_b32 {cg}, {cg}, 2
    s_lshr_b32 s38, s37, 3
    s_add_u32 {cg}, {cg}, s38
    """)

def phase0_issue(a):
    a(f"""
    s_cmp_ge_u32 s31, 2
    s_cbranch_scc1 P0_cols
    s_lshl_b32 s33, s2, 3
    s_lshl_b32 s34, s31, 2
    s_add_u32 s33, s33, s34
    v_lshrrev_b32 v65, 4, v60
    v_add_u32 v65, s33, v65
    v_and_b32 v66, 15, v60
    v_mul_u32_u24 v64, 1280, v65
    v_lshl_add_u32 v64, v66, 4, v64
    s_waitcnt lgkmcnt(0)
    """)
    for i in range(5): a(f"buffer_load_dwordx4 {vr(20+4*i,4)}, v64, s[4:7], 0 offen offset:{256*i}")
    a(f"""
    s_branch P0_issued
    P0_cols:
    s_cmp_ge_u32 s2, 216
    s_cbranch_scc1 P0_issued
    s_lshr_b32 s33, s2, 2            ; line
    s_and_b32 s34, s2, 3
    s_lshl_b32 s34, s34, 1
    s_add_u32 s34, s34, s31
    s_sub_u32 s34, s34, 2            ; part 0..7
    s_mul_i32 s35, s34, 80
    v_lshrrev_b32 v76, 3, v60
    v_add_u32 v76, s35, v76
    v_and_b32 v77, 7, v60
    v_lshlrev_b32 v77, 4, v77
    s_cmp_ge_u32 s33, 30
    s_cbranch_scc1 P0_w1
    s_lshl_b32 s36, s33, 7
    v_mul_u32_u24 v76, 3840, v76
    v_add_u32 v76, v76, v77
    s_waitcnt lgkmcnt(0)
    """)
    for i in range(10): a(f"buffer_load_dwordx4 {vr(20+4*i,4)}, v76, s[8:11], s36 offen\ns_add_u32 s36, s36, {8*3840}")
    a("""
    s_branch P0_issued
    P0_w1:
    s_sub_u32 s36, s33, 30
    s_lshl_b32 s36, s36, 7
    v_mul_u32_u24 v76, 3072, v76
    v_add_u32 v76, v76, v77
    s_waitcnt lgkmcnt(0)
    """)
    for i in range(10): a(f"buffer_load_dwordx4 {vr(20+4*i,4)}, v76, s[12:15], s36 offen\ns_add_u32 s36, s36, {8*3072}")
    a("P0_issued:")

def phase0_finish(a):
    a(f"""
    s_cmp_ge_u32 s31, 2
    s_cbranch_scc1 P0_fcols
    s_mov_b32 s37, 0xffff0000
    """)
    for r in range(10): a(f"v_lshlrev_b32 v{40+2*r}, 16, v{20+r}\nv_and_b32 v{41+2*r}, s37, v{20+r}")
    def unp(r, t): a(f"v_lshlrev_b32 v{t}, 16, v{r}\nv_and_b32 v{t+1}, s37, v{r}")
    for r in range(5): unp(30 + r, 20 + 2*r)
    for r in range(4): unp(35 + r, 72 + 2*r)
    unp(39, 30)
    U = [40 + 2*i for i in range(10)] + [20 + 2*i for i in range(6)] + [72 + 2*i for i in range(4)]
    a(f"v_pk_add_f32 v[68:69], {vr(U[0],2)}, {vr(U[1],2)}\nv_pk_add_f32 v[70:71], {vr(U[2],2)}, {vr(U[3],2)}")
    for i in range(4, 20, 2):
        a(f"v_pk_add_f32 v[68:69], v[68:69], {vr(U[i],2)}\nv_pk_add_f32 v[70:71], v[70:71], {vr(U[i+1],2)}")
    a("v_pk_add_f32 v[68:69], v[68:69], v[70:71]\nv_add_f32 v68, v68, v69")
    for ror in (8, 4, 2, 1): dpp_add(a, 68, 68, ror)
    a("v_mul_f32 v68, 0x3acccccd, v68")
    for i in range(20): a(f"v_pk_add_f32 {vr(U[i],2)}, {vr(U[i],2)}, v[68:69] op_sel_hi:[1,0] neg_lo:[0,1] neg_hi:[0,1]")
    a(f"v_pk_mul_f32 v[70:71], {vr(U[0],2)}, {vr(U[0],2)}\nv_pk_mul_f32 v[32:33], {vr(U[1],2)}, {vr(U[1],2)}")
    for i in range(2, 20, 2):
        a(f"v_pk_fma_f32 v[70:71], {vr(U[i],2)}, {vr(U[i],2)}, v[70:71]\nv_pk_fma_f32 v[32:33], {vr(U[i+1],2)}, {vr(U[i+1],2)}, v[32:33]")
    a("v_pk_add_f32 v[70:71], v[70:71], v[32:33]\nv_add_f32 v69, v70, v71")
    for ror in (8, 4, 2, 1): dpp_add(a, 69, 69, ror)
    a(f"""
    v_mov_b32 v70, 0x3727c5ac
    v_fmac_f32 v70, 0x3acccccd, v69
    v_rsq_f32 v69, v70
    v_lshlrev_b32 v65, 3, v65
    v_cmp_eq_u32 vcc, 0, v66
    s_and_saveexec_b64 s[48:49], vcc
    s_nop 1
    buffer_store_dwordx2 v[68:69], v65, s[16:19], 0 offen sc1
    s_mov_b64 exec, -1
    s_branch P0_done
    P0_fcols:
    s_cmp_ge_u32 s2, 216
    s_cbranch_scc1 P0_done
    v_and_b32 v68, 15, v60
    v_and_b32 v69, 1, v60
    v_lshlrev_b32 v69, 4, v69
    v_mov_b32 v70, 0x3f80
    v_lshlrev_b32 v69, v69, v70
    v_lshrrev_b32 v68, 1, v68
    """)
    for q in range(4): a(f"v_cmp_eq_u32 vcc, {q}, v68\ns_nop 1\nv_cndmask_b32 v{64+q}, 0, v69, vcc")
    a("s_nop 1")
    for i in range(10):
        a(f"v_mfma_f32_16x16x32_bf16 v[68:71], v[64:67], {vr(20+4*i,4)}, {'0' if i == 0 else 'v[68:71]'}")
    a(f"""
    s_mul_i32 s36, s34, {3456*4}
    s_lshl_b32 s35, s33, 8
    s_add_u32 s36, s36, s35
    s_add_u32 s36, s36, {WS_COLS}
    v_and_b32 v76, 7, v60
    v_lshlrev_b32 v76, 5, v76
    v_and_b32 v77, 16, v60
    v_add_u32 v76, v76, v77
    v_and_b32 v77, 40, v60
    """)
    for q in range(4): dpp_add(a, 72+q, 68+q, 8)
    a(f"""
    v_cmp_eq_u32 vcc, 0, v77
    s_and_saveexec_b64 s[48:49], vcc
    s_nop 1
    buffer_store_dwordx4 v[72:75], v76, s[16:19], s36 offen sc1
    s_mov_b64 exec, -1
    P0_done:
    """)

def l2_prefetch(a):
    a(f"""
    s_lshr_b32 s46, s2, 3               ; idx
    s_cmp_ge_u32 s31, 2
    s_cbranch_scc1 PF_w
    s_and_b32 s47, s2, 1
    s_lshl_b32 s47, s47, 5
    s_add_u32 s47, s47, s46
    s_mul_i32 s47, s47, {32*1280}
    v_and_b32 v20, 31, v60
    v_mul_u32_u24 v20, 1280, v20
    v_lshrrev_b32 v21, 5, v60
    s_lshl_b32 s48, s31, 1
    s_add_u32 s48, s48, s32
    s_add_u32 s48, s48, 2
    v_add_u32 v21, s48, v21
    """)
    for j in range(2):
        a(f"""
        v_add_u32 v22, {4*j}, v21
        v_subrev_u32 v23, 10, v22
        v_min_u32 v22, v22, v23
        v_lshl_add_u32 v22, v22, 7, v20
        buffer_load_dword v{16+j}, v22, s[4:7], s47 offen
        """)
    a(f"""
    buffer_load_dword v18, v22, s[4:7], s47 offen
    s_branch PF_x
    PF_w:
    s_lshr_b32 s47, s29, 1              ; pair
    s_add_u32 s48, s32, 2
    s_cmp_eq_u32 s31, 3
    s_cbranch_scc1 PF_w1
    s_mul_i32 s47, s47, 320
    s_and_b32 s47, s47, 0xffffff80
    s_mul_i32 s46, s46, {2*3840}
    s_add_u32 s47, s47, s46
    """)
    for j in range(3):
        a(f"""
        v_add_u32 v20, {64*j}, v60
        v_min_u32 v20, 143, v20
        v_mul_u32_u24 v21, 57, v20
        v_lshrrev_b32 v21, 9, v21           ; r = n / 9
        v_mul_u32_u24 v22, 9, v21
        v_sub_u32 v20, v20, v22             ; l
        v_mul_u32_u24 v22, 11, v20
        v_lshrrev_b32 v22, 5, v22           ; seg = l / 3
        v_mul_u32_u24 v22, {1280 - 384}, v22
        v_lshl_add_u32 v20, v20, 7, v22
        v_lshrrev_b32 v22, 1, v21
        v_add_u32 v22, s48, v22
        v_subrev_u32 v23, 10, v22
        v_min_u32 v22, v22, v23             ; chunk
        v_and_b32 v21, 1, v21
        v_lshl_add_u32 v21, v22, 6, v21
        v_mad_u32_u24 v20, v21, v24, v20
        buffer_load_dword v{16+j}, v20, s[8:11], s47 offen
        """.replace("v_add_u32 v20, 0, v60", "v_mov_b32 v24, 3840\nv_mov_b32 v20, v60"))
    a(f"""
    s_branch PF_x
    PF_w1:
    s_mul_i32 s46, s46, {2*3072}
    s_lshl_b32 s49, s47, 9
    s_add_u32 s46, s46, s49
    s_lshl_b32 s47, s47, 8
    s_sub_u32 s47, {2048 - 512}, s47
    v_mov_b32 v24, 3072
    """)
    for j in range(2):
        a(f"""
        v_add_u32 v20, {64*j}, v60
        v_min_u32 v20, 95, v20
        v_mul_u32_u24 v21, 43, v20
        v_lshrrev_b32 v21, 8, v21           ; r = n / 6
        v_mul_u32_u24 v22, 6, v21
        v_sub_u32 v20, v20, v22             ; l
        v_lshrrev_b32 v22, 2, v20
        v_mul_u32_u24 v22, s47, v22
        v_lshl_add_u32 v20, v20, 7, v22
        v_lshrrev_b32 v22, 1, v21
        v_add_u32 v22, s48, v22
        v_subrev_u32 v23, 10, v22
        v_min_u32 v22, v22, v23             ; chunk
        v_and_b32 v21, 1, v21
        v_lshl_add_u32 v21, v22, 6, v21
        v_mad_u32_u24 v20, v21, v24, v20
        buffer_load_dword v{16+j}, v20, s[12:15], s46 offen
        """)
    a("buffer_load_dword v18, v20, s[12:15], s46 offen\nPF_x:")

def code_touch(a, L):
    a(f"""
    s_getpc_b64 s[46:47]
    {L}_pc:
    s_sub_u32 s46, s46, {L}_pc-{NAME}_kernel
    s_subb_u32 s47, s47, 0
    s_lshr_b32 s44, s2, 3
    s_lshl_b32 s44, s44, 2
    s_add_u32 s44, s44, s31
    s_lshl_b32 s44, s44, 9
    v_and_b32 v13, 3, v60
    v_lshl_add_u32 v13, v13, 7, s44
    v_min_u32 v13, F_end-{NAME}_kernel, v13
    global_load_dword v79, v13, s[46:47]
    """)
    if OPT['tw'] & 2:
        a(f"""
        v_and_b32 v13, 15, v60
        v_min_u32 v13, 10, v13
        v_lshlrev_b32 v13, 21, v13
        s_add_u32 s46, s44, 0x10000
        buffer_load_dword v76, v13, s[16:19], s46 offen
        v_and_b32 v13, 0x200000, v13
        buffer_load_dword v75, v13, {SOUT}, s46 offen
        """)
    if OPT['tw'] & 1:
        a(f"""
        v_and_b32 v13, 3, v60
        v_lshlrev_b32 v13, 16, v13
        s_lshl_b32 s46, s44, 9
        buffer_load_dword v78, v13, s[16:19], s46 offen offset:3968
        s_lshl_b32 s46, s44, 7
        v_mov_b32 v13, 0
        buffer_load_dword v77, v13, {SOUT}, s46 offen
        """)

def flag_addrs(a):
    a(f"""
    s_lshl_b32 s50, s28, 11
    s_lshl_b32 s55, s30, 3
    s_add_u32 s55, s55, s29
    s_lshl_b32 s55, s55, 7
    s_add_u32 s50, s50, s55
    s_add_u32 s50, s50, {FL_H}
    s_lshl_b32 s51, s29, 11
    s_lshl_b32 s55, s28, 7
    s_add_u32 s51, s51, s55
    s_add_u32 s51, s51, {FL_KV}
    s_lshl_b32 s52, s28, 10
    s_lshl_b32 s55, s29, 7
    s_add_u32 s52, s52, s55
    s_add_u32 s52, s52, {FL_O}
    s_cmp_eq_u32 s30, 1
    s_cselect_b32 s51, s52, s51
    s_lshr_b32 s54, s2, 4
    s_lshl_b32 s54, s54, 7
    s_and_b32 s55, s2, 15
    s_lshl_b32 s55, s55, 2
    s_add_u32 s54, s54, s55
    s_add_u32 s54, s54, {FL_S}
    """)

def compute(a, typ):
    L = f"F_c{typ}"
    nh = 2 if typ == 0 else 4
    a(f"{L}:\ns_barrier")
    stamp(a, 1)
    for r in tile_reads(typ, 0, SET[0]): a(r)
    if OPT['al']: a(f"s_branch {L}_loop\n.p2align {OPT['al']}")
    a(f"{L}_loop:")
    for s in range(4):
        if s < 3:
            a("s_waitcnt lgkmcnt(0)")
            fill = tile_reads(typ, s + 1, SET[(s + 1) % 2])
            if s == 2:
                fill += [f"s_cmp_eq_u32 s42, 2", f"s_cselect_b32 s41, {-2*SLOT}, s45", "s_add_u32 s42, s42, 1", "s_cmp_eq_u32 s42, 3", "s_cselect_b32 s42, 0, s42", "s_bitcmp1_b32 s57, s40"]
        else:
            a(f"s_cbranch_scc1 {L}_it2\ns_waitcnt lgkmcnt(0)\ns_barrier\n{L}_it2r:")
            rd = tile_reads(typ, 0, SET[0])
            up = lambda r: f"v_add_u32 v{r}, s41, v{r}"
            fill = [up(XA), up(QA)] + rd[:3] + [up(HA + i) for i in range(nh)] + rd[3:6] + [up(XA + 1), up(XA + 2), up(XA + 3)] + rd[6:]
            fill += ["s_add_u32 s40, s40, 1", "s_cmp_lt_u32 s40, 10"]
        mfma_step(a, SET[s % 2], fill)
    a(f"s_cbranch_scc1 {L}_loop")
    if OPT['prio']: a("s_setprio 3")
    stamp(a, 2)
    fill = [f"ds_read_b32 v{RSTD}, v{RSTD}"]
    BD = 16
    bdr = {}
    order = [(0,0),(1,0),(0,1),(1,1),(2,2),(0,2),(1,2),(2,3),(1,3),(2,4),(1,4)]
    for n, (T, u) in enumerate(order):
        bdr[(T, u)] = BD + 4*n
        for uu in range(2): fill.append(f"ds_read_b64_tr_b16 {vr(BD+4*n+2*uu,2)}, v{BDA} offset:{(8*u+4*uu)*96 + T*32}")
    a("s_waitcnt lgkmcnt(0)")
    def hflag():
        a("s_waitcnt vmcnt(0)")
        arrive(a, C_H)
        a(f"s_cmp_eq_u32 s47, 3\ns_cbranch_scc0 {L}_nohf")
        flag_store(a, "s50")
        if typ == 1 and OPT['bp']:
            p2_ids(a, "s33", "s34")
            a(f"s_lshr_b32 s33, s33, 1\ns_lshl_b32 s33, s33, 11\ns_add_u32 s33, s33, {FL_H}\ns_mov_b64 s[34:35], 0xff00")
            poll(a, "s33", "s[34:35]", 60)
            setword(a, W_H)
        a(f"{L}_nohf:")
    hfirst = typ == 1 and OPT['bf']
    k = 0
    for n, t in enumerate([3, 4, 5, 6, 0, 1, 2] if hfirst else range(7)):
        acc = vr(ACC + 16*t, 16)
        a(f"v_mfma_f32_32x32x16_bf16 {acc}, {vr(SET[0]+4+4*t,4)}, {vr(SET[0],4)}, {acc}")
        for x in fill[4*n:4*n+4]: a(x)
    BF = 112; P = 64
    cv = [f"v_cvt_pk_bf16_f32 v{BF+i}, v{ACC+2*i}, v{ACC+2*i+1}" for i in range(20)]
    if not hfirst:
        for x in cv: a(x)
        a("s_waitcnt lgkmcnt(0)\ns_barrier")
    hb = ACC + (80 if typ == 0 else 48)
    npair = 4 if typ == 0 else 8
    va = [f"v_mul_f32 v12, {LOG2E}, v{RSTD}", f"v_mul_f32 v14, v{RSTD}, v{RSTD}"]
    for m in range(npair):
        b = hb + 8*m
        for i in range(8): va.append(f"v_max_f32 v{b+i}, 0, v{b+i}")
        for i in range(4): va.append(f"v_pk_mul_f32 {vr(136+2*i,2)}, {vr(b+2*i,2)}, v[14:15] op_sel_hi:[1,0]")
        for i in range(4): va.append(f"v_pk_mul_f32 {vr(b+2*i,2)}, {vr(136+2*i,2)}, {vr(b+2*i,2)}")
        for i in range(4): va.append(f"v_cvt_pk_bf16_f32 v{b+i}, v{b+2*i}, v{b+2*i+1}")
        va.append(f"buffer_store_dwordx4 {vr(b,4)}, v15, s[16:19], s43 offen offset:{(m>>1)*1024 + (m&1)*512} sc1")
    if OPT['gh'] == 2 or (OPT['gh'] == 3 and typ == 0): va.append(f"v_mov_b32 v1, 1\nv_mov_b32 v2, {W_O}\ns_mov_b64 exec, 1\nds_add_u32 v2, v1\ns_mov_b64 exec, -1")
    if hfirst:
        a("s_waitcnt lgkmcnt(15)")
        for x in va[:23]: a(x)
        a("s_waitcnt lgkmcnt(0)\ns_barrier")
        for x in va[23:] + cv + ["s_nop 1"]: a(x)
        va = []
        if OPT['hb2']: hflag()
    if typ == 0:
        vb = ACC + 40
        for i in range(20):
            va += [f"v_pk_mul_f32 {vr(vb+2*i,2)}, {vr(vb+2*i,2)}, {vr(RSTD,2)} op_sel_hi:[1,0]", f"v_cvt_pk_bf16_f32 v{vb+i}, v{vb+2*i}, v{vb+2*i+1}"]
        for i in range(5): va.append(f"ds_write_b128 v8, {vr(vb+4*i,4)} offset:{320+16*i}")
        va += ["v_mov_b32 v2, 0x3f80", "v_mov_b32 v3, 0", "ds_write_b64 v0, v[2:3] offset:480"]
    k = 0
    seen = set()
    for n, (T, u) in enumerate(order):
        d = vr(P + 16*T, 16)
        a(f"v_mfma_f32_32x32x16_bf16 {d}, {vr(bdr[(T,u)],4)}, {vr(BF+4*u,4)}, {d if T in seen else '0'}")
        seen.add(T)
        if n >= 2:
            for _ in range(6):
                if k < len(va): a(va[k]); k += 1
    while k < len(va): a(va[k]); k += 1
    stamp(a, 3)
    if typ == 0:
        if OPT['hfa']: hflag()
        softmax(a, P, ACC, list(range(16, 26)), list(range(26, 36)))
        if not OPT['hfa']: hflag()
        for i in range(5): a(f"ds_write_b128 v9, {vr(16+4*i,4)} offset:{16*i}")
        if OPT['ek'] == 3: early_flag(a)
        softmax(a, P + 20, ACC + 20, list(range(36, 46)), list(range(46, 56)))
        stamp(a, 4)
        if OPT['ek'] == 4: early_flag(a)
        for i in range(5, 10): a(f"ds_write_b128 v9, {vr(16+4*i,4)} offset:{16*i}")
        signal(a, C_PV)
        dstamp(a, 1)
        spin(a, C_PV, 4)
        if OPT['ek'] == 1: early_flag(a)
        dstamp(a, 2)
        for st in range(8):
            for u in range(2):
                off = u*4*PV_PITCH + st*16*PV_PITCH
                a(f"ds_read_b64_tr_b16 {vr(64+12*st+2*u,2)}, v61 offset:{off}\nds_read_b64_tr_b16 {vr(68+12*st+2*u,2)}, v61 offset:{off+40}\nds_read_b64_tr_b16 {vr(72+12*st+2*u,2)}, v62 offset:{off}")
            if st >= 2:
                a("s_waitcnt lgkmcnt(12)")
                for sg in range(2):
                    d = vr(160 + 16*sg, 16)
                    a(f"v_mfma_f32_32x32x16_bf16 {d}, {vr(64+12*(st-2)+4*sg,4)}, {vr(72+12*(st-2),4)}, {'0' if st == 2 else d}")
        for st in range(6, 8):
            a(f"s_waitcnt lgkmcnt({42-6*st})")
            for sg in range(2):
                d = vr(160 + 16*sg, 16)
                a(f"v_mfma_f32_32x32x16_bf16 {d}, {vr(64+12*st+4*sg,4)}, {vr(72+12*st,4)}, {d}")
        dstamp(a, 3)
        if OPT['ek'] == 2: early_flag(a)
        a("s_mov_b32 exec_lo, 0x1fffff\ns_mov_b32 exec_hi, 0x1fffff\ns_nop 7\ns_nop 2")
        for sg in range(2):
            for i in range(4): a(f"v_cvt_pk_bf16_f32 v{200+4*sg+i}, v{160+16*sg+2*i}, v{161+16*sg+2*i}")
            for i in range(2): a(f"v_cvt_pk_bf16_f32 v{208+2*sg+i}, v{168+16*sg+2*i}, v{169+16*sg+2*i}")
            a(f"buffer_store_dwordx4 {vr(200+4*sg,4)}, v63, s[16:19], s56 offen offset:{672*sg} sc1")
        a("s_mov_b32 exec_hi, 0")
        a(f"buffer_store_dwordx4 v[208:211], v63, s[16:19], s56 offen offset:1344 sc1")
        a("s_mov_b64 exec, -1\ns_branch F_fin")
    else:
        if OPT['hfb'] and not OPT['hb2']: hflag()
        else: a('s_nop 7\ns_nop 3')
        for hh in range(2):
            o = 16 + 20*hh
            softmax(a, P + 20*hh, ACC + 20*hh, [o+i for i in range(8)] + [o+16, o+17], [o+8+i for i in range(8)] + [o+18, o+19])
            if hh == 0 and not OPT['hfb']: hflag()
        stamp(a, 4)
        otask(a)
    a(f"""
    {L}_it2:
    s_cmp_eq_u32 s40, {OPT['cl']}
    s_cbranch_scc1 {L}_it0
    s_cmp_eq_u32 s40, {OPT['ct']}
    s_cbranch_scc1 {L}_itc
    s_cmp_eq_u32 s40, 1
    s_cbranch_scc1 {L}_it1
    v_mov_b32 v13, {W_N}
    ds_read_b32 v12, v13
    s_waitcnt vmcnt(0) lgkmcnt(0)
    s_barrier
    v_readfirstlane_b32 {NC}, v12
    s_cmp_eq_u32 s31, 0
    s_cbranch_scc0 {L}_it2r
    v_mov_b32 v13, 0
    s_mov_b64 exec, 1
    buffer_store_dword v12, v13, s[16:19], s54 offen sc1
    s_mov_b64 exec, -1
    s_branch {L}_it2r
    {L}_it0:
    s_waitcnt vmcnt(0)
    """)
    assert OPT['cl'] > OPT['ct'] > 2
    if typ == 0:
        a("""
        v_lshlrev_b32 v13, 4, v60
        buffer_store_dwordx4 v[16:19], v13, s[16:19], s56 offen sc1
        v_cmp_gt_u32 vcc, 41, v60
        s_mov_b64 exec, vcc
        buffer_store_dwordx4 v[16:19], v13, s[16:19], s56 offen offset:1024 sc1
        s_mov_b64 exec, -1
        """)
    a(f"{L}_itx:\ns_waitcnt lgkmcnt(0)\ns_barrier\ns_branch {L}_it2r\n{L}_it1:")
    if OPT['p0'] == 1: a(f"s_waitcnt vmcnt(0)\ns_call_b64 s[58:59], P0_fin")
    a(f"s_branch {L}_itx\n{L}_itc:")
    code_touch(a, L)
    a(f"s_branch {L}_itx")

def addr_setup(a, typ):
    nh = 2 if typ == 0 else 4
    a(f"""
    v_mul_u32_u24 v{QA}, {QP[typ]}, v61
    v_mul_u32_u24 v14, {QP[typ]//2}, v62
    v_lshlrev_b32 v15, 3, v63
    v_add3_u32 v{QA}, v{QA}, v14, v15
    v_add_u32 v{QA}, {QB + SLOT}, v{QA}
    v_lshlrev_b32 v{HA}, {7 if typ == 0 else 8}, v61
    v_and_b32 v14, 16, v60
    v_lshlrev_b32 v14, 1, v14
    v_lshl_add_u32 v14, v62, 4, v14
    v_and_b32 v15, 2, v60
    v_lshl_add_u32 v14, v15, 2, v14
    v_add_u32 v{HA}, v{HA}, v14
    v_add_u32 v{HA}, {HB[typ] + SLOT}, v{HA}
    """)
    if typ == 0: a(f"v_and_b32 v14, 8, v60\nv_lshl_add_u32 v{HA}, v14, 3, v{HA}")
    else:        a(f"v_and_b32 v14, 12, v60\nv_lshl_add_u32 v{HA}, v14, 4, v{HA}")
    for i in range(1, nh): a(f"v_xor_b32 v{HA+i}, {64*i}, v{HA}")
    a(f"""
    s_lshl_b32 s43, s28, 3
    s_lshl_b32 s44, s31, 1
    s_add_u32 s43, s43, s44
    s_mul_i32 s43, s43, {68*1024}
    s_mul_i32 s56, s29, 2560
    s_add_u32 s56, s56, s43
    s_add_u32 s56, s56, {WS_A2 + 192*256}
    s_lshl_b32 s44, s29, {11 if typ == 0 else 12}
    s_add_u32 s43, s43, s44
    s_add_u32 s43, s43, {WS_A2 + (32*1024 if typ == 0 else 0)}
    v_and_b32 v15, 16, v60
    v_mul_u32_u24 v15, {68*64}, v15
    v_and_b32 v13, 15, v60
    v_lshl_add_u32 v15, v13, 4, v15
    v_and_b32 v13, 32, v60
    v_lshl_add_u32 v15, v13, 3, v15
    v_mov_b32 v16, -1
    v_mov_b32 v17, -1
    v_mov_b32 v18, -1
    v_mov_b32 v19, -1
    """)
    if typ == 0:
        a(f"""
        v_and_b32 v0, 31, v60
        s_lshl_b32 s44, s31, 5
        v_lshrrev_b32 v13, 5, v60
        v_mul_u32_u24 v63, 336, v13
        v_lshl_add_u32 v63, v0, 4, v63
        v_add_u32 v0, s44, v0
        v_mul_u32_u24 v0, {PV_PITCH}, v0
        v_add_u32 v0, {PVB}, v0
        v_mul_u32_u24 v13, 80, v13
        v_add_u32 v8, v0, v13
        v_add_u32 v9, v8, v13
        v_mul_u32_u24 v72, {PV_PITCH}, v61
        v_add_u32 v72, {PVB}, v72
        v_bfe_u32 v73, v60, 1, 1
        v_lshl_add_u32 v73, v62, 1, v73     ; fmap for pc<4
        v_and_b32 v74, 16, v60
        v_cmp_eq_u32 vcc, 0, v74
        s_mul_i32 s44, s31, 80
        s_and_b32 s46, s31, 1
        v_cndmask_b32 v73, 4, v73, vcc
        v_lshl_add_u32 v61, v73, 3, v72
        v_add_u32 v61, s44, v61
        v_add_u32 v73, s46, v73
        v_cmp_eq_u32 vcc, 5, v73
        s_mul_i32 s44, s31, 40
        s_add_u32 s44, s44, 320
        v_cndmask_b32 v73, v73, 0, vcc
        v_lshl_add_u32 v73, v73, 3, s44
        v_and_b32 v74, 19, v60
        v_cmp_lt_u32 vcc, 16, v74
        v_mov_b32 v75, 480
        s_lshl_b32 s56, s29, 2
        s_add_u32 s56, s56, s31             ; head
        v_cndmask_b32 v73, v73, v75, vcc
        v_add_u32 v62, v73, v72             ; B address
        s_lshl_b32 s56, s56, 4
        s_add_u32 s56, s56, s28
        s_mul_i32 s56, s56, 1792
        s_add_u32 s56, s56, {WS_KVP}
        """)

def otask(a):
    for i in range(4*OPT['so']): a(f"v_mov_b32 v{64+i}, -1")
    for p in range(0, 10*OPT['so'], 2): a(f"buffer_store_dwordx4 v[64:67], v15, s[16:19], s56 offen offset:{256*p} sc1")
    for hh in range(2):
        for sg in range(2):
            for q in range(4): a(f"v_permlane32_swap_b32 v{16+20*hh+8*sg+q}, v{20+20*hh+8*sg+q}")
    a(f"""
    v_lshrrev_b32 v3, 4, v60
    v_mul_u32_u24 v4, 1792, v3
    v_and_b32 v5, 15, v60
    v_lshl_add_u32 v4, v5, 4, v4
    v_lshlrev_b32 v12, 7, v5
    s_lshl_b32 s45, s29, 11
    s_add_u32 s45, s45, {FL_KV}
    s_lshl_b32 s33, s29, 2
    s_add_u32 s33, s33, s31
    s_mul_i32 s33, s33, {16*1792}
    s_add_u32 s33, s33, {WS_KVP}
    v_and_b32 v6, 1, v60
    v_lshlrev_b32 v6, 4, v6
    v_mov_b32 v7, 0x3f80
    v_lshlrev_b32 v6, v6, v7
    v_lshrrev_b32 v7, 1, v5
    """)
    for q in range(4): a(f"v_cmp_eq_u32 vcc, {q}, v7\ns_nop 1\nv_cndmask_b32 v{56+q}, 0, v6, vcc")
    a(f"""
    s_mul_i32 s34, s31, 1792
    s_add_u32 s34, s34, {L_STG}
    v_lshlrev_b32 v5, 4, v5
    v_bfe_u32 v6, v60, 4, 1
    v_lshl_add_u32 v5, v6, 3, v5
    v_add_u32 v5, s34, v5
    v_and_b32 v6, 31, v60
    v_min_u32 v6, 20, v6
    v_lshrrev_b32 v7, 5, v60
    v_mul_u32_u24 v8, 336, v7
    v_lshlrev_b32 v6, 4, v6
    v_add_u32 v6, {L_STG}, v6
    v_add_u32 v8, v8, v6
    v_add_u32 v6, 1344, v6
    v_mov_b32 v9, {L_BD + 2*3840 + 1024}
    v_cmp_gt_u32 vcc, 32, v60
    v_add_u32 v10, {2*1792}, v6
    s_mov_b32 s38, 0x01ff01ff
    s_mov_b32 s39, 0x01ff01ff
    v_cndmask_b32 v6, v9, v6, vcc
    v_cndmask_b32 v10, v10, v9, vcc
    s_cmp_eq_u32 s31, 0
    s_cbranch_scc0 F_o1w
    s_mov_b32 s48, 0
    s_mov_b64 exec, 0xffff
    F_o1:
    buffer_load_dword v3, v12, s[16:19], s45 offen sc1
    s_add_u32 s48, s48, 1
    s_waitcnt vmcnt(0)
    v_cmp_eq_u32 vcc, {NC}, v3
    s_mov_b32 s47, 3
    s_cmp_ge_u32 s48, {TMO}
    s_cbranch_scc1 F_o1x
    s_and_b32 s36, vcc_lo, 0xff
    s_cmp_eq_u32 s36, 0xff
    s_cselect_b32 s47, 1, 0
    s_cmp_ge_u32 vcc_lo, 0xff00
    s_cselect_b32 s36, 2, 0
    s_or_b32 s47, s47, s36
    s_cbranch_scc0 F_o1
    F_o1x:
    v_mov_b32 v1, s47
    v_mov_b32 v2, {W_KV}
    ds_write_b32 v2, v1
    s_mov_b64 exec, -1
    s_branch F_o1y
    F_o1w:
    """)
    spin(a, W_KV, 1)
    a(f"""
    F_o1y:
    s_mov_b32 s34, s47
    s_cmp_eq_u32 s47, 2
    s_cselect_b32 s35, {8*1792}, 0
    s_add_u32 s36, s33, s35
    s_xor_b32 s35, s35, {8*1792}
    s_add_u32 s35, s33, s35
    s_add_u32 s37, s36, {4*1792}
    s_add_u32 s44, s35, {4*1792}
    """)
    stamp(a, 5)
    LD = 140
    def loads(h, s0, s1):
        for i in range(2):
            for g in range(7): a(f"buffer_load_dwordx4 {vr(LD+4*(14*h+7*i+g),4)}, v4, s[16:19], {(s0, s1)[i]} offen offset:{256*g} sc1")
    def verify(h, L):
        r = [LD + 4*(14*h+7*i+g) + 3 for i in range(2) for g in range(6)]
        a(f"v_max3_u32 v11, v{r[0]}, v{r[1]}, v{r[2]}\nv_max3_u32 v13, v{r[3]}, v{r[4]}, v{r[5]}")
        a(f"v_max3_u32 v11, v11, v{r[6]}, v{r[7]}\nv_max3_u32 v13, v13, v{r[8]}, v{r[9]}\nv_max3_u32 v11, v11, v{r[10]}, v{r[11]}")
        a(f"""
        v_max_u32 v14, v{LD+4*(14*h+6)+3}, v{LD+4*(14*h+13)+3}
        v_max_u32 v11, v11, v13
        v_cmp_eq_u32 s[46:47], -1, v14
        v_cmp_eq_u32 vcc, -1, v11
        s_add_u32 s49, s49, 1
        s_and_b64 s[46:47], s[46:47], s[38:39]
        s_or_b64 vcc, vcc, s[46:47]
        s_cmp_ge_u32 s49, {TMO}
        s_cselect_b64 vcc, 0, vcc
        s_cbranch_vccnz {L}
        """)
    a("s_mov_b32 s49, 0\nF_o2:")
    loads(0, "s36", "s37")
    a(f"""
    s_cmp_eq_u32 s34, 3
    s_cbranch_scc1 F_o3x
    s_cmp_eq_u32 s31, 0
    s_cbranch_scc0 F_o3w
    s_mov_b64 s[40:41], 0xffff
    """)
    if OPT['k2'] == 1:
        a("s_and_b32 s40, s34, 1\ns_lshl_b32 s40, s40, 10\ns_add_u32 s45, s45, s40")
        spoll(a, "s45", [40, 41, 42, 43, 46, 47, 57, 58])
    else: poll(a, "s45", "s[40:41]", 60)
    a(f"v_mov_b32 v1, 1\nv_mov_b32 v2, {W_K2}\nds_write_b32 v2, v1\ns_branch F_o3x\nF_o3w:")
    spin(a, W_K2, 1)
    a("F_o3x:\ns_mov_b32 s34, 3")
    dstamp(a, 1)
    loads(1, "s35", "s44")
    for h in range(2):
        a(f"s_waitcnt vmcnt({14 - 14*h})\nF_ov{h}:")
        verify(h, f"F_or{h}")
        for i in range(2):
            for g in range(7):
                d = vr(64 + 4*g, 4)
                a(f"v_mfma_f32_16x16x32_bf16 {d}, v[56:59], {vr(LD+4*(14*h+7*i+g),4)}, {'0' if h + i == 0 else d}")
    a("s_nop 0")
    dstamp(a, 2)
    if OPT['eo'] == 3: early_flag(a)
    a("s_mov_b32 exec_hi, 0")
    for g in range(7):
        a(f"v_cvt_pk_bf16_f32 v{96+2*g}, v{64+4*g}, v{65+4*g}\nv_cvt_pk_bf16_f32 v{97+2*g}, v{66+4*g}, v{67+4*g}\nds_write_b64 v5, {vr(96+2*g,2)} offset:{256*g}")
    signal(a, C_OB)
    spin(a, C_OB, 4)
    if OPT['eo'] == 1: early_flag(a)
    dstamp(a, 3)
    AF = 64
    for hd in range(4):
        for st in range(2): a(f"ds_read_b128 {vr(AF+12*hd+4*st,4)}, v8 offset:{1792*hd + 672*st}")
        a(f"ds_read_b128 {vr(AF+12*hd+8,4)}, v{6 if hd < 2 else 10} offset:{1792*(hd&1)}")
    OD = 128
    pp = [0, 3, 5, 8]
    def norm(hd):
        d = OD + 16*hd
        r = [f"v_add_f32 v{d+12}, 0x358637bd, v{d+12}", f"v_rcp_f32 v{d+12}, v{d+12}", "s_nop 0"]
        for i in range(6): r.append(f"v_pk_mul_f32 {vr(d+2*i,2)}, {vr(d+2*i,2)}, {vr(d+12,2)} op_sel_hi:[1,0]")
        for i in range(4): r.append(f"v_cvt_pk_bf16_f32 v{d+i}, v{d+2*i}, v{d+2*i+1}")
        for i in range(2): r.append(f"v_cvt_pk_bf16_f32 v{112+2*hd+i}, v{d+8+2*i}, v{d+9+2*i}")
        r.append(f"buffer_store_dwordx4 {vr(d,4)}, v15, s[16:19], s56 offen offset:{256*pp[hd]} sc1")
        return r
    q = []
    for up in range(2):
        for st in range(3):
            for hh in range(2):
                hd = 2*up + hh
                if st == 0: a(f"s_waitcnt lgkmcnt({9-3*hd})")
                b = 16 + 20*hh + (8*st + 4*up if st < 2 else 16)
                d = vr(OD + 16*hd, 16)
                a(f"v_mfma_f32_32x32x16_bf16 {d}, {vr(AF+12*hd+4*st,4)}, {vr(b,4)}, {'0' if st == 0 else d}")
                if up == 1 and st == 0 and hh == 1: q = ['s_nop 6'] + norm(0) + norm(1)
                for _ in range(7):
                    if q: a(q.pop(0))
    for x in q: a(x)
    a("s_mov_b32 exec_hi, 0")
    a(f"buffer_store_dwordx4 v[112:115], v15, s[16:19], s56 offen offset:{256*2} sc1\ns_mov_b32 exec_hi, -1\ns_nop 3")
    for x in norm(2) + norm(3): a(x)
    a("s_mov_b32 exec_hi, 0")
    a(f"buffer_store_dwordx4 v[116:119], v15, s[16:19], s56 offen offset:{256*7} sc1")
    if OPT['gb'] == 3: signal(a, W_O)
    if not OPT['so']: a("s_waitcnt vmcnt(0)")
    a("s_mov_b64 exec, -1\ns_branch F_fin")
    for h in range(2):
        a(f"F_or{h}:")
        loads(h, *(("s36", "s37"), ("s35", "s44"))[h])
        a(f"s_waitcnt vmcnt(0)\ns_branch F_ov{h}")

def fin(a):
    a("F_fin:")
    stamp(a, 6)
    if OPT['eo'] == 0 or OPT['ek'] == 0:
        arrive(a, C_O)
        a("s_cmp_eq_u32 s47, 3\ns_cbranch_scc0 F_ot_end")
        if OPT['ek']: a("s_cmp_eq_u32 s30, 1\ns_cbranch_scc0 F_ot_end")
        flag_store(a, "s51")
    else:
        signal(a, C_O)
        a("s_waitcnt lgkmcnt(0)")
    a("F_ot_end:")
    stamp(a, 7)
    stamp_flush(a, 8, 1)
    a("s_endpgm")

def dma(a, base, j, v, srd_, soff):
    a(f"s_add_u32 m0, {base}, {1024*j}\ns_nop 0\nbuffer_load_dwordx4 v{v}, {srd_}, {soff} offen lds")
def issue_head(a):
    a("""
    s_lshl_b32 s34, s32, 7
    s_mul_i32 s35, s32, 245760
    s_mul_i32 s36, s32, 196608
    s_add_u32 s41, s33, s45
    s_add_u32 s42, s33, s46
    s_add_u32 s43, s33, s47
    """)
def issue_tail(a):
    a(f"""
    s_add_u32 s32, s32, 1
    s_cmp_eq_u32 s32, 10
    s_cselect_b32 s32, 0, s32
    s_add_u32 s33, s33, {SLOT}
    s_cmp_eq_u32 s33, {3*SLOT}
    s_cselect_b32 s33, 0, s33
    """)
def first_chunk(a, typ):
    nq = 5 if typ == 0 else 3
    nh = 2 if typ == 0 else 4
    for j in range(nh):
        if j == 0:
            if typ == 0:
                a(f"""
                s_lshl_b32 s37, s31, 4
                v_lshrrev_b32 v3, 3, v60
                v_add_u32 v3, s37, v3               ; row
                v_lshrrev_b32 v4, 2, v60
                v_and_b32 v4, 4, v4
                v_and_b32 v5, 7, v60
                v_xor_b32 v4, v4, v5
                v_mul_u32_u24 v3, 3072, v3
                v_lshl_add_u32 v3, v4, 4, v3
                v_add_u32 v19, s39, v3
                """)
            else:
                a(f"""
                s_lshl_b32 s37, s31, 4
                v_lshrrev_b32 v3, 4, v60
                v_lshlrev_b32 v4, 2, v3
                v_add_u32 v3, s37, v3               ; row
                v_and_b32 v5, 15, v60
                v_xor_b32 v4, v4, v5
                v_mul_u32_u24 v3, 3072, v3
                v_lshl_add_u32 v3, v4, 4, v3
                v_add_u32 v19, s39, v3
                """)
        else:
            a(f"v_add_u32 v{19+j}, {(8 if typ == 0 else 4)*3072*j}, v19")
        dma(a, "s43", j, 19 + j, "s[12:15]", "s36")
    a(f"s_mul_i32 s37, s31, {16*3840}\ns_add_u32 s38, s38, s37")
    for j in range(nq):
        a(f"v_add_u32 v2, {64*j}, v60")
        if typ == 0:
            a(f"""
            v_mul_u32_u24 v3, 3277, v2
            v_lshrrev_b32 v3, 16, v3            ; row
            v_mul_u32_u24 v4, 20, v3
            v_sub_u32 v4, v2, v4                ; pos
            v_mul_u32_u24 v5, 52, v4
            v_lshrrev_b32 v5, 8, v5             ; seg
            v_mul_u32_u24 v3, 3840, v3
            v_lshl_add_u32 v3, v4, 4, v3
            v_and_b32 v6, 1, v5
            v_mul_u32_u24 v6, 1200, v6
            v_lshrrev_b32 v5, 1, v5
            v_mul_u32_u24 v5, 80, v5
            v_add3_u32 v3, v3, v6, s38
            v_sub_u32 v{14+j}, v3, v5
            """)
        else:
            a(f"""
            v_mul_u32_u24 v3, 5462, v2
            v_lshrrev_b32 v3, 16, v3            ; row
            v_mul_u32_u24 v4, 12, v3
            v_sub_u32 v4, v2, v4                ; pos
            v_mul_u32_u24 v5, 43, v4
            v_lshrrev_b32 v5, 8, v5             ; seg
            v_sub_u32 v6, v4, v5
            v_mul_u32_u24 v3, 3840, v3
            v_lshl_add_u32 v3, v6, 4, v3
            v_add_u32 v{14+j}, s38, v3
            """)
        dma(a, "s42", j, 14 + j, "s[8:11]", "s35")

def issue_sub(a):
    if OPT['al']: a(f".p2align {OPT['al']}")
    a("F_issue:")
    issue_head(a)
    for j in range(4): dma(a, "s41", j, 10 + j, "s[4:7]", "s34")
    for j in range(3): dma(a, "s42", j, 14 + j, "s[8:11]", "s35")
    for j in range(2): dma(a, "s43", j, 19 + j, "s[12:15]", "s36")
    a("s_cmp_eq_u32 s30, 1\ns_cbranch_scc1 F_issue_b")
    for j in range(3, 5): dma(a, "s42", j, 14 + j, "s[8:11]", "s35")
    a("s_branch F_issue_e\nF_issue_b:")
    for j in range(2, 4): dma(a, "s43", j, 19 + j, "s[12:15]", "s36")
    a("F_issue_e:")
    issue_tail(a)
    a("s_setpc_b64 s[56:57]")
CALL = "s_call_b64 s[56:57], F_issue"

def cols_addr(a, typ):
    nql = 40 if typ == 0 else 24
    if typ == 0:
        a(f"""
        v_mul_u32_u24 v2, 26, v60
        v_lshrrev_b32 v2, 8, v2             ; seg
        v_mul_u32_u24 v3, 10, v2
        v_sub_u32 v3, v60, v3               ; w
        v_and_b32 v4, 1, v2
        v_mul_u32_u24 v4, 640, v4
        v_lshrrev_b32 v2, 1, v2
        v_mul_u32_u24 v2, 40, v2
        v_lshl_add_u32 v2, v3, 2, v2
        s_mul_i32 s37, s29, 80
        s_add_u32 s37, s37, 640
        v_add3_u32 v2, v2, v4, s37          ; colQ
        s_lshl_b32 s37, s29, 6
        s_add_u32 s37, s37, {1024 - 4*nql}
        """)
    else:
        a(f"""
        v_mul_u32_u24 v2, 22, v60
        v_lshrrev_b32 v2, 8, v2             ; seg
        v_lshlrev_b32 v2, 1, v2
        v_sub_u32 v2, v60, v2
        s_mul_i32 s37, s29, 80
        v_lshl_add_u32 v2, v2, 2, s37       ; colQ
        s_lshl_b32 s37, s29, 7
        s_sub_u32 s37, s37, {4*nql}
        """)
    a(f"""
    v_lshl_add_u32 v3, v60, 2, s37          ; w1 column
    v_add_u32 v4, 1920, v3
    v_lshlrev_b32 v3, 1, v3
    v_mov_b32 v5, 0x40000000
    v_cmp_gt_u32 vcc, {nql}, v60
    v_mov_b32 v6, {2*SLOT + HB[typ] - 8*nql}
    v_mov_b32 v7, {2*SLOT + QB}
    v_cndmask_b32 v2, v4, v2, vcc
    v_cndmask_b32 v51, v3, v5, vcc
    v_cndmask_b32 v6, v6, v7, vcc
    v_lshl_add_u32 v6, v60, 3, v6           ; A0
    v_mov_b32 v7, {HP[typ]}
    v_mov_b32 v8, {QP[typ]}
    v_cndmask_b32 v7, v7, v8, vcc           ; pitch
    v_mov_b32 v8, 64
    v_cndmask_b32 v8, v8, v56, vcc          ; X
    v_lshlrev_b32 v50, 2, v2
    """)
    for k in range(5):
        xm = ((k >> 1) & 1) if typ == 0 else (k & 3)
        a(f"v_mul_u32_u24 v{40+k}, {xm}, v8\nv_xor_b32 v{40+k}, v{40+k}, v6\nv_mad_u32_u24 v{40+k}, v7, {k}, v{40+k}")

def helper(a):
    a(f"""
    F_helper:
    s_sub_u32 s31, s31, 4
    s_lshl_b32 s37, s28, 7
    s_lshl_b32 s38, s31, 5
    s_add_u32 s37, s37, s38             ; first token row
    v_lshrrev_b32 v2, 3, v60
    v_add_u32 v2, s37, v2
    v_mul_u32_u24 v2, 1280, v2
    v_lshrrev_b32 v3, 4, v60
    v_and_b32 v4, 7, v60
    v_xor_b32 v3, v3, v4
    v_lshl_add_u32 v10, v3, 4, v2
    v_xor_b32 v3, 4, v3
    v_lshl_add_u32 v11, v3, 4, v2
    v_add_u32 v11, {8*1280}, v11
    v_add_u32 v12, {16*1280}, v10
    v_add_u32 v13, {16*1280}, v11
    s_lshl_b32 s45, s31, 12
    s_cmp_eq_u32 s30, 1
    s_cselect_b32 s46, 3072, 5120
    s_cselect_b32 s47, 4096, 2048
    s_cselect_b32 s37, {HB[1]}, 0
    s_cselect_b32 s38, 0, {HB[0]}
    s_mul_i32 s46, s46, s31
    s_add_u32 s46, s46, {QB}
    s_mul_i32 s47, s47, s31
    s_add_u32 s47, s47, s37
    s_add_u32 s47, s47, s38
    s_mov_b32 s33, {SLOT}
    """.replace("s_cselect_b32 s46, 3072, 5120", "s_cselect_b32 s46, 3, 5\ns_lshl_b32 s46, s46, 10\ns_cmp_eq_u32 s30, 1").replace("s_cselect_b32 s47, 4096, 2048", "s_cselect_b32 s47, 4, 2\ns_lshl_b32 s47, s47, 10\ns_cmp_eq_u32 s30, 1"))
    issue_head(a)
    a("s_mul_i32 s38, s29, 160\ns_waitcnt lgkmcnt(0)")
    stamp(a, 1)
    for j in range(4): dma(a, "s41", j, 10 + j, "s[4:7]", "s34")
    a("""
    s_cmp_eq_u32 s30, 1
    s_cbranch_scc1 F_hb
    s_add_u32 s38, s38, 1280
    s_lshl_b32 s39, s29, 7
    s_add_u32 s39, s39, 2048
    """)
    first_chunk(a, 0)
    a("v_mov_b32 v21, v19\nv_mov_b32 v22, v19\ns_branch F_hc\nF_hb:\ns_lshl_b32 s39, s29, 8")
    first_chunk(a, 1)
    a("v_mov_b32 v17, v14\nv_mov_b32 v18, v14\nF_hc:")
    issue_tail(a)
    a(CALL)
    a(f"""
    s_mov_b32 s40, s2
    s_mov_b32 s44, s31
    s_cmp_lt_u32 s31, 2
    s_cselect_b32 s58, 1, 0
    s_cbranch_scc1 F_wt_sel
    s_and_b32 s44, s2, 1
    s_lshr_b32 s40, s2, 1
    s_add_u32 s40, s40, {256 - 112}
    s_cmp_eq_u32 s31, 2
    s_cselect_b32 s58, 1, 0
    s_cmp_ge_u32 s2, 224
    s_cselect_b32 s58, s58, 0
    F_wt_sel:
    s_mul_i32 s49, s31, 5120
    s_add_u32 s49, s49, {L_STG}
    v_mov_b32 v62, 0
    v_mov_b32 v63, 0
    s_cmp_eq_u32 s58, 0
    s_cbranch_scc1 F_wt_skip1
    """)
    t = Asm(); t.nlabel = 900
    wt_task(t, "s40", "s44", "s49", 60, SW2, SWO, "s[16:19]", "FW")
    txt = t.text()
    import re
    remap = {20: 62, 21: 63, 22: 23, 23: 24, 24: 25, 25: 26, 26: 27}
    txt = re.sub(r"\bv(2[0-6])\b", lambda m: f"v{remap[int(m.group(1))]}", txt)
    a(txt)
    a(f"""
    F_wt_skip1:
    s_lshl_b32 s37, s29, 2
    s_add_u32 s37, s37, s31
    s_mul_i32 s37, s37, 800
    v_lshlrev_b32 v2, 3, v60
    buffer_load_dwordx2 v[30:31], v2, s[20:23], s37 offen
    buffer_load_dwordx2 v[32:33], v2, s[20:23], s37 offen offset:512
    v_mov_b32 v56, 0
    v_mov_b32 v57, 0
    v_mov_b32 v58, 0
    v_mov_b32 v59, 0
    s_mul_i32 s37, s31, 2880
    s_add_u32 s37, s37, {L_BD}
    v_lshl_add_u32 v2, v60, 4, s37
    ds_write_b128 v2, v[56:59]
    ds_write_b128 v2, v[56:59] offset:1024
    ds_write_b128 v2, v[56:59] offset:1856
    v_lshlrev_b32 v61, 2, v60
    v_min_u32 v2, 60, v61
    v_add_u32 v2, {L_CNT}, v2
    ds_write_b32 v2, v56
    v_mov_b32 v50, 0
    v_mov_b32 v51, 0
    s_cmp_eq_u32 s31, 3
    s_cbranch_scc0 F_ca2
    s_cmp_eq_u32 s30, 1
    s_cbranch_scc1 F_ca1
    """)
    cols_addr(a, 0)
    a("s_branch F_ca2\nF_ca1:")
    cols_addr(a, 1)
    a(f"""
    F_ca2:
    v_mov_b32 v49, {W_N}
    s_mov_b32 s40, {FL_S}
    {CALL if OPT['c2'] == 1 else ""}
    s_cmp_eq_u32 s58, 1
    s_cbranch_scc1 F_wt_j1
    s_waitcnt vmcnt({13 + 11*(OPT['c2'] == 1)})
    F_wt_j1:
    s_waitcnt vmcnt({18 + 11*(OPT['c2'] == 1)}) lgkmcnt(0)
    {CALL if OPT['c2'] == 2 else ""}
    s_barrier
    {"s_setprio 2" if OPT['hp'] == 2 else ""}
    {CALL if OPT['c2'] == 0 else ""}
    s_waitcnt vmcnt(13)
    s_barrier
    s_cmp_eq_u32 s58, 0
    s_cbranch_scc1 F_wt_skip2
    """)
    for nt in range(5):
        for u in range(2): a(f"ds_read_b64_tr_b16 {vr(64+4*nt+2*u,2)}, v62 offset:{u*640 + 8*nt}")
    a(f"{CALL}\ns_waitcnt lgkmcnt(0)")
    for nt in range(5):
        a(f"buffer_store_dwordx4 {vr(64+4*nt,4)}, v63, s[16:19], s{54 if nt < 4 else 55} offen offset:{(nt%4)*1024}{SC}")
    a(f"""
    s_waitcnt vmcnt(16)
    s_branch F_wt_j2
    F_wt_skip2:
    s_buffer_load_dword {NC}, {SDBG}, 0
    {CALL}
    s_cmp_eq_u32 s31, 3
    s_cbranch_scc0 F_ng_x
    s_mov_b32 s48, 0
    s_waitcnt lgkmcnt(0)
    s_cmp_eq_u32 {NC}, 0
    s_cbranch_scc0 F_ng_y
    F_ng:
    s_buffer_load_dword {NC}, {SDBG}, 0 glc
    s_add_u32 s48, s48, 1
    s_waitcnt lgkmcnt(0)
    s_cmp_ge_u32 s48, {TMO}
    s_cbranch_scc1 F_ng_y
    s_cmp_eq_u32 {NC}, 0
    s_cbranch_scc1 F_ng
    F_ng_y:
    v_mov_b32 v2, {NC}
    ds_write_b32 v49, v2
    F_ng_x:
    s_waitcnt vmcnt(11) lgkmcnt(0)
    F_wt_j2:
    s_barrier
    """)
    for k in range(3, 7):
        a(CALL)
        if k == 5: a(f"""
    s_sub_u32 s37, s31, 1
    s_lshl_b32 s37, s37, 6
    v_add_u32 v2, s37, v60
    v_and_b32 v2, 127, v2
    v_lshlrev_b32 v45, 3, v2
    v_lshlrev_b32 v46, 7, v2
    v_and_b32 v7, 14, v2
    v_lshl_add_u32 v46, v7, 3, v46
    v_add_u32 v46, {2*SLOT}, v46
    v_xor_b32 v47, 16, v46
    v_lshlrev_b32 v48, 2, v2
    v_add_u32 v48, {L_RSTD}, v48
    v_lshrrev_b32 v61, 2, v60
    v_lshlrev_b32 v61, 7, v61
    v_and_b32 v3, 3, v60
    v_lshl_add_u32 v61, v3, 4, v61
 """)
        a("s_waitcnt vmcnt(11)\ns_barrier")
    a(f"""
    s_cmp_eq_u32 s31, 3
    s_cbranch_scc1 F_pl
    {CALL}
    s_waitcnt vmcnt(11)
    s_branch F_pollx
    F_pl:
    buffer_load_dwordx4 v[36:39], v61, s[16:19], s40 offen sc1
    {CALL}
    s_mov_b32 s48, 0
    s_waitcnt vmcnt(11)
    F_poll:
    v_min3_u32 v2, v36, v37, v38
    v_max3_u32 v3, v36, v37, v38
    v_min_u32 v2, v2, v39
    v_max_u32 v3, v3, v39
    v_cmp_eq_u32 s[38:39], {NC}, v2
    v_cmp_eq_u32 vcc, {NC}, v3
    s_and_b64 vcc, vcc, s[38:39]
    s_add_u32 s48, s48, 1
    s_cmp_ge_u32 s48, {TMO}
    s_cbranch_scc1 F_pollx
    s_cmp_eq_u64 vcc, -1
    s_cbranch_scc1 F_pollx
    buffer_load_dwordx4 v[36:39], v61, s[16:19], s40 offen sc1
    s_waitcnt vmcnt(0)
    s_branch F_poll
    F_pollx:
    s_barrier
    """)
    se = OPT['se']
    if not se: a(CALL)
    a(f"""
    s_cmp_eq_u32 s31, 3
    s_cbranch_scc1 F_ldc
    s_lshl_b32 s38, s28, 10
    buffer_load_dwordx2 v[64:65], v45, s[16:19], s38 offen sc1
    {CALL if se else ""}
    s_waitcnt vmcnt(12)
    s_branch F_ldx
    F_ldc:
    s_mov_b32 s37, {WS_COLS}
    """)
    for i in range(8): a(f"buffer_load_dwordx4 {vr(64+4*i,4)}, v50, s[16:19], s37 offen sc1\ns_add_u32 s37, s37, {3456*4}")
    a(f"""
    buffer_load_dwordx2 v[52:53], v51, s[24:27], 0 offen
    {CALL if se else ""}
    s_waitcnt vmcnt(20)
    F_ldx:
    s_barrier
    ds_read_b32 v36, v49
    s_and_b32 s37, s31, 1
    s_mul_i32 s37, s37, {20*96 + 40}
    s_lshr_b32 s38, s31, 1
    s_mul_i32 s38, s38, 3840
    s_add_u32 s37, s37, s38
    s_add_u32 s37, s37, {L_BD}
    v_mul_u32_u24 v2, 205, v60
    v_lshrrev_b32 v2, 10, v2
    v_mul_u32_u24 v2, 56, v2
    v_lshl_add_u32 v2, v60, 3, v2
    v_add_u32 v28, s37, v2
    v_add_u32 v3, 64, v60
    v_mul_u32_u24 v2, 205, v3
    v_lshrrev_b32 v2, 10, v2
    v_mul_u32_u24 v2, 56, v2
    v_lshl_add_u32 v2, v3, 3, v2
    v_add_u32 v29, s37, v2
    ds_write_b64 v28, v[30:31]
    v_cmp_gt_u32 vcc, 36, v60
    s_and_saveexec_b64 s[48:49], vcc
    ds_write_b64 v29, v[32:33]
    s_mov_b64 exec, -1
    s_mov_b32 s39, 0xffff0000
    """)
    p2_ids(a, "s28", "s29")
    a("v_mov_b32 v14, v60")
    p2_setup(a, "s31", 14)
    if OPT['rot']:
        a({1: "s_add_u32 s42, s28, s29", 2: "s_mov_b32 s42, s29"}[OPT['rot']])
        a("s_and_b32 s42, s42, 3\ns_mov_b32 s43, s32\ns_mov_b32 s44, s33\n" + nxt(0, 32, 43, 4096, 57) + "\n" + nxt(0, 33, 44, 20480, 58))
    n1, n2 = OPT['w8'], OPT['w8'] + OPT['w9']
    wl = [ldW(i, nt, SC) for i in range(4) for nt in range(5)] + [wdma(0, j, nt) for j in range(2) for nt in range(5)]
    for x in wl[:n1]: a(x)
    p2_epi_addr(a, "s31", 14)
    a(f"""
    s_mul_i32 s37, s31, 5120
    s_add_u32 s57, s31, 1
    s_mul_i32 s58, s57, 20480
    s_lshl_b32 s57, s57, 12
    s_lshr_b32 s55, s28, 1
    s_lshl_b32 s55, s55, 2
    s_add_u32 s55, s55, s31
    s_lshl_b32 s55, s55, 8
    s_add_u32 s55, s55, {FL_O}
    s_waitcnt lgkmcnt(0)
    v_readfirstlane_b32 {NC}, v36
    s_cmp_eq_u32 s31, 3
    {[f"s_cbranch_scc1 F_w9; s_waitcnt vmcnt({1+n1}); F_w9:; s_waitcnt vmcnt({9+n1}); s_barrier; s_waitcnt vmcnt({n1})", f"s_waitcnt vmcnt({n1}); s_barrier", f"s_waitcnt vmcnt({11+n1})"][se].replace("; ", chr(10))}
    s_cbranch_scc1 F_prc
    s_cmp_eq_u32 s31, 0
    s_cbranch_scc1 F_prx
    v_rcp_f32 v66, v65
    v_sub_f32 v64, 0, v64
    v_cvt_pk_bf16_f32 v68, v64, v64
    v_and_b32 v67, s39, v68
    v_sub_f32 v64, v64, v67
    v_cvt_pk_bf16_f32 v69, v64, v66
    v_and_b32 v67, s39, v69
    v_sub_f32 v66, v66, v67
    v_cvt_pk_bf16_f32 v70, v66, v56
    v_mov_b32 v71, 0
    ds_write_b128 v46, v[68:71]
    ds_write_b128 v47, v[56:59]
    ds_write_b32 v48, v65
    s_branch F_prx
    F_prc:
    """)
    for i in range(1, 8):
        for q in range(2): a(f"v_pk_add_f32 {vr(64+2*q,2)}, {vr(64+2*q,2)}, {vr(64+4*i+2*q,2)}")
    a("""
    v_cvt_pk_bf16_f32 v70, v64, v65
    v_cvt_pk_bf16_f32 v71, v66, v67
    v_lshlrev_b32 v72, 16, v70
    v_and_b32 v73, s39, v70
    v_lshlrev_b32 v74, 16, v71
    v_and_b32 v75, s39, v71
    v_sub_f32 v64, v64, v72
    v_sub_f32 v65, v65, v73
    v_sub_f32 v66, v66, v74
    v_sub_f32 v67, v67, v75
    v_cvt_pk_bf16_f32 v72, v64, v65
    v_cvt_pk_bf16_f32 v73, v66, v67
    v_cmp_gt_u32 vcc, 56, v60
    s_and_saveexec_b64 s[48:49], vcc
    ds_write_b64 v40, v[70:71]
    ds_write_b64 v41, v[72:73]
    ds_write_b64 v42, v[70:71]
    ds_write_b64 v43, v[52:53]
    ds_write_b64 v44, v[52:53]
    s_mov_b64 exec, -1
    F_prx:
    """)
    if se == 2: a(f"s_waitcnt vmcnt({n1})\ns_barrier")
    d3 = OPT['d3']
    def late(cond, lab):
        if cond and OPT['da']: a(f"s_lshl2_add_u32 s48, s30, s31\ns_cmp_eq_u32 s48, 3\ns_cbranch_scc{cond - 1} {lab}")
        elif cond: a(f"s_cmp_eq_u32 s31, 3\ns_cbranch_scc{cond - 1} {lab}")
        for x in wl[n1:n2]: a(x)
        if cond: a(f"{lab}:")
    if d3 == 0: late(0, "")
    if d3 in (1, 2): late(2, "F_d3a")
    a("v_add_u32 v15, s37, v6\nv_add_u32 v13, 61440, v15\nv_add_u32 v1, 112640, v15\ns_waitcnt lgkmcnt(0)\ns_barrier")
    if d3 == 2: late(1, "F_d3b")
    if d3 == 3: late(0, "")
    a("s_barrier")
    if d3 == 1: late(1, "F_d3b")
    if d3 == 4: late(0, "")
    if OPT['gh'] == 3:
        a(f"s_mul_i32 s36, s30, {C_H - W_O}\ns_add_u32 s36, s36, {W_O}")
        spin(a, "s36", 4, va=10)
    elif OPT['gh']: spin(a, C_H if OPT['gh'] == 1 else W_O, 4, va=10)
    for x in wl[n2:]: a(x)

def wslot(typ, j): return j*20480 + (128*PV_PITCH if typ == 0 and j >= 2 else 0)
def wdma(typ, j, nt):
    t = f"s_add_u32 m0, s37, {wslot(typ, j) + (4096 if nt == 4 else 0)}\ns_nop 0\n" if nt in (0, 4) else ""
    if nt < 4: return t + f"buffer_load_dwordx4 v6, s[16:19], s33 offen offset:{nt*1024}{NS[OPT['nsw']]} lds"
    return t + f"buffer_load_dwordx4 v7, s[16:19], s33 offen{NS[OPT['nsw']]} lds\n" + (nxt(j + 5, 33, 44, 20480, 58) if OPT['rot'] else "s_add_u32 s33, s33, 20480")

class VM:
    def __init__(self, a): self.a = a; self.q = []
    def issue(self, tag, text): self.a(text); self.q.append(tag)
    def wait(self, tags, extra=""):
        last = max(i for i, t in enumerate(self.q) if t in tags)
        n = len(self.q) - 1 - last
        assert n < 64
        self.a(f"s_waitcnt vmcnt({n}){extra}")
def phase2(a):
    a("F_p2:\ns_cmp_eq_u32 s30, 1\ns_cbranch_scc1 F_p2_1")
    for typ in range(2):
        a(f"F_p2_{typ}:")
        phase2_t(a, typ)
        if typ == 0: a("s_branch F_p2_e")
    a("F_p2_e:")
    stamp(a, 7)
    a("s_waitcnt lgkmcnt(0)\ns_barrier")
    for m in range(3):
        for nt in range(5): a(f"ds_read_b128 {vr(20+20*m+4*nt,4)}, v{10+m} offset:{m*20480 + nt*1024}")
    for m in range(3):
        a(f"s_waitcnt lgkmcnt({10-5*m})")
        for q in range(10): a(f"v_pk_add_f32 {vr(AC2+2*q,2)}, {vr(AC2+2*q,2)}, {vr(20+20*m+2*q,2)}")
    for q in range(10): a(f"v_cvt_pk_bf16_f32 v{AC2+q}, v{AC2+2*q}, v{AC2+2*q+1}")
    a(f"buffer_store_dwordx4 {vr(AC2,4)}, v8, {SOUT}, s34 offen\nbuffer_store_dwordx4 {vr(AC2+4,4)}, v8, {SOUT}, s34 offen offset:16\nbuffer_store_dwordx2 {vr(AC2+8,2)}, v8, {SOUT}, s34 offen offset:32")
    a("s_add_u32 s31, s31, 4")
    stamp_flush(a, 8, 1)
    a("s_endpgm")
    for x in ool: a(x)

ool = []
def phase2_t(a, typ):
    nl = OPT['nlb'] if typ else OPT['nla']
    LA = OPT['la']
    vm = VM(a)
    for i in range(4):
        for nt in range(5): vm.q.append(("W", i))
    for j in range(nl):
        for nt in range(5):
            if j < 2: vm.q.append(("WL", j))
            else: vm.issue(("WL", j), wdma(typ, j, nt))
    stamp(a, 2)
    a(f"s_lshr_b32 s54, s28, 1\ns_lshl_b32 s54, s54, 11\ns_add_u32 s54, s54, {FL_H}\ns_mov_b64 s[38:39], {'0xff00' if OPT['bf'] else '0xffff'}\ns_mov_b64 s[40:41], 0xff")
    if not (typ == 1 and OPT['bp']):
        a(f"s_cmp_eq_u32 s31, 0\ns_cbranch_scc0 F_p2_wait{typ}")
        poll(a, "s54", "s[38:39]", 14, va=10)
        setword(a, W_H, va=10)
    a(f"F_p2_wait{typ}:")
    spin(a, W_H, 1, va=10)
    stamp(a, 3)
    if typ == 0 and OPT['ga']: spin(a, C_O, 4, va=10)
    gate = 4 + nl if typ == 1 and OPT['gb'] else 99
    for i in range(LA):
        for m in range(4): vm.issue(("A", i), ldA(i, m, SC))
    xe = AR + 32
    def lds_rd(i, nt):
        o = wslot(typ, i - 4) + nt*1024
        r, o = (15, o) if o < 61440 else (13, o - 61440) if o < 112640 else (1, o - 112640)
        return f"ds_read_b128 {vr(WR+20*(i%4)+4*nt,4)}, v{r} offset:{o}"
    FS = OPT['fast']
    def xadd():
        vm.wait(["x"])
        a("s_mov_b32 s39, 0xffff0000")
        for q in range(10):
            x = xe + q; b = xe + 10 + q
            t = xe + 20
            a(f"v_lshlrev_b32 v{t}, 16, v{x}\nv_and_b32 v{t+1}, s39, v{x}\nv_lshlrev_b32 v{t+2}, 16, v{b}\nv_and_b32 v{t+3}, s39, v{b}")
            a(f"v_pk_add_f32 {vr(t,2)}, {vr(t,2)}, {vr(t+2,2)}\nv_pk_add_f32 {vr(AC2+2*q,2)}, {vr(AC2+2*q,2)}, {vr(t,2)}")
    def prep():
        a("s_mov_b32 s48, 0")
        for m in range(1, 4):
            a(f"s_sub_u32 s36, s31, {m}\ns_and_b32 s36, s36, 3\ns_mul_i32 s36, s36, 5120\nv_add_u32 v{9+m}, s36, v6")
    def fo_issue():
        a("v_and_b32 v0, 1, v14\nv_lshlrev_b32 v0, 7, v0")
        vm.issue("fo", "buffer_load_dword v0, v0, s[16:19], s55 offen sc1")
    def steps(i0, i1, fast):
      tg = f"{typ}{'f' if fast else ''}"
      for i in range(i0, i1):
        if i == 12 and not fast:
            if not FS: xadd()
            stamp(a, 5)
            if typ == 0: spin(a, C_O, 4, va=10)
            vm.wait(["fo"])
            a(f"v_cmp_eq_u32 vcc, {NC}, v0\ns_cmp_eq_u64 vcc, -1\ns_cbranch_scc1 F_fo{typ}")
            poll(a, "s55", "3", 14, va=10)
            a(f"F_fo{typ}:")
            stamp(a, 6)
            a("s_mov_b32 s56, s32")
            for k in range(12, 17):
                for m in range(4): vm.issue(("A", k), ldA(k, m, SC))
            prep()
        if i == 12 and fast:
            stamp(a, 5)
            if typ == 0: spin(a, C_O, 4, va=10)
            prep()
        if i == gate:
            spin(a, C_O if OPT['gb'] == 2 else W_O, 4, va=10)
            for k in range(gate, gate + 4):
                for nt in range(5): vm.issue(("W", k), ldW(k, nt, SC))
            a("s_mov_b32 s52, s33\ns_add_u32 s33, s33, 5120")
            for nt in range(5): vm.issue(("W", 16), wdma(typ, 3, nt))
            a("s_mov_b32 s33, s52")
        if OPT['bf'] and i == OPT['fa']:
            a("v_and_b32 v12, 7, v14\nv_lshlrev_b32 v12, 7, v12")
            vm.issue("fa", "buffer_load_dword v12, v12, s[16:19], s54 offen sc1")
        if OPT['bf'] and i == 8 - LA:
            vm.wait(["fa"])
            a(f"v_cmp_eq_u32 vcc, {NC}, v12\ns_cmp_eq_u64 vcc, -1\ns_cbranch_scc1 F_fa{typ}")
            poll(a, "s54", "s[40:41]", 14, va=10)
            a(f"F_fa{typ}:")
        ex = ""
        if i == 16: ex = " lgkmcnt(0)"
        if 4 <= i < 4 + nl: ex = f" lgkmcnt({5*(min(i + 3, 3 + nl) - i)})"
        vm.wait([("A", i), ("W", i)] + ([("W", 16)] if i == 12 else []), ex)
        if i == 0: stamp(a, 4)
        if i >= 12 and OPT['so']:
            b = AR + 16*(i % 5)
            a(f"F_v{tg}_{i}:\nv_max3_u32 v0, v{b+3}, v{b+7}, v{b+11}\nv_max_u32 v0, v0, v{b+15}\nv_cmp_eq_u32 vcc, -1, v0\ns_cbranch_vccnz F_r{tg}_{i}\nF_g{tg}_{i}:")
            t = f"F_r{tg}_{i}:\ns_add_u32 s48, s48, 1\ns_cmp_ge_u32 s48, {TMO}\ns_cbranch_scc1 F_g{tg}_{i}\ns_add_u32 s36, s56, {(i-12)*1024}\n"
            for m in range(4): t += f"buffer_load_dwordx4 {vr(b+4*m,4)}, v{2+m}, s[16:19], s36 offen sc1\n"
            ool.append(t + f"s_waitcnt vmcnt(0)\ns_branch F_v{tg}_{i}")
        if i == 16:
            for m in (1, 2, 3, 0):
                for nt in range(5):
                    d = vr(AC2 + 20*m + 4*nt, 4)
                    a(f"v_mfma_f32_16x16x32_bf16 {d}, {vr(WR+20*(i%4)+4*nt,4)}, {vr(AR+16*(i%5)+4*m,4)}, {d}")
                    pm = (m - 1) % 4
                    if pm == 1 and nt == 0: a('s_nop 2')
                    if pm: a(f"ds_write_b128 v15, {vr(AC2+20*pm+4*nt,4)} offset:{(pm-1)*20480 + nt*1024}")
            continue
        for nt in range(5):
            for m in range(4):
                d = vr(AC2 + 20*m + 4*nt, 4)
                a(f"v_mfma_f32_16x16x32_bf16 {d}, {vr(WR+20*(i%4)+4*nt,4)}, {vr(AR+16*(i%5)+4*m,4)}, {'0' if i == 0 else d}")
                if m == 1 and nt < 4:
                    if i + LA < 12: vm.issue(("A", i + LA), ldA(i + LA, nt, SC))
                    elif fast and i + 4 < 17: vm.issue(("A", i + 4), ldA(i + 4, nt, SC))
            if i + 4 < 4 + nl: a(lds_rd(i + 4, nt))
            elif i == 12: a(lds_rd(7, nt).replace(vr(WR+60+4*nt,4), vr(WR+4*nt,4)))
            elif i + 4 < 16 and not (gate <= i + 4 < gate + 4): vm.issue(("W", i + 4), ldW(i + 4, nt, SC))
        if i == 7 and gate == 99:
            a("s_mov_b32 s52, s33\ns_add_u32 s33, s33, 20480")
            for nt in range(5): vm.issue(("W", 16), wdma(typ, 3, nt))
            a("s_mov_b32 s33, s52")
        if i == 11 and not fast: fo_issue()
        if i == 8:
            for k, (n, o) in enumerate(((4, 0), (4, 16), (2, 32))):
                vm.issue("x", f"buffer_load_dwordx{n} {vr(xe+4*k,n)}, v8, s[4:7], s34 offen offset:{o}")
            for k, (n, o) in enumerate(((4, 0), (4, 16), (2, 32))):
                vm.issue("x", f"buffer_load_dwordx{n} {vr(xe+10+4*k,n)}, v9, {SB2}, s35 offen offset:{o}")
        if FS and i == FS - 2: fo_issue()
    if not FS:
        steps(0, 17, False)
        return
    steps(0, FS, False)
    xadd()
    vm.wait(["fo"])
    a(f"v_cmp_eq_u32 vcc, {NC}, v0\ns_cmp_eq_u64 vcc, -1\ns_cbranch_scc1 F_fast{typ}")
    q0 = list(vm.q)
    steps(FS, 17, False)
    a(f"s_branch F_p2_e\nF_fast{typ}:")
    vm.q = q0
    stamp(a, 6)
    a("s_mov_b32 s56, s32")
    for k in range(12, FS + 4):
        for m in range(4): vm.issue(("A", k), ldA(k, m, SC))
    steps(FS, 17, True)

def KR():
    k = OPT['kr']
    if k == 0: return ""
    t = {1: "s_and_b32 s35, s34, 7\ns_add_u32 s32, s32, s35",
         2: "s_and_b32 s35, s34, 7\ns_add_u32 s32, s32, s35\ns_lshr_b32 s35, s34, 3\ns_mul_i32 s35, s35, 3\ns_add_u32 s32, s32, s35",
         3: "s_and_b32 s35, s34, 1\ns_mul_i32 s35, s35, 5\ns_add_u32 s32, s32, s35",
         4: "s_lshr_b32 s35, s34, 3\ns_add_u32 s35, s35, s34\ns_and_b32 s35, s35, 1\ns_add_u32 s32, s32, s35"}[k]
    return t + "\ns_mul_i32 s35, s32, 26\ns_lshr_b32 s35, s35, 8\ns_mul_i32 s35, s35, 10\ns_sub_u32 s32, s32, s35"

def gen_f1():
    a = Asm()
    stamp(a, 0)
    srd(a, 4, 0, NB_X); srd(a, 8, 8, NB_WQKV); srd(a, 12, 40, NB_W1); srd(a, 16, 88, WS_END); srd(a, 20, 16, NB_WPHI); srd(a, 24, 48, NB_B1)
    srd(a, 60, 56, NB_W2); srd(a, 64, 24, NB_WO); srd(a, 68, 72, NB_X); srd(a, 72, 64, NB_B2); srd(a, 76, 80, 256)
    a(f"""
    s_cmp_ge_u32 s2, 256
    s_cbranch_scc1 F_end
    v_lshrrev_b32 v1, 6, v0
    v_and_b32 v60, 63, v0
    s_and_b32 s33, s2, 7                ; xcd
    v_readfirstlane_b32 s31, v1
    s_lshr_b32 s34, s2, 3               ; idx
    s_and_b32 s28, s33, 1
    s_lshl_b32 s28, s28, 3
    s_and_b32 s35, s34, 7
    s_add_u32 s28, s28, s35             ; rb
    s_lshr_b32 s35, s34, 3              ; jj
    s_lshr_b32 s30, s35, 1              ; type
    s_and_b32 s35, s35, 1
    s_and_b32 s29, s33, 6
    s_add_u32 s29, s29, s35             ; g
    s_mov_b32 s32, s33
    {KR()}
    s_cmp_lt_u32 s31, 4
    s_cbranch_scc1 F_comp
    """)
    if OPT['hp'] == 1: a("s_setprio 2")
    helper(a)
    phase2(a)
    issue_sub(a)
    a(f"""
    F_comp:
    s_lshl_b32 s33, s2, 2
    s_add_u32 s33, s33, s31
    s_cmp_eq_u32 s33, 3
    s_cbranch_scc0 F_nonce_x
    s_mov_b32 s34, {WS_NONCE}
    s_waitcnt lgkmcnt(0)
    s_buffer_load_dword s35, s[16:19], s34 glc
    v_mov_b32 v3, 0
    s_waitcnt lgkmcnt(0)
    s_add_u32 s35, s35, 1
    s_max_u32 s35, s35, 1
    v_mov_b32 v2, s35
    s_mov_b64 exec, 1
    buffer_store_dword v2, v3, {SDBG}, 0 offen sc1
    buffer_store_dword v2, v3, s[16:19], s34 offen sc1
    s_mov_b64 exec, -1
    F_nonce_x:
    """)
    if OPT['cpf'] == 2: code_touch(a, "F_ct"); a("v_mov_b32 v24, v21")
    phase0_issue(a)
    if OPT['pf1'] == 1: a('s_waitcnt lgkmcnt(0)'); l2_prefetch(a)
    a(f"""
    v_lshrrev_b32 v61, 5, v60
    v_bfe_u32 v62, v60, 2, 2
    v_lshl_add_u32 v61, v61, 3, v62     ; 8hf + j
    v_and_b32 v62, 1, v60               ; c&1
    v_bfe_u32 v63, v60, 4, 1
    v_bfe_u32 v2, v60, 1, 1
    v_lshl_add_u32 v63, v63, 1, v2      ; 2gg + (c>>1)
    v_and_b32 v2, 31, v60
    s_lshl_b32 s43, s31, 5
    v_add_u32 v2, s43, v2
    v_lshrrev_b32 v3, 5, v60
    v_bfe_u32 v4, v2, 1, 3
    v_xor_b32 v3, v3, v4
    v_lshlrev_b32 v3, 4, v3
    v_lshl_add_u32 v{XA}, v2, 7, v3
    v_lshlrev_b32 v{RSTD}, 2, v2
    v_add_u32 v{RSTD}, {L_RSTD}, v{RSTD}
    v_add_u32 v{XA}, {SLOT}, v{XA}
    v_xor_b32 v{XA+1}, 32, v{XA}
    v_xor_b32 v{XA+2}, 64, v{XA}
    v_xor_b32 v{XA+3}, 96, v{XA}
    v_lshrrev_b32 v12, 5, v60
    v_cmp_eq_u32 vcc, v12, v62
    v_bfe_u32 v13, v60, 2, 2
    v_mul_u32_u24 v13, 96, v13
    v_cndmask_b32 v12, 2, v12, vcc
    v_mul_u32_u24 v12, 3840, v12
    v_lshl_add_u32 v13, v63, 3, v13
    v_add_u32 v{BDA}, v12, v13
    v_add_u32 v{BDA}, {L_BD}, v{BDA}
    s_cmp_eq_u32 s30, 1
    s_cbranch_scc1 F_as1
    """)
    addr_setup(a, 0)
    a("s_branch F_as2\nF_as1:")
    addr_setup(a, 1)
    a("F_as2:")
    for i in range(112): a(f"v_mov_b32 v{ACC+i}, 0")
    if OPT['p0'] == 2 and not OPT['pe']: a("s_waitcnt vmcnt(0)"); phase0_finish(a)
    if OPT['p0'] == 2 and OPT['pe']: a("s_waitcnt vmcnt(0)\ns_call_b64 s[58:59], P0_fin")
    if OPT['pf1'] == 2: a('s_waitcnt lgkmcnt(0)'); l2_prefetch(a)
    flag_addrs(a)
    a(f"""
    s_waitcnt lgkmcnt(0)
    s_mov_b32 s40, 0
    s_mov_b32 s57, {4 | (1 << OPT['cl']) | (1 << OPT['ct']) | (2 if OPT['p0'] == 1 else 0)}
    s_mov_b32 s42, 1
    s_mov_b32 s45, {SLOT}
    s_cmp_eq_u32 s30, 1
    s_cbranch_scc1 F_c1
    """)
    compute(a, 0)
    compute(a, 1)
    fin(a)
    if OPT['p0'] == 1 or OPT['pe']:
        a("P0_fin:")
        phase0_finish(a)
        a("s_setpc_b64 s[58:59]")
    a("F_end:\ns_endpgm")
    return a.text()

def build():
    t = gen_f1()
    for e in check_hazards(t): print(e)
    return file_text([f"; @launch grid=(256,1,1) block=(512,1,1) lds={F_LDS}"], [(NAME + "_kernel", t, 256, 102, 256)])
if __name__ == "__main__":
    for arg in list(sys.argv[1:]):
        if "=" in arg:
            k, v = arg.split("="); OPT[k] = int(v); sys.argv.remove(arg)
    out = sys.argv[1] if len(sys.argv) > 1 else f"cdna_kernels/{NAME}.s"
    open(out, "w").write(build())
```
